```python
import torch

def _softmax(x, axis=-1):
    return torch.softmax(x, dim=axis)
def _gelu(x):
    return torch.nn.functional.gelu(x, approximate="tanh")
def _silu(x):
    return torch.nn.functional.silu(x)
def _sigmoid(x):
    return torch.sigmoid(x)
def _layernorm(x, axis=-1, eps=1e-5):
    m = x.mean(dim=axis, keepdim=True)
    v = x.var(dim=axis, keepdim=True, unbiased=False)
    return (x - m) / torch.sqrt(v + eps)
def _scatter_add(tgt, idx, src, axis=0):
    return tgt.clone().index_add_(axis, idx, src)
def _segment_sum(src, seg, n):
    out = torch.zeros((n,) + src.shape[1:], dtype=src.dtype)
    return out.index_add_(0, seg, src)
def _pad(x, pw):
    flat = tuple(v for pair in reversed(pw) for v in pair)
    return torch.nn.functional.pad(x, flat)

kernel_name = 'standalone__gqa_softmax__near_ridge'

def setup_inputs():

    _w = (lambda a: (lambda t: t.to(torch.bfloat16) if t.is_floating_point() else t)(torch.as_tensor(a)))
    B, Hq, Hkv, Sq, Sk, D = 16, 32, 8, 496, 512, 128
    return {
        "q": _w((lambda *s: torch.randn(*s, dtype=torch.bfloat16) * 0.8)(B, Hq, Sq, D)),
        "k": _w((lambda *s: torch.randn(*s, dtype=torch.bfloat16) * 0.8)(B, Hkv, Sk, D)),
        "v": _w((lambda *s: torch.randn(*s, dtype=torch.bfloat16) * 0.05)(B, Hkv, Sk, D)),
    }

def reference(q, k, v):
    B, Hq, Sq, D = q.shape
    Hkv = k.shape[1]
    rep = Hq // Hkv
    k = (lambda x, n, axis: torch.repeat_interleave(x, n, dim=axis))(k, rep, axis=1)
    v = (lambda x, n, axis: torch.repeat_interleave(x, n, dim=axis))(v, rep, axis=1)
    scale = D ** -0.5
    scores = torch.einsum("bhqd,bhkd->bhqk", q, k) * scale
    p = _softmax(scores, axis=-1)
    return torch.einsum("bhqk,bhkd->bhqd", p, v)
```

```python
import re

VALU_KINDS = ("valu", "trans", "perm")

class Op:
    __slots__ = ("text", "kind", "reads", "writes", "rtag", "wtag", "deps", "idx", "gap", "deadline",
                 "name", "covers", "prog", "succ", "lead", "minGap", "passes", "srcc", "extra", "cap")
    def __init__(self, text, kind, reads=(), writes=(), rtag=None, wtag=None, name="", covers=None,
                 lead=0, minGap=None, passes=4, srcc=()):
        self.text = text; self.kind = kind
        self.reads = list(reads); self.writes = list(writes)
        self.rtag = rtag or {}; self.wtag = wtag or {}
        self.deps = []
        self.succ = []
        self.idx = None; self.gap = None; self.deadline = None
        self.name = name; self.covers = covers or []
        self.prog = None; self.lead = lead; self.minGap = minGap
        self.passes = passes; self.srcc = list(srcc); self.extra = None; self.cap = None
    def __repr__(self):
        return f"<{self.kind} {self.text}>"

def regs(prefix, lo, n):
    return [f"{prefix}{lo + i}" for i in range(n)]

def rng(prefix, lo, n):
    return f"{prefix}[{lo}:{lo + n - 1}]" if n > 1 else f"{prefix}{lo}"

def waitstates(p, c, reg, typ):
    if not (reg[0] in "va" and reg[1:].isdigit()):
        if reg == "m0" and typ == "RAW" and c.kind == "dma": return 1
        if reg in ("vcc",) or (reg[0] == "s" and reg[1:].isdigit()):
            if typ == "RAW" and p.kind in VALU_KINDS:
                if c.kind in ("vld", "vst", "dma"): return 5
                if c.kind in VALU_KINDS: return 2
                return 4
        return 0
    if p.kind == "mfma":
        n = {2: 5, 4: 8, 8: 12, 16: 20}[p.passes]
        if typ == "RAW":
            if c.kind == "mfma":
                if reg in c.srcc and set(c.srcc) == set(p.writes) and c.passes == p.passes:
                    return 0
                if reg in c.srcc: return {2: 4, 4: 6, 8: 10, 16: 18}[p.passes]
                return n
            return n
        if typ == "WAW":
            if c.kind == "mfma":
                return {2: 4, 4: 6, 8: 10, 16: 18}[p.passes] if not (reg in c.srcc and set(c.srcc) == set(p.writes)) else 0
            return n
        if typ == "WAR":
            if reg in p.srcc and c.kind in VALU_KINDS: return {2: 1, 4: 3, 8: 7, 16: 15}[p.passes]
            return 0
    if p.kind in VALU_KINDS:
        if typ == "RAW":
            if c.kind == "mfma": return 2
            if c.kind == "perm": return 2
            if p.kind == "trans" and c.kind in VALU_KINDS: return 1
            if c.kind == "readlane": return 1
            return 0
        if typ == "WAW" and c.kind == "mfma": return 2
        return 0
    if p.kind == "vst" and typ == "WAR":
        return 2
    return 0

def build_deps(ops):
    lastw = {}; readers = {}
    for n, op in enumerate(ops):
        op.prog = n
        d = {}
        def add(p, ws, lead=0):
            if p is op: return
            k = id(p)
            if k in d:
                q = d[k]; d[k] = (p, max(q[1], ws), max(q[2], lead))
            else: d[k] = (p, ws, lead)
        for r in op.reads:
            if r in lastw:
                p = lastw[r]
                add(p, waitstates(p, op, r, "RAW"), p.lead if r.startswith("pend:") else 0)
        for w in op.writes:
            if w in lastw:
                p = lastw[w]; add(p, waitstates(p, op, w, "WAW"))
            for p in readers.get(w, ()):
                add(p, waitstates(p, op, w, "WAR"))
        for (p, ws, lead) in op.deps:
            add(p, ws, lead)
        op.deps = list(d.values())
        for r in op.reads: readers.setdefault(r, []).append(op)
        for w in op.writes:
            lastw[w] = op; readers[w] = []
    for op in ops:
        op.succ = []
    for op in ops:
        for (p, ws, lead) in op.deps:
            p.succ.append((op, ws, lead))

def schedule(ops, policy, verbose=False):
    build_deps(ops)
    mf = [o for o in ops if o.kind == "mfma"]
    for k, m in enumerate(mf): m.deadline = k
    INF = len(mf) + 10 ** 6
    for op in reversed(ops):
        if op.kind == "mfma":
            continue
        dl = INF + op.prog
        for (c, ws, lead) in op.succ:
            if c.kind == "mfma":
                dl = min(dl, c.deadline - 1 - lead - (1 if ws > 2 else 0) - (ws // 3 if ws > 2 else 0))
            else:
                dl = min(dl, c.deadline - lead - (ws // 2))
        if op.cap is not None: dl = min(dl, op.cap)
        op.deadline = dl
    out = []
    placed = set()
    fillers = [o for o in ops if o.kind != "mfma"]
    remaining = list(fillers)
    state = dict(gap=-1)
    def ready(o):
        for (p, ws, lead) in o.deps:
            if id(p) not in placed: return False
            if len(out) - p.idx - 1 < ws: return False
            if state["gap"] - p.gap < lead: return False
        if o.minGap is not None and state["gap"] < o.minGap: return False
        return True
    def deps_placed(o):
        return all(id(p) in placed for (p, _, _) in o.deps)
    def emit(o):
        o.idx = len(out); o.gap = state["gap"]; out.append(o); placed.add(id(o))
        if o.kind != "mfma": remaining.remove(o)
    def nop(n):
        o = Op(f"s_nop {n-1}", "nop"); o.extra = n
        o.idx = len(out); o.gap = state["gap"]; out.append(o)
        for _ in range(n - 1):
            z = Op("", "phantom"); z.idx = len(out); z.gap = state["gap"]; out.append(z)
    def force(target):
        guard = 0
        while not ready(target):
            guard += 1
            assert guard < 100000, f"stuck on {target}"
            need = []
            stack = [target]; seen = set()
            while stack:
                x = stack.pop()
                for (p, _, _) in x.deps:
                    if id(p) not in placed and id(p) not in seen:
                        seen.add(id(p)); need.append(p); stack.append(p)
            cand = [o for o in need if o.kind != "mfma" and ready(o)]
            if cand:
                cand.sort(key=lambda o: (o.deadline, o.prog)); emit(cand[0]); continue
            assert not any(o.kind == "mfma" and o is not target for o in need) or True
            cand = [o for o in remaining if ready(o) and o.kind in VALU_KINDS + ("lds", "salu")]
            if cand and False:
                cand.sort(key=lambda o: (o.deadline, o.prog)); emit(cand[0]); continue
            hard = False
            xs = [target] + need
            miss = 0
            for x in xs:
                if deps_placed(x):
                    for (p, ws, lead) in x.deps:
                        miss = max(miss, 0)
                        m = ws - (len(out) - p.idx - 1)
                        if m > 0: miss = max(miss, m); hard = True
            if hard:
                nop(min(miss, 16))
            else:
                state["gap"] += 1
                state["bumps"] = state.get("bumps", 0) + 1
    for k, m in enumerate(mf):
        force(m)
        state["gap"] = max(state["gap"] + 1, 0)
        emit(m)
        m.extra = k
        policy(k, remaining, ready, emit, state)
    while remaining:
        cand = [o for o in remaining if ready(o)]
        if cand:
            cand.sort(key=lambda o: (o.deadline, o.prog)); emit(cand[0])
        else:
            o = min(remaining, key=lambda o: o.prog)
            force(o); emit(o)
    if verbose: print("gap bumps:", state.get("bumps", 0))
    return out

def default_policy(k, remaining, ready, emit, state):
    g = state["gap"]
    rd = [o for o in remaining if ready(o)]
    rd.sort(key=lambda o: (o.deadline, o.prog))
    mem = [o for o in rd if o.kind in ("lds", "vld", "vst", "dma", "ldsw")]
    sca = [o for o in rd if o.kind in ("salu", "waitl", "waitv", "bar")]
    E = [o for o in rd if o.kind == "trans"]
    aux = state.setdefault("lastE", -10)
    def due(o, slack): return o.deadline - g <= slack
    wantE = bool(E) and (g - state["lastE"] >= 2 or E[0].deadline <= g)
    bars = [o for o in sca if o.kind == "bar"]
    if wantE:
        s = [o for o in sca if o.kind != "bar" and (o.kind == "salu" or due(o, 2))]
        if s: emit(s[0])
        emit(E[0]); state["lastE"] = g
    else:
        budget = 2
        if bars and due(bars[0], 3):
            emit(bars[0]); budget = 1
        elif mem:
            emit(mem[0]); budget = 1
        else:
            s = [o for o in sca if o.kind != "bar" and (o.kind == "salu" or due(o, 2))]
            if s: emit(s[0])
        n = 0
        while n < budget:
            P = [o for o in remaining if o.kind in ("valu", "perm") and ready(o)]
            if not P: break
            P.sort(key=lambda o: (o.deadline, o.prog)); emit(P[0]); n += 1
        P = [o for o in remaining if o.kind in ("valu", "perm") and ready(o) and o.deadline - g <= state.get("horizon", 10 ** 9)]
        if len(P) >= state.get("backlog", 3):
            P.sort(key=lambda o: (o.deadline, o.prog)); emit(P[0])
    while True:
        late = [o for o in remaining if o.deadline <= g and ready(o)]
        if not late: break
        late.sort(key=lambda o: (o.deadline, o.prog)); emit(late[0])

def resolve_waits(trace_segments):
    lq = []
    vq = []
    for (ops, p) in trace_segments:
        for o in ops:
            if o.kind in ("lds", "ldsw"): lq.append(o)
            elif o.kind in ("vld", "vst", "dma"): vq.append(o)
            elif o.kind == "waitl":
                pos = [i for i, x in enumerate(lq) if any(x is c for c in o.covers)]
                if pos:
                    last = max(pos); n = len(lq) - 1 - last
                    lq = lq[last + 1:]
                else:
                    n = 15
                n = min(n, 15)
                o.extra = n if o.extra is None else min(o.extra, n)
            elif o.kind == "waitv":
                pos = [i for i, x in enumerate(vq) if any(x is c for c in o.covers)]
                if pos:
                    last = max(pos)
                    n = len(vq) - 1 - last
                    vq = vq[last + 1:]
                else:
                    n = 63
                n = min(n, 63)
                o.extra = n if o.extra is None else min(o.extra, n)
            elif o.kind == "waitall":
                lq = []; vq = []

def optext(o):
    if o.kind == "phantom": return None
    if o.kind == "waitl": return f"s_waitcnt lgkmcnt({o.extra})"
    if o.kind == "waitv": return f"s_waitcnt vmcnt({o.extra})"
    return o.text

def check_trace(trace_segments, name=""):
    pos = 0
    lastw = {}
    lastr = {}
    tags = {}
    pend = {}
    lq = []; vq = []
    errors = []
    def abs_tag(t, p):
        if t is None: return None
        nm, rt, rp = t[0], t[1], t[2]
        return (nm, None if rt is None else 16 * p + rt, None if rp is None else p + rp) + tuple(t[3:])
    for (ops, p) in trace_segments:
        for o in ops:
            if o.kind == "phantom": pos += 1; continue
            real_reads = [r for r in o.reads if not r.startswith("pend:") and not r.startswith("ps:")]
            real_writes = [w for w in o.writes if not w.startswith("pend:") and not w.startswith("ps:")]
            if o.kind in ("waitl", "waitv"):
                q = lq if o.kind == "waitl" else vq
                n = o.extra
                while len(q) > n:
                    x = q.pop(0)
                    for w in x.writes:
                        if pend.get(w) is x: del pend[w]
                pos += 1; continue
            if o.kind == "waitall":
                lq.clear(); vq.clear(); pend.clear(); pos += 1; continue
            for r in real_reads:
                if r in pend: errors.append(f"{name} p{p}: {o} reads pending {r} of {pend[r]}")
                if r in lastw:
                    w, wp = lastw[r]
                    ws = waitstates(w, o, r, "RAW")
                    if pos - wp - 1 < ws: errors.append(f"{name} p{p}: RAW hazard {w} -> {o} on {r}: need {ws} have {pos-wp-1}")
                if r in o.rtag:
                    exp = abs_tag(o.rtag[r], p)
                    if tags.get(r) != exp: errors.append(f"{name} p{p}: {o} reads {r}: tag {tags.get(r)} expected {exp}")
            for w in real_writes:
                if w in pend and not (o.kind in ("lds", "vld")): errors.append(f"{name} p{p}: {o} writes pending {w}")
                if w in lastw:
                    q, qp = lastw[w]
                    ws = waitstates(q, o, w, "WAW")
                    if pos - qp - 1 < ws: errors.append(f"{name} p{p}: WAW hazard {q} -> {o} on {w}")
                for (q, qp) in lastr.get(w, ()):
                    ws = waitstates(q, o, w, "WAR")
                    if pos - qp - 1 < ws: errors.append(f"{name} p{p}: WAR hazard {q} -> {o} on {w}")
            for r in real_reads: lastr.setdefault(r, []).append((o, pos))
            for w in real_writes:
                lastw[w] = (o, pos); lastr[w] = []
                tags[w] = abs_tag(o.wtag.get(w), p)
            if o.kind in ("lds", "ldsw"):
                lq.append(o)
                if o.kind == "lds":
                    for w in real_writes: pend[w] = o
            elif o.kind in ("vld", "vst", "dma"):
                vq.append(o)
                if o.kind == "vld":
                    for w in real_writes: pend[w] = o
            pos += 1
    return errors
```

```python
import sys, os, struct, argparse
sys.path.insert(0, os.path.dirname(os.path.abspath(__file__)))
from sched import *

KNAME = "standalone__gqa_softmax__near_ridge_kernel"

def O_(dt, j): return (dt * 4 + j) * 4
def S_(kvt, j): return 128 + (kvt * 4 + j) * 4
def P_(buf, j): return 160 + buf * 16 + j * 4
def NM_(j): return 192 + 4 * j
def LS0_(j): return 208 + j
def LS1_(j): return 212 + j
TMP = 216
vK0, vK1 = 240, 241
vV = [242, 243, 244, 245]
vQO = 246
vDMA = 247
vRC = [248, 249, 250, 251]
vT0, vT1, vT2, vT3 = 252, 253, 254, 255
def Q_(j, s): return (j * 4 + s) * 4
def QN_(j, s): return 64 + (j * 4 + s) * 4
def KF_(kvt, s): return 128 + (kvt * 4 + s) * 4
def VF_(dt): return 160 + dt * 4

sSRD_Q, sSRD_K, sSRD_V, sSRD_O = 12, 16, 20, 24
sW = 28; sPASS = 29
sQ = [30, 31, 32, 33]
sO = [34, 35, 36, 37]
sVB = 38
sVO = 39
sM0B = 40
sQB = 41
sFLAG = 42
sROW = 44
sT0, sT1 = 45, 46
sC = 47
sTHR = 48
sKB = 49
sOOB = 50
sVO2 = 51

LDS_V = 131072
Q_BYTES = 16 * 32 * 496 * 128 * 2
KV_BYTES = 16 * 8 * 512 * 128 * 2
CSCALE = (128 ** -0.5) * 1.4426950408889634
def f32bits(x): return struct.unpack("<I", struct.pack("<f", x))[0]

class Cfg:
    backlog = 3
    lds_lead = 7
    thr = 2.0 ** 20

def V(i): return f"v{i}"
def A(i): return f"a{i}"

def mfma(d, dpre, a, apre, b, bpre, c=None, rtag=None, wtag=None):
    dr = regs(dpre, d, 4)
    reads = regs(apre, a, 4) + regs(bpre, b, 4)
    if c is None:
        ctext = "0"; srcc = []
    else:
        ctext = rng(dpre, c, 4); srcc = regs(dpre, c, 4); reads += srcc
    return Op(f"v_mfma_f32_16x16x32_bf16 {rng(dpre, d, 4)}, {rng(apre, a, 4)}, {rng(bpre, b, 4)}, {ctext}", "mfma",
              reads, dr, rtag, wtag, srcc=srcc)

def valu(text, reads, writes, rtag=None, wtag=None, kind="valu"):
    return Op(text, kind, reads, writes, rtag, wtag)

def salu(text, reads=(), writes=()):
    return Op(text, "salu", reads, writes)

def ds_read(dst, n, vaddr, off, tagf, tr=False, extra_reads=(), lead=None):
    d = regs("a", dst, n)
    ins = "ds_read_b64_tr_b16" if tr else "ds_read_b128"
    return Op(f"{ins} {rng('a', dst, n)}, v{vaddr} offset:{off}", "lds", [V(vaddr)] + list(extra_reads),
              d + ["pend:" + r for r in d], None, {r: tagf for r in d}, lead=Cfg.lds_lead if lead is None else lead)

def wait(kind, loads, extra_covers=()):
    rs = []; ws = []
    for l in loads:
        for w in l.writes:
            if w.startswith("pend:"):
                rs.append(w)
                if not w.startswith("pend:ps"): ws.append(w[5:])
                else: ws.append(w[5:])
    return Op("", kind, rs, ws, covers=list(loads) + list(extra_covers))

def k_reads(t, kvt):
    ops = []
    for s in range(4):
        off = t * 8192 + kvt * 4096 + s * 1024
        va = vK0
        if off >= 65536: off -= 65536; va = vK1
        ops.append(ds_read(KF_(kvt, s), 4, va, off, ("K", None, None, t, kvt, s)))
    return ops

def v_reads(t, dt):
    slot = t % 4
    u, b = dt // 2, dt % 2
    ops = []
    for kvt in range(2):
        off = slot * 8192 + kvt * 4096 + 8 * b
        ops.append(ds_read(VF_(dt) + 2 * kvt, 2, vV[u], off, ("V", None, None, t, dt, kvt), tr=True,
                           extra_reads=[f"ps:vready{t // 2 % 2}"]))
    return ops

def qk_ops(n, qn, first):
    t = n % 16
    rp = n // 16
    res = []
    for kvt in range(2):
        l = []
        for j in range(4):
            for s in range(4):
                q = QN_(j, s) if qn else Q_(j, s)
                rt = {r: ("K", None, None, t, kvt, s) for r in regs("a", KF_(kvt, s), 4)}
                rt.update({r: ("Q", None, rp, j, s) for r in regs("a", q, 4)})
                if s == 0:
                    if first and kvt == 0: c = None
                    else:
                        c = NM_(j); rt.update({r: ("NM", None, rp, j) for r in regs("v", c, 4)})
                else:
                    c = S_(kvt, j); rt.update({r: ("Sp", n, None, kvt, j, s - 1) for r in regs("v", c, 4)})
                wt = {r: (("Sp", n, None, kvt, j, s) if s < 3 else ("S", n, None, kvt, j, i))
                      for i, r in enumerate(regs("v", S_(kvt, j), 4))}
                if s == 3 and first and kvt == 0:
                    wt = {r: ("Sraw", n, None, kvt, j, i) for i, r in enumerate(regs("v", S_(kvt, j), 4))}
                l.append(mfma(S_(kvt, j), "v", KF_(kvt, s), "a", q, "a", c, rt, wt))
        res.append(l)
    return res

def max_ops(n):
    rp = n // 16
    ops = []
    for j in range(4):
        s = S_(0, j); t = TMP + 2 * j; u = TMP + 2 * j + 1
        raw = lambda i: {V(s + i): ("Sraw", n, None, 0, j, i)}
        rt = {}; [rt.update(raw(i)) for i in range(3)]
        ops.append(valu(f"v_max3_f32 v{t}, v{s}, v{s+1}, v{s+2}", [V(s), V(s+1), V(s+2)], [V(t)], rt))
        ops.append(valu(f"v_max_f32 v{t}, v{t}, v{s+3}", [V(t), V(s+3)], [V(t)], raw(3)))
        for sw in ("v_permlane16_swap_b32", "v_permlane32_swap_b32"):
            ops.append(valu(f"v_mov_b32 v{u}, v{t}", [V(t)], [V(u)]))
            ops.append(valu(f"{sw} v{t}, v{u}", [V(t), V(u)], [V(t), V(u)], kind="perm"))
            ops.append(valu(f"v_max_f32 v{t}, v{t}, v{u}", [V(t), V(u)], [V(t)]))
        for i in range(4):
            ops.append(valu(f"v_sub_f32 v{NM_(j)+i}, 0, v{t}", [V(t)], [V(NM_(j)+i)], None, {V(NM_(j)+i): ("NM", None, rp, j)}))
        for i in range(4):
            ops.append(valu(f"v_sub_f32 v{s+i}, v{s+i}, v{t}", [V(s+i), V(t)], [V(s+i)], raw(i), {V(s+i): ("S", n, None, 0, j, i)}))
    return ops

def sm_ops(n, kvt, j):
    ops = []
    s = S_(kvt, j); buf = n % 2
    t = n % 16
    for i in range(4):
        ops.append(valu(f"v_exp_f32 v{s+i}, v{s+i}", [V(s+i)], [V(s+i)], {V(s+i): ("S", n, None, kvt, j, i)},
                        {V(s+i): ("E", n, None, kvt, j, i)}, kind="trans"))
        et = {V(s+i): ("E", n, None, kvt, j, i)}
        if t == 0:
            if kvt == 0 and i == 0: pass
            elif kvt == 0 and i == 1:
                ops.append(valu(f"v_add_f32 v{LS0_(j)}, v{s}, v{s+1}", [V(s), V(s+1)], [V(LS0_(j))], et))
            else:
                ops.append(valu(f"v_add_f32 v{LS0_(j)}, v{LS0_(j)}, v{s+i}", [V(LS0_(j)), V(s+i)], [V(LS0_(j))], et))
        elif t == 1 and kvt == 0 and i == 0:
            ops.append(valu(f"v_add_f32 v{LS1_(j)}, v{LS0_(j)}, v{s+i}", [V(LS0_(j)), V(s+i)], [V(LS1_(j))], et))
        else:
            ops.append(valu(f"v_add_f32 v{LS1_(j)}, v{LS1_(j)}, v{s+i}", [V(LS1_(j)), V(s+i)], [V(LS1_(j))], et))
        if i % 2 == 1:
            pr = P_(buf, j) + 2 * kvt + i // 2
            rt = {V(s+i-1): ("E", n, None, kvt, j, i-1), V(s+i): ("E", n, None, kvt, j, i)}
            ops.append(valu(f"v_cvt_pk_bf16_f32 v{pr}, v{s+i-1}, v{s+i}", [V(s+i-1), V(s+i)], [V(pr)], rt,
                            {V(pr): ("P", n, None, j, 2 * kvt + i // 2)}))
    return ops

def pv_ops(n, dt):
    t = n % 16; buf = n % 2
    l = []
    for j in range(4):
        rt = {}
        for kvt in range(2):
            rt.update({r: ("V", None, None, t, dt, kvt) for r in regs("a", VF_(dt) + 2 * kvt, 2)})
        rt.update({r: ("P", n, None, j, i) for i, r in enumerate(regs("v", P_(buf, j), 4))})
        if t == 0: c = None
        else:
            c = O_(dt, j); rt.update({r: ("O", n - 1, None, dt, j) for r in regs("v", c, 4)})
        wt = {r: ("O", n, None, dt, j) for r in regs("v", O_(dt, j), 4)}
        l.append(mfma(O_(dt, j), "v", VF_(dt), "a", P_(buf, j), "v", c, rt, wt))
    return l

def q_loads(into_qn, rp):
    ops = []
    for j in range(4):
        for s in range(4):
            d = QN_(j, s) if into_qn else Q_(j, s)
            dr = regs("a", d, 4)
            ops.append(Op(f"buffer_load_dwordx4 {rng('a', d, 4)}, v{vQO}, s[{sSRD_Q}:{sSRD_Q+3}], s{sQ[j]} offen offset:{64*s}",
                          "vld", [V(vQO), f"s{sQ[j]}"], dr + ["pend:" + r for r in dr], None,
                          {r: ("Q", None, rp, j, s) for r in dr}))
    return ops

def dma_ops(t):
    slot = t % 4
    so = sVO if t % 2 == 0 else sVO2
    ops = [salu(f"s_add_u32 m0, s{sM0B}, {slot * 8192}", [f"s{sM0B}"], ["m0"]),
           salu(f"s_add_u32 s{so}, s{sVB}, {t * 8192}", [f"s{sVB}"], [f"s{so}"])]
    for h in range(2):
        ops.append(Op(f"buffer_load_dwordx4 v{vDMA}, s[{sSRD_V}:{sSRD_V+3}], s{so} offen offset:{1024*h} lds", "dma",
                      [V(vDMA), f"s{so}", "m0", f"ps:vfree{t // 2 % 2}"], [f"pend:ps:vd{t}_{h}", f"ps:vdst{t%4}_{h}"]))
    return ops

def epilogue_ops(n):
    ops = []
    for j in range(4):
        t = TMP + 8 + 2 * j; u = TMP + 8 + 2 * j + 1
        ops.append(valu(f"v_mov_b32 v{t}, v{LS1_(j)}", [V(LS1_(j))], [V(t)]))
        for sw in ("v_permlane16_swap_b32", "v_permlane32_swap_b32"):
            ops.append(valu(f"v_mov_b32 v{u}, v{t}", [V(t)], [V(u)]))
            ops.append(valu(f"{sw} v{t}, v{u}", [V(t), V(u)], [V(t), V(u)], kind="perm"))
            ops.append(valu(f"v_add_f32 v{t}, v{t}, v{u}", [V(t), V(u)], [V(t)]))
        ops.append(valu(f"v_rcp_f32 v{vRC[j]}, v{t}", [V(t)], [V(vRC[j])], kind="trans"))
        ops.append(valu(f"v_cmp_nle_f32 vcc, v{t}, v{vT3}", [V(t), V(vT3)], ["vcc"]))
        ops.append(salu(f"s_or_b64 s[{sFLAG}:{sFLAG+1}], s[{sFLAG}:{sFLAG+1}], vcc", ["vcc", f"s{sFLAG}"], [f"s{sFLAG}"]))
    cnt = 0
    for u in range(4):
        for j in range(4):
            tb = TMP + 16 + 4 * (cnt % 2); cnt += 1
            for b in range(2):
                o = O_(2 * u + b, j)
                for i in range(4):
                    ops.append(valu(f"v_mul_f32 v{o+i}, v{o+i}, v{vRC[j]}", [V(o+i), V(vRC[j])], [V(o+i)],
                                    {V(o+i): ("O", n, None, 2 * u + b, j)}))
                for h in range(2):
                    ops.append(valu(f"v_cvt_pk_bf16_f32 v{tb+2*b+h}, v{o+2*h}, v{o+2*h+1}", [V(o+2*h), V(o+2*h+1)], [V(tb+2*b+h)]))
            ops.append(Op(f"buffer_store_dwordx4 {rng('v', tb, 4)}, v{vQO}, s[{sSRD_O}:{sSRD_O+3}], s{sO[j]} offen offset:{64*u}",
                          "vst", regs("v", tb, 4) + [V(vQO), f"s{sO[j]}"], []))
    return ops

def next_offsets_ops():
    ops = []
    for j in range(4):
        ops.append(salu(f"s_mov_b32 s{sO[j]}, s{sQ[j]}", [f"s{sQ[j]}"], [f"s{sO[j]}"]))
    ops.append(salu(f"s_add_u32 s{sROW}, s{sROW}, 256", [f"s{sROW}"], [f"s{sROW}", "scc"]))
    for j in range(4):
        o = Op(f"s_add_u32 s{sT0}, s{sROW}, {16*j}\n    s_lshl_b32 s{sT1}, s{sT0}, 8\n    s_add_u32 s{sT1}, s{sT1}, s{sQB}\n"
               f"    s_cmp_lt_u32 s{sT0}, 992\n    s_cselect_b32 s{sQ[j]}, s{sT1}, s{sOOB}", "salu",
               [f"s{sROW}", f"s{sQB}"], [f"s{sQ[j]}", f"s{sT0}", f"s{sT1}", "scc"])
        ops.append(o)
    return ops

def build_iteration(i, prologue=False, dma_prev=None):
    raise NotImplementedError

def build_body(pro_dma, cfg):
    ops = []
    dmas = {}
    kreads = {}
    kwait = {}
    qn_loads = None
    for i in range(16):
        n = i + 1
        qk = qk_ops(n, qn=(n == 16), first=(n == 16))
        if True:
            kr = k_reads(n % 16, 1)
            ops += kr
            w = wait("waitl", kr); ops.append(w)
        if n == 16:
            wq = wait("waitv", qn_loads); ops.append(wq)
        ops += qk[0]
        if n == 16: ops += max_ops(n)
        ops += qk[1]
        kr0 = k_reads((n + 1) % 16, 0)
        ops += kr0
        if i % 2 == 0:
            cov = []
            for t in (i, i + 1):
                if t in dmas: cov += dmas[t]
            if i == 0: cov = list(pro_dma) + ["LATE"]
            wv = Op("", "waitv", [], [f"ps:vw{i}"], covers=cov)
            wv.name = f"vw{i}"
            if i > 0:
                for c in cov:
                    wv.deps.append((c, 0, 0))
            ops.append(wv)
            bar = Op("s_barrier", "bar", [f"ps:vw{i}", "ps:vused"], [f"ps:vready{i // 2 % 2}", f"ps:vfree{(i // 2 + 1) % 2}"])
            ops.append(bar)
            for t in (i + 2, i + 3):
                d = dma_ops(t % 16)
                ops += d
                dmas[t] = [o for o in d if o.kind == "dma"]
            if i == 14:
                late = dmas[16] + dmas[17]
        for kvt in range(2):
            for j in range(4):
                ops += sm_ops(n, kvt, j)
        for dt in range(8):
            vr = v_reads(i, dt)
            ops += vr
            w = wait("waitl", vr)
            if dt == 7: w.writes.append("ps:vused")
            ops.append(w)
            ops += pv_ops(i, dt)
        w = wait("waitl", kr0); ops.append(w)
        if i == 1:
            qn_loads = q_loads(True, 1)
            ops += qn_loads
        if i == 14:
            ql = q_loads(False, 1)
            ops += ql
            qreload = ql
    ops += epilogue_ops(15)
    wq2 = wait("waitv", qreload); ops.append(wq2)
    ops += next_offsets_ops()
    for o in ops:
        if o.kind == "waitv" and o.name == "vw0":
            o.covers = list(pro_dma) + late
    return ops

def build_pro_iter():
    ops = []
    for kvt in range(2):
        kr = k_reads(0, kvt); ops += kr
        ops.append(wait("waitl", kr))
    qk = qk_ops(0, qn=False, first=True)
    ops += qk[0]; ops += max_ops(0); ops += qk[1]
    kr0 = k_reads(1, 0); ops += kr0
    for kvt in range(2):
        for j in range(4):
            ops += sm_ops(0, kvt, j)
    ops.append(wait("waitl", kr0))
    return ops

def emit(ops):
    lines = []
    for o in ops:
        t = optext(o)
        if t is None: continue
        lines.append("    " + t)
    return "\n".join(lines) + "\n"

def prologue_text():
    c = f32bits(CSCALE)
    s = f"""
    s_cmp_ge_u32 s2, 256
    s_cbranch_scc1 L_end
    s_load_dwordx4 s[4:7], s[0:1], 0
    s_load_dwordx4 s[8:11], s[0:1], 16
    v_and_b32 v{vT0}, 63, v0                    ; lane
    v_lshrrev_b32 v{vT1}, 6, v0                 ; wave
    v_lshlrev_b32 v{vK0}, 4, v{vT0}             ; lane*16
    v_readfirstlane_b32 s{sW}, v{vT1}
    v_add_u32 v{vK1}, 0x10000, v{vK0}
    ; vQO = (lane%16)*256 + (lane/16)*16
    v_and_b32 v{vT1}, 15, v{vT0}
    v_lshrrev_b32 v{vT2}, 4, v{vT0}
    v_lshlrev_b32 v{vQO}, 8, v{vT1}
    v_lshl_add_u32 v{vQO}, v{vT2}, 4, v{vQO}
    ; vDMA = (lane/16)*256 + ((lane%16) ^ ((lane/16)<<2))*16
    v_lshlrev_b32 v{vT3}, 2, v{vT2}
    v_xor_b32 v{vT3}, v{vT3}, v{vT1}
    v_lshlrev_b32 v{vT3}, 4, v{vT3}
    v_lshl_add_u32 v{vDMA}, v{vT2}, 8, v{vT3}
    v_bfe_u32 v{vT1}, v{vT0}, 2, 2              ; r
    v_and_b32 v{vT3}, 3, v{vT0}                 ; c
    v_lshl_add_u32 v{vT2}, v{vT2}, 2, v{vT1}    ; 4g+r
    v_lshlrev_b32 v{vT2}, 8, v{vT2}
    v_lshl_add_u32 v{vT2}, v{vT3}, 4, v{vT2}    ; +16c
    v_add_u32 v{vT2}, {LDS_V}, v{vT2}
"""
    for u in range(4):
        s += f"    v_xor_b32 v{vT3}, {u}, v{vT1}\n    v_lshl_add_u32 v{vV[u]}, v{vT3}, 6, v{vT2}\n"
    s += f"""
    s_and_b32 s{sT0}, s2, 7
    s_lshr_b32 s{sT1}, s2, 3
    s_lshl_b32 s{sT0}, s{sT0}, 4
    s_lshr_b32 s52, s{sT1}, 1
    s_add_u32 s{sT0}, s{sT0}, s52              ; group
    s_and_b32 s{sT1}, s{sT1}, 1                ; half
    s_lshl_b32 s{sKB}, s{sT0}, 17              ; group * 131072
    s_mul_i32 s{sQB}, s{sT0}, {1984 * 256}
    s_mul_i32 s{sT1}, s{sT1}, {992 * 256}
    s_add_u32 s{sQB}, s{sQB}, s{sT1}
    s_lshl_b32 s{sT0}, s{sW}, 11               ; w*2048
    s_add_u32 s{sVB}, s{sKB}, s{sT0}
    s_add_u32 s{sM0B}, s{sT0}, {LDS_V}
    s_mov_b32 s{sC}, {c:#x}
    s_mov_b32 s{sOOB}, 0x80000000
    s_mov_b64 s[{sFLAG}:{sFLAG+1}], 0
    s_mov_b32 s{sPASS}, 0
    v_mov_b32 v{vT3}, {f32bits(Cfg.thr):#x}
    s_lshl_b32 s{sROW}, s{sW}, 6
"""
    for j in range(4):
        s += f"    s_add_u32 s{sT0}, s{sROW}, {16*j}\n    s_lshl_b32 s{sT0}, s{sT0}, 8\n    s_add_u32 s{sQ[j]}, s{sT0}, s{sQB}\n"
    s += f"""
    s_lshr_b32 s{sT0}, s{sW}, 1
    s_lshl_b32 s{sT0}, s{sT0}, 12
    s_and_b32 s{sT1}, s{sW}, 1
    s_lshl_b32 s52, s{sT1}, 7
    s_add_u32 s53, s{sKB}, s{sT0}
    s_add_u32 s53, s53, s52                    ; s53 = K soffset
    s_lshl_b32 s{sT1}, s{sT1}, 11
    s_add_u32 s{sT0}, s{sT0}, s{sT1}
    v_add_u32 v{vT0}, s{sT0}, v{vK0}
    v_add_u32 v{vT1}, 0x10000, v{vT0}
    s_waitcnt lgkmcnt(0)
"""
    for (srd, lo, size) in ((sSRD_Q, 4, Q_BYTES), (sSRD_K, 6, KV_BYTES), (sSRD_V, 8, KV_BYTES), (sSRD_O, 10, Q_BYTES)):
        s += f"    s_mov_b32 s{srd}, s{lo}\n    s_and_b32 s{srd+1}, s{lo+1}, 0xffff\n    s_mov_b32 s{srd+2}, {size}\n    s_mov_b32 s{srd+3}, 0x00020000\n"
    def kload(n):
        t, h = n // 2, n % 2
        r = ""
        if h == 0 and t > 0: r += f"    s_add_u32 s53, s53, 8192\n"
        r += f"    buffer_load_dwordx4 v[{4*n}:{4*n+3}], v{vQO}, s[{sSRD_K}:{sSRD_K+3}], s53 offen offset:{64*h}\n"
        return r
    for n in range(4): s += kload(n)
    for j in range(4):
        for ss in range(4):
            s += f"    buffer_load_dwordx4 a[{Q_(j,ss)}:{Q_(j,ss)+3}], v{vQO}, s[{sSRD_Q}:{sSRD_Q+3}], s{sQ[j]} offen offset:{64*ss}\n"
    for n in range(4, 32): s += kload(n)
    return s

def kscale_text(ndma):
    s = ""
    for n in range(32):
        t, h = n // 2, n % 2
        after = (31 - n) + ndma + (16 if n < 4 else 0)
        s += f"    s_waitcnt vmcnt({min(after, 63)})\n"
        for i in range(4):
            r = 4 * n + i
            a, b = TMP + 2 * i, TMP + 2 * i + 1
            s += f"    v_lshlrev_b32 v{a}, 16, v{r}\n    v_and_b32 v{b}, 0xffff0000, v{r}\n"
        for i in range(4):
            a, b = TMP + 2 * i, TMP + 2 * i + 1
            s += f"    v_mul_f32 v{a}, s{sC}, v{a}\n    v_mul_f32 v{b}, s{sC}, v{b}\n"
        for i in range(4):
            r = 4 * n + i
            a, b = TMP + 2 * i, TMP + 2 * i + 1
            s += f"    v_cvt_pk_bf16_f32 v{r}, v{a}, v{b}\n"
        off = t * 8192 + h * 1024
        va = vT0
        if off >= 65536: off -= 65536; va = vT1
        s += f"    ds_write_b128 v{va}, v[{4*n}:{4*n+3}] offset:{off}\n"
    return s

LET = dict(valu="a", trans="E", perm="p", lds="L", vld="G", vst="Z", dma="D", salu="s", waitl="w", waitv="W", bar="B", nop="n", ldsw="l")
def show(ops):
    gaps = []; cur = None; est = 0
    for o in ops:
        if o.kind == "mfma":
            cur = []; gaps.append(cur)
        elif o.kind != "phantom" and cur is not None:
            cur.append(LET[o.kind])
    tot = 0
    for i in range(0, len(gaps), 64):
        row = gaps[i:i + 64]
        c = 0
        for g in row:
            v = sum(8 if x == "E" else 4 for x in g if x in "aEp")
            nm = [x for x in g if x not in "aEp"]
            mem = [x for x in nm if x in "LGZDl"]
            cost = 4 + max(4, 4 * len(nm) + (4 if mem else 0) - (4 if (mem and v == 0) else 0)) + v
            c += max(16.5, cost)
        tot += c
        print(f"it{i//64:2d} est {c:6.0f}: " + " ".join("".join(g) if g else "-" for g in row))
    print("est total", tot)

def main():
    ap = argparse.ArgumentParser()
    ap.add_argument("-o", default="standalone__gqa_softmax__near_ridge.s")
    ap.add_argument("--backlog", type=int, default=3)
    ap.add_argument("--lead", type=int, default=7)
    ap.add_argument("--show", action="store_true")
    args = ap.parse_args()
    Cfg.backlog = args.backlog; Cfg.lds_lead = args.lead

    pro_dma_all = dma_ops(0) + dma_ops(1)
    pro_dma = [o for o in pro_dma_all if o.kind == "dma"]
    pro_iter = build_pro_iter()
    def pol(k, remaining, ready, emit_, state):
        state["backlog"] = Cfg.backlog
        default_policy(k, remaining, ready, emit_, state)
    pro_sched = schedule(pro_iter, pol, verbose=True)
    body = build_body(pro_dma, Cfg)
    body_sched = schedule(body, pol, verbose=True)
    noff = next_offsets_ops()
    waitall = Op("s_waitcnt vmcnt(0) lgkmcnt(0)", "waitall")
    qtag = Op("", "phantom")
    setq = Op("; q loaded", "valu", [], sum([regs("a", Q_(j, s), 4) for j in range(4) for s in range(4)], []), None,
              {r: ("Q", None, 0, j, s) for j in range(4) for s in range(4) for r in regs("a", Q_(j, s), 4)})
    trace = [(pro_dma_all, 0), ([setq], 0), (pro_sched, 0), (noff, 0)] + [(body_sched, p) for p in range(4)]
    resolve_waits(trace)
    errs = check_trace(trace)
    for e in errs[:40]: print("ERR", e)
    print("errors:", len(errs))
    nm = sum(1 for o in body_sched if o.kind == "mfma")
    print("body instrs:", sum(1 for o in body_sched if o.kind != "phantom"), "mfma:", nm)

    if args.show:
        show(body_sched)
    s = f"""; GQA attention forward, bf16, B=16 Hq=32 Hkv=8 Sq=496 Sk=512 D=128  (generated by gen/gen.py)
; @launch grid=(256,1,1) block=(256,1,1) lds=163840
.amdgcn_target "amdgcn-amd-amdhsa--gfx950"
.text
.globl {KNAME}
.p2align 8
.type {KNAME},@function
{KNAME}:
"""
    s += prologue_text()
    s += emit(pro_dma_all)
    s += kscale_text(4)
    s += "    s_waitcnt lgkmcnt(0)\n    s_barrier\n"
    s += emit(pro_sched)
    s += emit(noff)
    s += ".p2align 6\nL_pass:\n"
    s += emit(body_sched)
    s += f"""    s_add_u32 s{sPASS}, s{sPASS}, 1
    s_cmp_lt_u32 s{sPASS}, 4
    s_cbranch_scc1 L_pass
L_end:
    s_endpgm
.section .rodata,"a"
.p2align 6
.amdhsa_kernel {KNAME}
  .amdhsa_next_free_vgpr 512
  .amdhsa_next_free_sgpr 64
  .amdhsa_accum_offset 256
  .amdhsa_group_segment_fixed_size 0
  .amdhsa_kernarg_size 48
  .amdhsa_user_sgpr_count 2
  .amdhsa_user_sgpr_kernarg_segment_ptr 1
  .amdhsa_system_sgpr_workgroup_id_x 1
.end_amdhsa_kernel
"""
    open(args.o, "w").write(s)

if __name__ == "__main__":
    main()
```

```python
import sys, os, struct, argparse
sys.path.insert(0, os.path.dirname(os.path.abspath(__file__)))
from sched import *

KNAME = "standalone__gqa_softmax__near_ridge_kernel"

def O_(dt, j): return (dt * 4 + j) * 4
def S_(kvt, j): return 128 + (kvt * 4 + j) * 4
def P_(buf, j): return 160 + buf * 16 + j * 4
def NM_(j): return 192 + 4 * j
def LS0_(j): return 208 + j
def LS1_(j): return 212 + j
TMP = 216
vK0, vK1 = 240, 241
vV = [242, 243, 244, 245]
vQO = 246
vDMA = 247
vRC = [248, 249, 250, 251]
vQL = 252
vSTW = 253
vSTR = 254
vTHR = 255
def Q_(j, s): return (j * 4 + s) * 4
def X_(n): return 64 + n * 4
def KF_(kvt, s): return 128 + (kvt * 4 + s) * 4
def VF_(dt): return 160 + dt * 4
def KR_(s): return 192 + 4 * s

sSRD_Q, sSRD_K, sSRD_V, sSRD_O = 12, 16, 20, 24
sW = 28; sPASS = 29
sQ = [30, 31, 32, 33]
sO = [34, 35, 36, 37]
sVB = 38; sVO = 39; sM0B = 40; sQB = 41
sFLAG = 42
sROW = 44
sT0, sT1 = 45, 46
sC = 47
sKB = 49; sOOB = 50; sVO2 = 51
sOP = [66, 67, 68, 69]

LDS_V = 131072
LDS_STG = 31 * 4096
Q_BYTES = 16 * 32 * 496 * 128 * 2
KV_BYTES = 16 * 8 * 512 * 128 * 2
CSCALE = (128 ** -0.5) * 1.4426950408889634
def f32bits(x): return struct.unpack("<I", struct.pack("<f", x))[0]

class Cfg:
    backlog = 3
    lds_lead = 7
    thr = 2.0 ** 20
    st_flags = ""
    q_flags = ""
    k_flags = ""
    v_flags = ""

def V(i): return f"v{i}"
def A(i): return f"a{i}"

def mfma(d, dpre, a, apre, b, bpre, c=None, rtag=None, wtag=None):
    dr = regs(dpre, d, 4)
    reads = regs(apre, a, 4) + regs(bpre, b, 4)
    if c is None:
        ctext = "0"; srcc = []
    else:
        ctext = rng(dpre, c, 4); srcc = regs(dpre, c, 4); reads += srcc
    return Op(f"v_mfma_f32_16x16x32_bf16 {rng(dpre, d, 4)}, {rng(apre, a, 4)}, {rng(bpre, b, 4)}, {ctext}", "mfma",
              reads, dr, rtag, wtag, srcc=srcc)

def valu(text, reads, writes, rtag=None, wtag=None, kind="valu"):
    return Op(text, kind, reads, writes, rtag, wtag)

def salu(text, reads=(), writes=()):
    return Op(text, "salu", reads, writes)

def ds_read(dst, n, vaddr, off, tagf, tr=False, extra_reads=(), lead=None):
    d = regs("a", dst, n)
    ins = "ds_read_b64_tr_b16" if tr else "ds_read_b128"
    return Op(f"{ins} {rng('a', dst, n)}, v{vaddr} offset:{off}", "lds", [V(vaddr)] + list(extra_reads),
              d + ["pend:" + r for r in d], None, {r: tagf for r in d}, lead=Cfg.lds_lead if lead is None else lead)

def wait(kind, loads, extra_covers=()):
    rs = []; ws = []
    for l in loads:
        for w in l.writes:
            if w.startswith("pend:"):
                rs.append(w); ws.append(w[5:])
    return Op("", kind, rs, ws, covers=list(loads) + list(extra_covers))

def k_reads(t, kvt):
    if t == 15 and kvt == 1: return []
    ops = []
    for s in range(4):
        off = t * 8192 + kvt * 4096 + s * 1024
        va = vK0
        if off >= 65536: off -= 65536; va = vK1
        ops.append(ds_read(KF_(kvt, s), 4, va, off, ("K", None, None, t, kvt, s)))
    return ops

def kreg(t, kvt, s):
    return KR_(s) if (t == 15 and kvt == 1) else KF_(kvt, s)

def v_reads(t, dt):
    slot = t % 4
    u, b = dt // 2, dt % 2
    ops = []
    for kvt in range(2):
        off = slot * 8192 + kvt * 4096 + 8 * b
        ops.append(ds_read(VF_(dt) + 2 * kvt, 2, vV[u], off, ("V", None, None, t, dt, kvt), tr=True,
                           extra_reads=[f"ps:vready{t // 2 % 2}"]))
    return ops

def qk_chain(n, kvt, j, first):
    t = n % 16; rp = n // 16
    l = []
    for s in range(4):
        q = Q_(j, s); kr = kreg(t, kvt, s)
        rt = {r: ("K", None, None, t, kvt, s) for r in regs("a", kr, 4)}
        rt.update({r: ("Q", None, rp, j, s) for r in regs("a", q, 4)})
        if s == 0:
            if first and kvt == 0: c = None
            else:
                c = NM_(j); rt.update({r: ("NM", None, rp, j) for r in regs("v", c, 4)})
        else:
            c = S_(kvt, j); rt.update({r: ("Sp", n, None, kvt, j, s - 1) for r in regs("v", c, 4)})
        wt = {r: (("Sp", n, None, kvt, j, s) if s < 3 else ("S", n, None, kvt, j, i))
              for i, r in enumerate(regs("v", S_(kvt, j), 4))}
        if s == 3 and first and kvt == 0:
            wt = {r: ("Sraw", n, None, kvt, j, i) for i, r in enumerate(regs("v", S_(kvt, j), 4))}
        l.append(mfma(S_(kvt, j), "v", kr, "a", q, "a", c, rt, wt))
    return l

def max_ops(n, j):
    rp = n // 16
    ops = []
    s = S_(0, j); t = TMP + 2 * j; u = TMP + 2 * j + 1
    raw = lambda i: {V(s + i): ("Sraw", n, None, 0, j, i)}
    rt = {}; [rt.update(raw(i)) for i in range(3)]
    ops.append(valu(f"v_max3_f32 v{t}, v{s}, v{s+1}, v{s+2}", [V(s), V(s+1), V(s+2)], [V(t)], rt))
    ops.append(valu(f"v_max_f32 v{t}, v{t}, v{s+3}", [V(t), V(s+3)], [V(t)], raw(3)))
    for sw in ("v_permlane16_swap_b32", "v_permlane32_swap_b32"):
        ops.append(valu(f"v_mov_b32 v{u}, v{t}", [V(t)], [V(u)]))
        ops.append(valu(f"{sw} v{t}, v{u}", [V(t), V(u)], [V(t), V(u)], kind="perm"))
        ops.append(valu(f"v_max_f32 v{t}, v{t}, v{u}", [V(t), V(u)], [V(t)]))
    for i in range(4):
        ops.append(valu(f"v_sub_f32 v{NM_(j)+i}, 0, v{t}", [V(t)], [V(NM_(j)+i)], None, {V(NM_(j)+i): ("NM", None, rp, j)}))
    for i in range(4):
        ops.append(valu(f"v_sub_f32 v{s+i}, v{s+i}, v{t}", [V(s+i), V(t)], [V(s+i)], raw(i), {V(s+i): ("S", n, None, 0, j, i)}))
    return ops

def sm_ops(n, kvt, j):
    ops = []
    s = S_(kvt, j); buf = n % 2
    t = n % 16
    for i in range(4):
        ops.append(valu(f"v_exp_f32 v{s+i}, v{s+i}", [V(s+i)], [V(s+i)], {V(s+i): ("S", n, None, kvt, j, i)},
                        {V(s+i): ("E", n, None, kvt, j, i)}, kind="trans"))
        et = {V(s+i): ("E", n, None, kvt, j, i)}
        if t == 0:
            if kvt == 0 and i == 0: pass
            elif kvt == 0 and i == 1:
                ops.append(valu(f"v_add_f32 v{LS0_(j)}, v{s}, v{s+1}", [V(s), V(s+1)], [V(LS0_(j))], et))
            else:
                ops.append(valu(f"v_add_f32 v{LS0_(j)}, v{LS0_(j)}, v{s+i}", [V(LS0_(j)), V(s+i)], [V(LS0_(j))], et))
        elif t == 1 and kvt == 0 and i == 0:
            ops.append(valu(f"v_add_f32 v{LS1_(j)}, v{LS0_(j)}, v{s+i}", [V(LS0_(j)), V(s+i)], [V(LS1_(j))], et))
        else:
            ops.append(valu(f"v_add_f32 v{LS1_(j)}, v{LS1_(j)}, v{s+i}", [V(LS1_(j)), V(s+i)], [V(LS1_(j))], et))
        if i % 2 == 1:
            pr = P_(buf, j) + 2 * kvt + i // 2
            rt = {V(s+i-1): ("E", n, None, kvt, j, i-1), V(s+i): ("E", n, None, kvt, j, i)}
            ops.append(valu(f"v_cvt_pk_bf16_f32 v{pr}, v{s+i-1}, v{s+i}", [V(s+i-1), V(s+i)], [V(pr)], rt,
                            {V(pr): ("P", n, None, j, 2 * kvt + i // 2)}))
    return ops

def pv_ops(n, dt):
    t = n % 16; buf = n % 2
    l = []
    for j in range(4):
        rt = {}
        for kvt in range(2):
            rt.update({r: ("V", None, None, t, dt, kvt) for r in regs("a", VF_(dt) + 2 * kvt, 2)})
        rt.update({r: ("P", n, None, j, i) for i, r in enumerate(regs("v", P_(buf, j), 4))})
        if t == 0: c = None
        else:
            c = O_(dt, j); rt.update({r: ("O", n - 1, None, dt, j) for r in regs("v", c, 4)})
        wt = {r: ("O", n, None, dt, j) for r in regs("v", O_(dt, j), 4)}
        l.append(mfma(O_(dt, j), "v", VF_(dt), "a", P_(buf, j), "v", c, rt, wt))
    return l

def q_raw_loads(rp):
    ops = []
    for j in range(4):
        for s in range(4):
            d = X_(j * 4 + s)
            dr = regs("a", d, 4)
            ops.append(Op(f"buffer_load_dwordx4 {rng('a', d, 4)}, v{vQL}, s[{sSRD_Q}:{sSRD_Q+3}], s{sQ[j]} offen offset:{64*s}{Cfg.q_flags}",
                          "vld", [V(vQL), f"s{sQ[j]}"], dr + ["pend:" + r for r in dr], None,
                          {r: ("Qraw", None, rp, j, s) for r in dr}))
    return ops

def q_stage(rp, j, s):
    x = X_(j * 4 + s); xr = regs("a", x, 4)
    w = Op(f"ds_write_b128 v{vSTW}, {rng('a', x, 4)}", "ldsw", [V(vSTW)] + xr, ["ps:stage"],
           {r: ("Qraw", None, rp, j, s) for r in xr})
    r = ds_read(Q_(j, s), 4, vSTR, 0, ("Q", None, rp, j, s), extra_reads=["ps:stage"])
    return [w, r]

def dma_ops(t):
    slot = t % 4
    so = sVO if t % 2 == 0 else sVO2
    ops = [salu(f"s_add_u32 m0, s{sM0B}, {slot * 8192}", [f"s{sM0B}"], ["m0"]),
           salu(f"s_add_u32 s{so}, s{sVB}, {t * 8192}", [f"s{sVB}"], [f"s{so}"])]
    for h in range(2):
        ops.append(Op(f"buffer_load_dwordx4 v{vDMA}, s[{sSRD_V}:{sSRD_V+3}], s{so} offen offset:{1024*h}{Cfg.v_flags} lds", "dma",
                      [V(vDMA), f"s{so}", "m0", f"ps:vfree{t // 2 % 2}"], [f"ps:vdst{t%4}_{h}"]))
    return ops

def epilogue_ops(n, park):
    ops = []
    for j in range(4):
        t = TMP + 8 + 2 * j; u = TMP + 8 + 2 * j + 1
        ops.append(valu(f"v_mov_b32 v{t}, v{LS1_(j)}", [V(LS1_(j))], [V(t)]))
        for sw in ("v_permlane16_swap_b32", "v_permlane32_swap_b32"):
            ops.append(valu(f"v_mov_b32 v{u}, v{t}", [V(t)], [V(u)]))
            ops.append(valu(f"{sw} v{t}, v{u}", [V(t), V(u)], [V(t), V(u)], kind="perm"))
            ops.append(valu(f"v_add_f32 v{t}, v{t}, v{u}", [V(t), V(u)], [V(t)]))
        ops.append(valu(f"v_rcp_f32 v{vRC[j]}, v{t}", [V(t)], [V(vRC[j])], kind="trans"))
        ops.append(valu(f"v_cmp_nle_f32 vcc, v{t}, v{vTHR}", [V(t), V(vTHR)], ["vcc"]))
        ops.append(salu(f"s_or_b64 s[{sFLAG}:{sFLAG+1}], s[{sFLAG}:{sFLAG+1}], vcc", ["vcc", f"s{sFLAG}"], [f"s{sFLAG}"]))
    cnt = 0
    for u in range(4):
        for j in range(4):
            tb = TMP + 16 + 4 * (cnt % 2); cnt += 1
            for b in range(2):
                o = O_(2 * u + b, j)
                for i in range(4):
                    ops.append(valu(f"v_mul_f32 v{o+i}, v{o+i}, v{vRC[j]}", [V(o+i), V(vRC[j])], [V(o+i)],
                                    {V(o+i): ("O", n, None, 2 * u + b, j)}))
                for h in range(2):
                    ops.append(valu(f"v_cvt_pk_bf16_f32 v{tb+2*b+h}, v{o+2*h}, v{o+2*h+1}", [V(o+2*h), V(o+2*h+1)], [V(tb+2*b+h)]))
            if park:
                x = X_(u * 4 + j)
                for i in range(4):
                    ops.append(valu(f"v_accvgpr_write_b32 a{x+i}, v{tb+i}", [V(tb+i)], [A(x+i)], None, {A(x+i): ("OX", n, None, u, j)}))
            else:
                ops.append(Op(f"buffer_store_dwordx4 {rng('v', tb, 4)}, v{vQO}, s[{sSRD_O}:{sSRD_O+3}], s{sO[j]} offen offset:{64*u}{Cfg.st_flags}",
                              "vst", regs("v", tb, 4) + [V(vQO), f"s{sO[j]}"], []))
    return ops

def parked_stores(n):
    ops = []
    for u in range(4):
        for j in range(4):
            x = X_(u * 4 + j); xr = regs("a", x, 4)
            ops.append(Op(f"buffer_store_dwordx4 {rng('a', x, 4)}, v{vQO}, s[{sSRD_O}:{sSRD_O+3}], s{sOP[j]} offen offset:{64*u}{Cfg.st_flags}",
                          "vst", xr + [V(vQO), f"s{sOP[j]}"], [], {r: ("OX", n, None, u, j) for r in xr}))
    return ops

def next_offsets_ops():
    ops = []
    for j in range(4):
        ops.append(salu(f"s_mov_b32 s{sOP[j]}, s{sO[j]}", [f"s{sO[j]}"], [f"s{sOP[j]}"]))
        ops.append(salu(f"s_mov_b32 s{sO[j]}, s{sQ[j]}", [f"s{sQ[j]}"], [f"s{sO[j]}"]))
    ops.append(salu(f"s_add_u32 s{sROW}, s{sROW}, 256", [f"s{sROW}"], [f"s{sROW}", "scc"]))
    for j in range(4):
        o = Op(f"s_add_u32 s{sT0}, s{sROW}, {16*j}\n    s_lshl_b32 s{sT1}, s{sT0}, 8\n    s_add_u32 s{sT1}, s{sT1}, s{sQB}\n"
               f"    s_cmp_lt_u32 s{sT0}, 992\n    s_cselect_b32 s{sQ[j]}, s{sT1}, s{sOOB}", "salu",
               [f"s{sROW}", f"s{sQB}"], [f"s{sQ[j]}", f"s{sT0}", f"s{sT1}", "scc"])
        ops.append(o)
    return ops

def qk_seq(n, first):
    ops = []
    if first:
        for j in range(4): ops += qk_chain(n, 0, j, True)
        for j in range(4): ops += max_ops(n, j)
        for j in range(4): ops += qk_chain(n, 1, j, True)
    else:
        for j in range(4):
            for kvt in range(2): ops += qk_chain(n, kvt, j, False)
    return ops

def build_body(pro_dma, cfg):
    ops = []
    dmas = {}
    G = lambda i, k: 64 * i + k
    ps = parked_stores(-1)
    for x, o in enumerate(ps):
        o.minGap = 2 + 14 * x
        o.cap = o.minGap + 6
    ops += ps
    qraw = None
    for i in range(16):
        n = i + 1
        first = (n == 16)
        if first:
            wq = wait("waitv", qraw); ops.append(wq)
            rds = []
            for j in range(4):
                for s in range(4):
                    st = q_stage(1, j, s); ops += st; rds.append(st[1])
                ops.append(wait("waitl", rds[-4:]))
        ops += qk_seq(n, first)
        kr = k_reads((n + 1) % 16, 0) + k_reads((n + 1) % 16, 1)
        ops += kr
        if i % 2 == 0:
            cov = []
            for t in (i, i + 1):
                if t in dmas: cov += dmas[t]
            wv = Op("", "waitv", [], [f"ps:vw{i}"], covers=cov)
            wv.name = f"vw{i}"
            if i > 0:
                for c in cov: wv.deps.append((c, 0, 0))
            wv.cap = G(i, 10)
            ops.append(wv)
            bar = Op("s_barrier", "bar", [f"ps:vw{i}", "ps:vused"], [f"ps:vready{i // 2 % 2}", f"ps:vfree{(i // 2 + 1) % 2}"])
            bar.cap = G(i, 11); bar.minGap = G(i, 9)
            ops.append(bar)
            x = 0
            for t in (i + 2, i + 3):
                d = dma_ops(t % 16)
                for o in d:
                    o.cap = G(i, 13 + 2 * x); x += 1
                ops += d
                dmas[t] = [o for o in d if o.kind == "dma"]
            if i == 14: late = dmas[16] + dmas[17]
        for j in range(4):
            for kvt in range(2):
                ops += sm_ops(n, kvt, j)
        for dt in range(8):
            vr = v_reads(i, dt)
            ops += vr
            w = wait("waitl", vr)
            if dt == 7: w.writes.append("ps:vused")
            ops.append(w)
            ops += pv_ops(i, dt)
        if kr:
            ops.append(wait("waitl", kr[:4]))
            if len(kr) > 4: ops.append(wait("waitl", kr[4:]))
        if i == 4:
            qraw = q_raw_loads(1)
            for x, o in enumerate(qraw):
                o.minGap = G(5, 0) + 24 * x
                o.cap = o.minGap + 8
            ops += qraw
    ops += epilogue_ops(15, park=True)
    ops += next_offsets_ops()
    for o in ops:
        if o.kind == "waitv" and o.name == "vw0":
            o.covers = list(pro_dma) + late
    return ops

def build_pro_iter():
    ops = []
    kr = k_reads(0, 0) + k_reads(0, 1); ops += kr
    ops.append(wait("waitl", kr))
    ops += qk_seq(0, True)
    kr0 = k_reads(1, 0) + k_reads(1, 1); ops += kr0
    for j in range(4):
        for kvt in range(2):
            ops += sm_ops(0, kvt, j)
    ops.append(wait("waitl", kr0))
    return ops

ABL = set()
def emit(ops):
    lines = []
    for o in ops:
        t = optext(o)
        if t is None: continue
        if o.kind in ABL: continue
        lines.append("    " + t)
    return "\n".join(lines) + "\n"

T0, T1, T2, T3 = TMP + 8, TMP + 9, TMP + 10, TMP + 11
def fswz(dst, src, tmp):
    return f"    v_lshlrev_b32 v{tmp}, 1, v{src}\n    v_lshrrev_b32 v{dst}, v{tmp}, v{vTHR}\n    v_and_b32 v{dst}, 3, v{dst}\n"

def prologue_text():
    c = f32bits(CSCALE)
    s = f"""
    s_cmp_ge_u32 s2, 256
    s_cbranch_scc1 L_end
    s_load_dwordx4 s[4:7], s[0:1], 0
    s_load_dwordx4 s[8:11], s[0:1], 16
    v_and_b32 v{T0}, 63, v0                     ; lane
    v_lshrrev_b32 v{T1}, 6, v0                  ; wave
    v_mov_b32 v{vTHR}, 0x78                     ; lookup for f = (0,2,3,1)
    v_readfirstlane_b32 s{sW}, v{T1}
    ; i = lane%16, g = lane/16
    v_and_b32 v{T1}, 15, v{T0}
    v_lshrrev_b32 v{T2}, 4, v{T0}
    v_lshlrev_b32 v{vQO}, 8, v{T1}
    v_lshl_add_u32 v{vQO}, v{T2}, 4, v{vQO}     ; vQO = i*256 + g*16
    ; vK0 = (4i + (g ^ f(i>>2)))*16
    v_lshrrev_b32 v{T3}, 2, v{T1}
""" + fswz(T3, T3, TMP) + f"""
    v_xor_b32 v{T3}, v{T3}, v{T2}
    v_lshl_add_u32 v{T3}, v{T1}, 2, v{T3}
    v_lshlrev_b32 v{vK0}, 4, v{T3}
    v_add_u32 v{vK1}, 0x10000, v{vK0}
    ; vDMA = g*256 + ((i) ^ (g<<2))*16
    v_lshlrev_b32 v{T3}, 2, v{T2}
    v_xor_b32 v{T3}, v{T3}, v{T1}
    v_lshlrev_b32 v{T3}, 4, v{T3}
    v_lshl_add_u32 v{vDMA}, v{T2}, 8, v{T3}
    ; vQL: i' = lane>>2, x = lane&3 : i'*256 + ((x ^ f(i'>>2))<<4)
    v_lshrrev_b32 v{T1}, 4, v{T0}               ; i'>>2 = lane>>4
""" + fswz(T1, T1, TMP) + f"""
    v_and_b32 v{T3}, 3, v{T0}
    v_xor_b32 v{T1}, v{T1}, v{T3}
    v_lshlrev_b32 v{T1}, 4, v{T1}
    v_lshrrev_b32 v{T3}, 2, v{T0}
    v_lshl_add_u32 v{vQL}, v{T3}, 8, v{T1}
    ; V tr-read addresses: g=lane>>4, r=(lane>>2)&3, c=lane&3 : LDS_V + (4g+r)*256 + ((u^r)<<6) + 16c
    v_bfe_u32 v{T1}, v{T0}, 2, 2                ; r
    v_and_b32 v{T3}, 3, v{T0}                   ; c
    v_lshl_add_u32 v{T2}, v{T2}, 2, v{T1}       ; 4g+r
    v_lshlrev_b32 v{T2}, 8, v{T2}
    v_lshl_add_u32 v{T2}, v{T3}, 4, v{T2}
    v_add_u32 v{T2}, {LDS_V}, v{T2}
"""
    for u in range(4):
        s += f"    v_xor_b32 v{T3}, {u}, v{T1}\n    v_lshl_add_u32 v{vV[u]}, v{T3}, 6, v{T2}\n"
    s += f"""
    v_lshlrev_b32 v{T0}, 4, v{T0}               ; lane*16
    ; workgroup -> (group, half)
    s_and_b32 s{sT0}, s2, 7
    s_lshr_b32 s{sT1}, s2, 3
    s_lshl_b32 s{sT0}, s{sT0}, 4
    s_lshr_b32 s52, s{sT1}, 1
    s_add_u32 s{sT0}, s{sT0}, s52              ; group
    s_and_b32 s{sT1}, s{sT1}, 1                ; half
    s_lshl_b32 s{sKB}, s{sT0}, 17              ; group * 131072
    s_mul_i32 s{sQB}, s{sT0}, {1984 * 256}
    s_mul_i32 s{sT1}, s{sT1}, {992 * 256}
    s_add_u32 s{sQB}, s{sQB}, s{sT1}
    s_lshl_b32 s{sT0}, s{sW}, 11               ; w*2048
    s_add_u32 s{sVB}, s{sKB}, s{sT0}
    s_add_u32 s{sM0B}, s{sT0}, {LDS_V}
    s_mov_b32 s{sC}, {c:#x}
    s_mov_b32 s{sOOB}, 0x80000000
    s_mov_b64 s[{sFLAG}:{sFLAG+1}], 0
    s_mov_b32 s{sPASS}, 0
    s_lshl_b32 s{sROW}, s{sW}, 6
    s_lshl_b32 s{sT0}, s{sW}, 10
    s_add_u32 s{sT0}, s{sT0}, {LDS_STG}
    v_add_u32 v{vSTW}, s{sT0}, v{T0}
    v_add_u32 v{vSTR}, s{sT0}, v{vK0}
"""
    for j in range(4):
        s += f"    s_add_u32 s{sT0}, s{sROW}, {16*j}\n    s_lshl_b32 s{sT0}, s{sT0}, 8\n    s_add_u32 s{sQ[j]}, s{sT0}, s{sQB}\n    s_mov_b32 s{sO[j]}, s{sOOB}\n"
    s += f"""
    s_lshr_b32 s{sT0}, s{sW}, 1
    s_lshl_b32 s{sT0}, s{sT0}, 12
    s_and_b32 s{sT1}, s{sW}, 1
    s_lshl_b32 s52, s{sT1}, 7
    s_add_u32 s53, s{sKB}, s{sT0}
    s_add_u32 s53, s53, s52                    ; s53 = K soffset
    s_lshl_b32 s{sT1}, s{sT1}, 11
    s_add_u32 s{sT0}, s{sT0}, s{sT1}
    v_add_u32 v{T0}, s{sT0}, v{T0}
    v_add_u32 v{T1}, 0x10000, v{T0}
    v_mov_b32 v{vTHR}, {f32bits(Cfg.thr):#x}
    s_waitcnt lgkmcnt(0)
"""
    for (srd, lo, size) in ((sSRD_Q, 4, Q_BYTES), (sSRD_K, 6, KV_BYTES), (sSRD_V, 8, KV_BYTES), (sSRD_O, 10, Q_BYTES)):
        s += f"    s_mov_b32 s{srd}, s{lo}\n    s_and_b32 s{srd+1}, s{lo+1}, 0xffff\n    s_mov_b32 s{srd+2}, {size}\n    s_mov_b32 s{srd+3}, 0x00020000\n"
    def kload(n):
        t, h = n // 2, n % 2
        r = ""
        if h == 0 and t > 0: r += f"    s_add_u32 s53, s53, 8192\n"
        r += f"    buffer_load_dwordx4 v[{4*n}:{4*n+3}], v{vQL}, s[{sSRD_K}:{sSRD_K+3}], s53 offen offset:{64*h}{Cfg.k_flags}\n"
        return r
    for n in range(4): s += kload(n)
    for j in range(4):
        for ss in range(4):
            x = X_(j * 4 + ss)
            s += f"    buffer_load_dwordx4 a[{x}:{x+3}], v{vQL}, s[{sSRD_Q}:{sSRD_Q+3}], s{sQ[j]} offen offset:{64*ss}{Cfg.q_flags}\n"
    for n in range(4, 32): s += kload(n)
    return s

def kscale_text(ndma):
    s = ""
    for n in range(32):
        t, h = n // 2, n % 2
        after = (31 - n) + ndma + (16 if n < 4 else 0)
        s += f"    s_waitcnt vmcnt({min(after, 63)})\n"
        for i in range(4):
            r = 4 * n + i
            a, b = TMP + 2 * i, TMP + 2 * i + 1
            s += f"    v_lshlrev_b32 v{a}, 16, v{r}\n    v_and_b32 v{b}, 0xffff0000, v{r}\n"
        for i in range(4):
            a, b = TMP + 2 * i, TMP + 2 * i + 1
            s += f"    v_mul_f32 v{a}, s{sC}, v{a}\n    v_mul_f32 v{b}, s{sC}, v{b}\n"
        for i in range(4):
            r = 4 * n + i
            a, b = TMP + 2 * i, TMP + 2 * i + 1
            s += f"    v_cvt_pk_bf16_f32 v{r}, v{a}, v{b}\n"
        off = t * 8192 + h * 1024
        va = T0
        if off >= 65536: off -= 65536; va = T1
        s += f"    ds_write_b128 v{va}, v[{4*n}:{4*n+3}] offset:{off}\n"
    s += "    s_waitcnt lgkmcnt(0)\n    s_barrier\n"
    for ss in range(4):
        s += f"    ds_read_b128 a[{KR_(ss)}:{KR_(ss)+3}], v{vK1} offset:{LDS_STG + ss * 1024 - 65536}\n"
    s += "    s_waitcnt lgkmcnt(0)\n    s_barrier\n"
    for j in range(4):
        for ss in range(4):
            x = X_(j * 4 + ss); q = Q_(j, ss)
            s += f"    ds_write_b128 v{vSTW}, a[{x}:{x+3}]\n    ds_read_b128 a[{q}:{q+3}], v{vSTR}\n"
    s += "    s_waitcnt lgkmcnt(0)\n"
    return s

LET = dict(valu="a", trans="E", perm="p", lds="L", vld="G", vst="Z", dma="D", salu="s", waitl="w", waitv="W", bar="B", nop="n", ldsw="l")
def show(ops):
    gaps = []; cur = None
    for o in ops:
        if o.kind == "mfma":
            cur = []; gaps.append(cur)
        elif o.kind != "phantom" and cur is not None:
            cur.append(LET[o.kind])
    tot = 0
    for i in range(0, len(gaps), 64):
        row = gaps[i:i + 64]
        c = 0
        for g in row:
            v = sum(8 if x == "E" else 4 for x in g if x in "aEp")
            nm = [x for x in g if x not in "aEp"]
            mem = [x for x in nm if x in "LGZDl"]
            cost = 4 + max(4, 4 * len(nm) + (4 if mem else 0) - (4 if (mem and v == 0) else 0)) + v
            c += max(16.5, cost)
        tot += c
        print(f"it{i//64:2d} est {c:6.0f}: " + " ".join("".join(g) if g else "-" for g in row))
    print("est total", tot)

def stamp_setup():
    return f"""    s_load_dwordx2 s[54:55], s[0:1], 40
    s_waitcnt lgkmcnt(0)
    s_mov_b32 s56, s54
    s_and_b32 s57, s55, 0xffff
    s_mov_b32 s58, 0x10000000
    s_mov_b32 s59, 0x00020000
    s_lshl_b32 s60, s2, 2
    s_add_u32 s60, s60, s{sW}
    s_lshl_b32 s60, s60, 6
"""
def stamp(i, dyn=False):
    t = f"""    s_memrealtime s[62:63]
    s_memtime s[64:65]
    s_waitcnt lgkmcnt(0)
    v_mov_b32 v{TMP+22}, s62
    v_mov_b32 v{TMP+23}, s64
"""
    if dyn:
        t += f"    s_lshl_b32 s61, s{sPASS}, 2\n    s_add_u32 s61, s61, s60\n"
        t += f"    buffer_store_dword v{TMP+22}, off, s[56:59], s61 offset:{4*i}\n    buffer_store_dword v{TMP+23}, off, s[56:59], s61 offset:{4*i+32}\n"
    else:
        t += f"    buffer_store_dword v{TMP+22}, off, s[56:59], s60 offset:{4*i}\n    buffer_store_dword v{TMP+23}, off, s[56:59], s60 offset:{4*i+32}\n"
    return t

def main():
    ap = argparse.ArgumentParser()
    ap.add_argument("-o", default="standalone__gqa_softmax__near_ridge.s")
    ap.add_argument("--backlog", type=int, default=3)
    ap.add_argument("--lead", type=int, default=7)
    ap.add_argument("--show", action="store_true")
    ap.add_argument("--stamp", action="store_true")
    ap.add_argument("--stflags", default="")
    ap.add_argument("--qflags", default="")
    ap.add_argument("--kflags", default="")
    ap.add_argument("--vflags", default="")
    ap.add_argument("--abl", default="")
    args = ap.parse_args()
    for x in args.abl.split(","):
        if x: ABL.add(x)
    Cfg.backlog = args.backlog; Cfg.lds_lead = args.lead
    Cfg.st_flags = (" " + args.stflags) if args.stflags else ""
    Cfg.q_flags = (" " + args.qflags) if args.qflags else ""
    Cfg.k_flags = (" " + args.kflags) if args.kflags else ""
    Cfg.v_flags = (" " + args.vflags) if args.vflags else ""

    pro_dma_all = dma_ops(0) + dma_ops(1)
    pro_dma = [o for o in pro_dma_all if o.kind == "dma"]
    pro_iter = build_pro_iter()
    def pol(k, remaining, ready, emit_, state):
        state["backlog"] = Cfg.backlog
        default_policy(k, remaining, ready, emit_, state)
    pro_sched = schedule(pro_iter, pol, verbose=True)
    body = build_body(pro_dma, Cfg)
    body_sched = schedule(body, pol, verbose=True)
    noff = next_offsets_ops()
    tail = parked_stores(15)
    setq = Op("; q loaded", "valu", [], sum([regs("a", Q_(j, s), 4) for j in range(4) for s in range(4)], []) + regs("a", KR_(0), 16), None,
              dict([(r, ("Q", None, 0, j, s)) for j in range(4) for s in range(4) for r in regs("a", Q_(j, s), 4)] +
                   [(r, ("K", None, None, 15, 1, s)) for s in range(4) for r in regs("a", KR_(s), 4)]))
    setx = Op("; x", "valu", [], regs("a", X_(0), 64), None, {r: ("OX", -1, None, u, j) for u in range(4) for j in range(4) for r in regs("a", X_(u * 4 + j), 4)})
    trace = [(pro_dma_all, 0), ([setq], 0), (pro_sched, 0), ([setx], 0), (noff, 0)] + [(body_sched, p) for p in range(4)] + [(tail, 3)]
    resolve_waits(trace)
    errs = check_trace(trace)
    for e in errs[:40]: print("ERR", e)
    print("errors:", len(errs))
    nm = sum(1 for o in body_sched if o.kind == "mfma")
    print("body instrs:", sum(1 for o in body_sched if o.kind != "phantom"), "mfma:", nm)
    if args.show: show(body_sched)

    s = f"""; GQA attention forward, bf16, B=16 Hq=32 Hkv=8 Sq=496 Sk=512 D=128  (generated by gen/gen.py)
; @launch grid=(256,1,1) block=(256,1,1) lds=163840
.amdgcn_target "amdgcn-amd-amdhsa--gfx950"
.text
.globl {KNAME}
.p2align 8
.type {KNAME},@function
{KNAME}:
"""
    pt = prologue_text()
    if args.stamp:
        a, b = pt.split("    ; workgroup -> (group, half)")
        pt = a + stamp_setup() + stamp(0) + "    ; workgroup -> (group, half)" + b
    s += pt
    s += emit(pro_dma_all)
    s += kscale_text(4)
    if args.stamp: s += stamp(1)
    s += emit(pro_sched)
    s += emit(noff)
    if args.stamp: s += stamp(2)
    s += ".p2align 6\nL_pass:\n"
    s += emit(body_sched)
    if args.stamp: s += stamp(3, dyn=True)
    s += f"""    s_add_u32 s{sPASS}, s{sPASS}, 1
    s_cmp_lt_u32 s{sPASS}, 4
    s_cbranch_scc1 L_pass
"""
    s += emit(tail)
    if args.stamp: s += "    s_waitcnt vmcnt(0)\n" + stamp(7)
    s += f"""L_end:
    s_endpgm
.section .rodata,"a"
.p2align 6
.amdhsa_kernel {KNAME}
  .amdhsa_next_free_vgpr 512
  .amdhsa_next_free_sgpr 72
  .amdhsa_accum_offset 256
  .amdhsa_group_segment_fixed_size 0
  .amdhsa_kernarg_size 48
  .amdhsa_user_sgpr_count 2
  .amdhsa_user_sgpr_kernarg_segment_ptr 1
  .amdhsa_system_sgpr_workgroup_id_x 1
.end_amdhsa_kernel
"""
    open(args.o, "w").write(s)

if __name__ == "__main__":
    main()
```

```python
import sys, os, struct, argparse
sys.path.insert(0, os.path.dirname(os.path.abspath(__file__)))
from sched import *

KNAME = "standalone__gqa_softmax__near_ridge_kernel"

def O_(dt, j): return (dt * 4 + j) * 4
def S_(kvt, j): return 128 + (kvt * 4 + j) * 4
def P_(buf, j): return 160 + buf * 16 + j * 4
def NM_(j): return 192 + 4 * j
def LS0_(j): return 208 + j
def LS1_(j): return 212 + j
TMP = 216
vK0, vK1 = 240, 241
vV = [242, 243, 244, 245]
vQO = 246
vDMA = 247
vRC = [248, 249, 250, 251]
def vRCP(j): return 248 + j
vQL = 252
vSTW = 253
vSTR = 254
vTHR = 255
def Q_(j, s): return (j * 4 + s) * 4
def X_(n): return 64 + n * 4
def KF_(kvt, s, par=0): return 128 + par * 32 + (kvt * 4 + s) * 4
def VF_(dt): return 192 + dt * 4
def KR_(s): return 224 + 4 * s

sSRD_Q, sSRD_K, sSRD_V, sSRD_O = 12, 16, 20, 24
sW = 28; sPASS = 29
sQ = [30, 31, 32, 33]
sO = [34, 35, 36, 37]
sVB = 38; sVO = 39; sM0B = 40; sQB = 41
sFLAG = 42
sROW = 44
sT0, sT1 = 45, 46
sC = 47
sKB = 49; sOOB = 50; sVO2 = 51
sOP = [66, 67, 68, 69]
sVBH = 70
sKL, sKH = 71, 72
sKM = 73
sKO = 74
sVT, sVTH = 75, 76
vKW = [248, 249]
vTCH = 250

LDS_V = 131072
LDS_STG = 31 * 4096
Q_BYTES = 16 * 32 * 496 * 128 * 2
KV_BYTES = 16 * 8 * 512 * 128 * 2
CSCALE = (128 ** -0.5) * 1.4426950408889634
def f32bits(x): return struct.unpack("<I", struct.pack("<f", x))[0]

class Cfg:
    backlog = 3
    lds_lead = 7
    thr = 2.0 ** 20
    pkmul = True
    rot = 0
    k_first = 4
    early0 = 2
    qcopy_span = 100
    kb_novalu = False
    t_flags = ''
    early_list = [("t", 2), ("k", 4), ("k", 5), ("t", 4), ("k", 6), ("k", 7), ("t", 6)]
    pf = 6
    code_bytes = 60000
    st_space = 14
    q_start = 5
    q_space = 24
    bar_gap = 11
    st_flags = ""
    q_flags = ""
    k_flags = ""
    v_flags = ""

def V(i): return f"v{i}"
def A(i): return f"a{i}"

def mfma(d, dpre, a, apre, b, bpre, c=None, rtag=None, wtag=None):
    dr = regs(dpre, d, 4)
    reads = regs(apre, a, 4) + regs(bpre, b, 4)
    if c is None:
        ctext = "0"; srcc = []
    else:
        ctext = rng(dpre, c, 4); srcc = regs(dpre, c, 4); reads += srcc
    return Op(f"v_mfma_f32_16x16x32_bf16 {rng(dpre, d, 4)}, {rng(apre, a, 4)}, {rng(bpre, b, 4)}, {ctext}", "mfma",
              reads, dr, rtag, wtag, srcc=srcc)

def valu(text, reads, writes, rtag=None, wtag=None, kind="valu"):
    return Op(text, kind, reads, writes, rtag, wtag)

def salu(text, reads=(), writes=()):
    return Op(text, "salu", reads, writes)

def ds_read(dst, n, vaddr, off, tagf, tr=False, extra_reads=(), lead=None):
    d = regs("a", dst, n)
    ins = "ds_read_b64_tr_b16" if tr else "ds_read_b128"
    return Op(f"{ins} {rng('a', dst, n)}, v{vaddr} offset:{off}", "lds", [V(vaddr)] + list(extra_reads),
              d + ["pend:" + r for r in d], None, {r: tagf for r in d}, lead=Cfg.lds_lead if lead is None else lead)

def wait(kind, loads, extra_covers=()):
    rs = []; ws = []
    for l in loads:
        for w in l.writes:
            if w.startswith("pend:"):
                rs.append(w); ws.append(w[5:])
    return Op("", kind, rs, ws, covers=list(loads) + list(extra_covers))

def k_reads(t, kvt):
    ops = []
    for s in range(4):
        off = t * 8192 + kvt * 4096 + s * 1024
        va = vK0
        if off >= 65536: off -= 65536; va = vK1
        ops.append(ds_read(KF_(kvt, s, t % 2), 4, va, off, ("K", None, None, t, kvt, s)))
    return ops

def kreg(t, kvt, s):
    return KF_(kvt, s, t % 2)

def v_reads(t, dt):
    slot = t % 4
    u, b = dt // 2, dt % 2
    ops = []
    for kvt in range(2):
        off = slot * 8192 + kvt * 4096 + 8 * b
        ops.append(ds_read(VF_(dt) + 2 * kvt, 2, vV[u], off, ("V", None, None, t, dt, kvt), tr=True,
                           extra_reads=[f"ps:vready{t // 2 % 2}"]))
    return ops

def qk_chain(n, kvt, j, first):
    t = n % 16; rp = n // 16
    l = []
    for s in range(4):
        q = X_(j * 4 + s) if n == 16 else Q_(j, s); kr = kreg(t, kvt, s)
        rt = {r: ("K", None, None, t, kvt, s) for r in regs("a", kr, 4)}
        rt.update({r: ("Q", None, rp, j, s) for r in regs("a", q, 4)})
        if s == 0:
            if first and kvt == 0: c = None
            else:
                c = NM_(j); rt.update({r: ("NM", None, rp, j) for r in regs("v", c, 4)})
        else:
            c = S_(kvt, j); rt.update({r: ("Sp", n, None, kvt, j, s - 1) for r in regs("v", c, 4)})
        wt = {r: (("Sp", n, None, kvt, j, s) if s < 3 else ("S", n, None, kvt, j, i))
              for i, r in enumerate(regs("v", S_(kvt, j), 4))}
        if s == 3 and first and kvt == 0:
            wt = {r: ("Sraw", n, None, kvt, j, i) for i, r in enumerate(regs("v", S_(kvt, j), 4))}
        l.append(mfma(S_(kvt, j), "v", kr, "a", q, "a", c, rt, wt))
    return l

def max_ops(n, j):
    rp = n // 16
    ops = []
    s = S_(0, j); t = TMP + 2 * j; u = TMP + 2 * j + 1
    raw = lambda i: {V(s + i): ("Sraw", n, None, 0, j, i)}
    rt = {}; [rt.update(raw(i)) for i in range(3)]
    ops.append(valu(f"v_max3_f32 v{t}, v{s}, v{s+1}, v{s+2}", [V(s), V(s+1), V(s+2)], [V(t)], rt))
    ops.append(valu(f"v_max_f32 v{t}, v{t}, v{s+3}", [V(t), V(s+3)], [V(t)], raw(3)))
    for sw in ("v_permlane16_swap_b32", "v_permlane32_swap_b32"):
        ops.append(valu(f"v_mov_b32 v{u}, v{t}", [V(t)], [V(u)]))
        ops.append(valu(f"{sw} v{t}, v{u}", [V(t), V(u)], [V(t), V(u)], kind="perm"))
        ops.append(valu(f"v_max_f32 v{t}, v{t}, v{u}", [V(t), V(u)], [V(t)]))
    for i in range(4):
        ops.append(valu(f"v_sub_f32 v{NM_(j)+i}, 0, v{t}", [V(t)], [V(NM_(j)+i)], None, {V(NM_(j)+i): ("NM", None, rp, j)}))
    for i in range(4):
        ops.append(valu(f"v_sub_f32 v{s+i}, v{s+i}, v{t}", [V(s+i), V(t)], [V(s+i)], raw(i), {V(s+i): ("S", n, None, 0, j, i)}))
    return ops

def sm_ops(n, kvt, j):
    ops = []
    s = S_(kvt, j); buf = n % 2
    t = n % 16
    for i in range(4):
        ops.append(valu(f"v_exp_f32 v{s+i}, v{s+i}", [V(s+i)], [V(s+i)], {V(s+i): ("S", n, None, kvt, j, i)},
                        {V(s+i): ("E", n, None, kvt, j, i)}, kind="trans"))
        et = {V(s+i): ("E", n, None, kvt, j, i)}
        if t == 0:
            if kvt == 0 and i == 0: pass
            elif kvt == 0 and i == 1:
                ops.append(valu(f"v_add_f32 v{LS0_(j)}, v{s}, v{s+1}", [V(s), V(s+1)], [V(LS0_(j))], et))
            else:
                ops.append(valu(f"v_add_f32 v{LS0_(j)}, v{LS0_(j)}, v{s+i}", [V(LS0_(j)), V(s+i)], [V(LS0_(j))], et))
        elif t == 1 and kvt == 0 and i == 0:
            ops.append(valu(f"v_add_f32 v{LS1_(j)}, v{LS0_(j)}, v{s+i}", [V(LS0_(j)), V(s+i)], [V(LS1_(j))], et))
        else:
            ops.append(valu(f"v_add_f32 v{LS1_(j)}, v{LS1_(j)}, v{s+i}", [V(LS1_(j)), V(s+i)], [V(LS1_(j))], et))
        if i % 2 == 1:
            pr = P_(buf, j) + 2 * kvt + i // 2
            rt = {V(s+i-1): ("E", n, None, kvt, j, i-1), V(s+i): ("E", n, None, kvt, j, i)}
            ops.append(valu(f"v_cvt_pk_bf16_f32 v{pr}, v{s+i-1}, v{s+i}", [V(s+i-1), V(s+i)], [V(pr)], rt,
                            {V(pr): ("P", n, None, j, 2 * kvt + i // 2)}))
    return ops

def pv_ops(n, dt):
    t = n % 16; buf = n % 2
    l = []
    for j in range(4):
        rt = {}
        for kvt in range(2):
            rt.update({r: ("V", None, None, t, dt, kvt) for r in regs("a", VF_(dt) + 2 * kvt, 2)})
        rt.update({r: ("P", n, None, j, i) for i, r in enumerate(regs("v", P_(buf, j), 4))})
        if t == 0: c = None
        else:
            c = O_(dt, j); rt.update({r: ("O", n - 1, None, dt, j) for r in regs("v", c, 4)})
        wt = {r: ("O", n, None, dt, j) for r in regs("v", O_(dt, j), 4)}
        l.append(mfma(O_(dt, j), "v", VF_(dt), "a", P_(buf, j), "v", c, rt, wt))
    return l

def q_raw_loads(rp, direct=False):
    ops = []
    for j in range(4):
        for s in range(4):
            d = Q_(j, s) if direct else X_(j * 4 + s)
            dr = regs("a", d, 4)
            ops.append(Op(f"buffer_load_dwordx4 {rng('a', d, 4)}, v{vQO}, s[{sSRD_Q}:{sSRD_Q+3}], s{sQ[j]} offen offset:{64*s}{Cfg.q_flags}",
                          "vld", [V(vQO), f"s{sQ[j]}"], dr + ["pend:" + r for r in dr], None,
                          {r: ("Q", None, rp, j, s) for r in dr}))
    return ops

def q_copy(rp, j, s):
    ops = []
    for i in range(4):
        x = X_(j * 4 + s) + i; q = Q_(j, s) + i
        ops.append(valu(f"v_accvgpr_mov_b32 a{q}, a{x}", [A(x)], [A(q)], {A(x): ("Q", None, rp, j, s)}, {A(q): ("Q", None, rp, j, s)}))
    return ops

def dma_ops(t):
    slot = t % 4
    so = sVO if t % 2 == 0 else sVO2
    ops = [salu(f"s_add_u32 m0, s{sM0B}, {slot * 8192}", [f"s{sM0B}"], ["m0"]),
           salu(f"s_add_u32 s{so}, s{sVB if t < 16 - Cfg.rot else sVBH}, {t * 8192}", [f"s{sVB}"], [f"s{so}"])]
    for h in range(2):
        ops.append(Op(f"buffer_load_dwordx4 v{vDMA}, s[{sSRD_V}:{sSRD_V+3}], s{so} offen offset:{1024*h}{Cfg.v_flags} lds", "dma",
                      [V(vDMA), f"s{so}", "m0", f"ps:vfree{t // 2 % 2}"], [f"ps:vdst{t%4}_{h}"]))
    return ops

def epilogue_ops(n):
    ops = []
    for j in range(4):
        t = TMP + 8 + 2 * j; u = TMP + 8 + 2 * j + 1
        ops.append(valu(f"v_mov_b32 v{t}, v{LS1_(j)}", [V(LS1_(j))], [V(t)]))
        for sw in ("v_permlane16_swap_b32", "v_permlane32_swap_b32"):
            ops.append(valu(f"v_mov_b32 v{u}, v{t}", [V(t)], [V(u)]))
            ops.append(valu(f"{sw} v{t}, v{u}", [V(t), V(u)], [V(t), V(u)], kind="perm"))
            ops.append(valu(f"v_add_f32 v{t}, v{t}, v{u}", [V(t), V(u)], [V(t)]))
        ops.append(valu(f"v_rcp_f32 v{vRC[j]}, v{t}", [V(t)], [V(vRC[j])], kind="trans"))
        ops.append(valu(f"v_cmp_nle_f32 vcc, v{t}, v{vTHR}", [V(t), V(vTHR)], ["vcc"]))
        ops.append(salu(f"s_or_b64 s[{sFLAG}:{sFLAG+1}], s[{sFLAG}:{sFLAG+1}], vcc", ["vcc", f"s{sFLAG}"], [f"s{sFLAG}"]))
    cnt = 0
    for u in range(4):
        for j in range(4):
            tb = TMP + 16 + 4 * (cnt % 2); cnt += 1
            for b in range(2):
                o = O_(2 * u + b, j)
                if Cfg.pkmul:
                    for i in (0, 2):
                        pb = 248 + (j & ~1); sel = j & 1
                        op = valu(f"v_pk_mul_f32 v[{o+i}:{o+i+1}], v[{o+i}:{o+i+1}], v[{pb}:{pb+1}] op_sel:[0,{sel}] op_sel_hi:[1,{sel}]",
                                  [V(o+i), V(o+i+1), V(vRC[j])], [V(o+i), V(o+i+1)],
                                  {V(o+i): ("O", n, None, 2 * u + b, j), V(o+i+1): ("O", n, None, 2 * u + b, j)})
                        op.reads.append("ps:nomfma")
                        ops.append(op)
                else:
                    for i in range(4):
                        ops.append(valu(f"v_mul_f32 v{o+i}, v{o+i}, v{vRC[j]}", [V(o+i), V(vRC[j])], [V(o+i)],
                                        {V(o+i): ("O", n, None, 2 * u + b, j)}))
                for h in range(2):
                    ops.append(valu(f"v_cvt_pk_bf16_f32 v{tb+2*b+h}, v{o+2*h}, v{o+2*h+1}", [V(o+2*h), V(o+2*h+1)], [V(tb+2*b+h)]))
            x = X_(u * 4 + j)
            for i in range(4):
                ops.append(valu(f"v_accvgpr_write_b32 a{x+i}, v{tb+i}", [V(tb+i)], [A(x+i)], None, {A(x+i): ("OX", n, None, u, j)}))
    return ops

def parked_stores(n):
    ops = []
    for u in range(4):
        for j in range(4):
            x = X_(u * 4 + j); xr = regs("a", x, 4)
            ops.append(Op(f"buffer_store_dwordx4 {rng('a', x, 4)}, v{vQO}, s[{sSRD_O}:{sSRD_O+3}], s{sOP[j]} offen offset:{64*u}{Cfg.st_flags}",
                          "vst", xr + [V(vQO), f"s{sOP[j]}"], [], {r: ("OX", n, None, u, j) for r in xr}))
    return ops

def k_dma_ops(t):
    ops = []
    for h in range(2):
        ops.append(salu(f"s_add_u32 m0, s{sKM}, {t * 8192 + h * 1024}", [f"s{sKM}"], ["m0"]))
        ops.append(salu(f"s_add_u32 s{sKO}, s{sKL if t < 16 - Cfg.rot else sKH}, {t * 8192 + h * 64}", [], [f"s{sKO}"]))
        ops.append(Op(f"buffer_load_dwordx4 v{vQL}, s[{sSRD_K}:{sSRD_K+3}], s{sKO} offen{Cfg.k_flags} lds", "dma",
                      [V(vQL), f"s{sKO}", "m0"], [f"pend:ps:kraw{t}_{h}"]))
    return ops

def k_build_ops(t, idx):
    ops = []
    for h in range(2):
        base = TMP + 12 * ((2 * idx + h) % 2)
        off = t * 8192 + h * 1024
        va = vKW[0]
        if off >= 65536: off -= 65536; va = vKW[1]
        d = regs("v", base, 4)
        rd = Op(f"ds_read_b128 {rng('v', base, 4)}, v{va} offset:{off}", "lds", [V(va), f"ps:kraw{t}_{h}"],
                d + ["pend:" + r for r in d], lead=Cfg.lds_lead)
        ops.append(rd); ops.append(wait("waitl", [rd]))
        for i in range(4):
            if Cfg.kb_novalu and t >= 4: break
            r = base + i; a, b = base + 4 + 2 * i, base + 5 + 2 * i
            ops.append(valu(f"v_lshlrev_b32 v{a}, 16, v{r}", [V(r)], [V(a)]))
            ops.append(valu(f"v_and_b32 v{b}, 0xffff0000, v{r}", [V(r)], [V(b)]))
            ops.append(valu(f"v_mul_f32 v{a}, s{sC}, v{a}", [V(a)], [V(a)]))
            ops.append(valu(f"v_mul_f32 v{b}, s{sC}, v{b}", [V(b)], [V(b)]))
            ops.append(valu(f"v_cvt_pk_bf16_f32 v{r}, v{a}, v{b}", [V(a), V(b)], [V(r)]))
        ops.append(Op(f"ds_write_b128 v{va}, {rng('v', base, 4)} offset:{off}", "ldsw", [V(va)] + d, [f"ps:kw{t}_{h}", f"pend:ps:kws{t}_{h}"]))
    return ops

sTL, sTH, sTO = 75, 76, 77
def touch_ops(t):
    return [salu(f"s_add_u32 s{sTO}, s{sTL if t < 16 - Cfg.rot else sTH}, {t * 8192}", [], [f"s{sTO}"]),
            Op(f"buffer_load_dword a255, v{vTCH}, s[{sSRD_V}:{sSRD_V+3}], s{sTO} offen{Cfg.t_flags}", "vld",
               [V(vTCH), f"s{sTO}"], [A(255)])]

def next_offsets_ops():
    ops = []
    for j in range(4):
        ops.append(salu(f"s_mov_b32 s{sOP[j]}, s{sO[j]}", [f"s{sO[j]}"], [f"s{sOP[j]}"]))
        ops.append(salu(f"s_mov_b32 s{sO[j]}, s{sQ[j]}", [f"s{sQ[j]}"], [f"s{sO[j]}"]))
    ops.append(salu(f"s_add_u32 s{sROW}, s{sROW}, 256", [f"s{sROW}"], [f"s{sROW}", "scc"]))
    for j in range(4):
        o = Op(f"s_add_u32 s{sT0}, s{sROW}, {16*j}\n    s_lshl_b32 s{sT1}, s{sT0}, 8\n    s_add_u32 s{sT1}, s{sT1}, s{sQB}\n"
               f"    s_cmp_lt_u32 s{sT0}, 992\n    s_cselect_b32 s{sQ[j]}, s{sT1}, s{sOOB}", "salu",
               [f"s{sROW}", f"s{sQB}"], [f"s{sQ[j]}", f"s{sT0}", f"s{sT1}", "scc"])
        ops.append(o)
    return ops

def qk_seq(n, first):
    ops = []
    if first:
        for j in range(4): ops += qk_chain(n, 0, j, True)
        for j in range(4): ops += max_ops(n, j)
        for j in range(4): ops += qk_chain(n, 1, j, True)
    else:
        for j in range(4):
            for kvt in range(2): ops += qk_chain(n, kvt, j, False)
    return ops

G = lambda i, k: 64 * i + k + GOFF[0]
GOFF = [0]

def init_issue_ops():
    ops = []; info = {"kd": {}, "vd": {}}
    def kd(t):
        d = k_dma_ops(t); ops.extend(d); info["kd"][t] = [o for o in d if o.kind == "dma"]
    for t in range(Cfg.k_first): kd(t)
    q = q_raw_loads(0, direct=True); ops.extend(q); info["q"] = q
    for t in range(Cfg.k_first, 4): kd(t)
    for t in (0, 1):
        d = dma_ops(t); ops.extend(d); info["vd"][t] = [o for o in d if o.kind == "dma"]
    return ops, info

def build_body(pass0, info):
    ops = []
    dmas = {}
    kd = {}
    GOFF[0] = 0
    if pass0:
        kd = dict(info["kd"])
        GOFF[0] = 32
        pre = list(range(Cfg.k_first))
        wr_all = []
        for t in pre:
            w = wait("waitv", kd[t]); ops.append(w)
            kb = k_build_ops(t, t); ops += kb
            wr_all += [o for o in kb if o.kind == "ldsw"]
        ops.append(wait("waitl", wr_all))
        barA = Op("s_barrier", "bar", [f"ps:kws{t}_{h}" for t in pre for h in (0, 1)], ["ps:kready0"] + (["ps:kready1"] if 1 in pre else []))
        ops.append(barA)
        kr = k_reads(0, 0) + k_reads(0, 1)
        for o in kr: o.reads.append("ps:kready0")
        ops += kr
        ops.append(wait("waitl", kr[:4])); ops.append(wait("waitl", kr[4:]))
        for j in range(4):
            ops.append(wait("waitv", info["q"][4 * j:4 * j + 4]))
        ops += qk_seq(0, True)
        x = 0
        for grp in Cfg.early_list:
            d = touch_ops(grp[1]) if grp[0] == "t" else k_dma_ops(grp[1])
            for o in d:
                o.minGap = Cfg.early0 + x; o.cap = o.minGap; x += 1
            ops += d
            if grp[0] == "k": kd[grp[1]] = [o for o in d if o.kind == "dma"]
        if 1 not in pre:
            w = wait("waitv", kd[1]); w.cap = 0; ops.append(w)
            kb = k_build_ops(1, 1)
            for x, o in enumerate(kb): o.cap = 1 + x // 3
            ops += kb
            ops.append(wait("waitl", [o for o in kb if o.kind == "ldsw"]))
            barB = Op("s_barrier", "bar", [f"ps:kws1_{h}" for h in (0, 1)], ["ps:kready1"])
            barB.cap = 20
            ops.append(barB)
        kr = k_reads(1, 0) + k_reads(1, 1)
        for o in kr: o.reads.append("ps:kready1")
        ops += kr
        for j in range(4):
            for kvt in range(2): ops += sm_ops(0, kvt, j)
        ops.append(wait("waitl", kr[:4])); ops.append(wait("waitl", kr[4:]))
        dmas[0] = info["vd"][0]; dmas[1] = info["vd"][1]
    else:
        ps = parked_stores(-1)
        for x, o in enumerate(ps):
            o.minGap = 2 + Cfg.st_space * x
            o.cap = o.minGap + 6
        ops += ps
    qraw = None
    for i in range(16):
        n = i + 1
        first = (n == 16)
        if first:
            for j in range(4):
                wq = wait("waitv", qraw[4 * j:4 * j + 4]); wq.cap = G(14, 50 + 2 * j); ops.append(wq)
        ops += qk_seq(n, first)
        if first:
            x = 0
            for j in range(4):
                for s_ in range(4):
                    for o in q_copy(1, j, s_):
                        o.cap = G(14, 56) + (x * Cfg.qcopy_span) // 64; x += 1
                        ops.append(o)
        extra_bar_reads = []
        if pass0 and i % 2 == 0 and i <= 12 and not (i == 0 and Cfg.k_first == 4):
            w = wait("waitv", kd[i + 2] + kd[i + 3]); ops.append(w)
            w.cap = G(i - 1, Cfg.bar_gap + 4) if i > 0 else 0
            w.minGap = G(i - 2, Cfg.bar_gap + 24) if i > 0 else None
            kb = k_build_ops(i + 2, 0) + k_build_ops(i + 3, 1)
            nv = [o for o in kb]
            for x, o in enumerate(nv):
                o.cap = w.cap + 2 + (x * (60 if i > 0 else 30)) // len(nv)
            ops += kb
            wr = [o for o in kb if o.kind == "ldsw"]
            ops.append(wait("waitl", wr))
            extra_bar_reads = [f"ps:kws{t}_{h}" for t in (i + 2, i + 3) for h in (0, 1)]
        if i % 2 == 0:
            cov = []
            for t in (i, i + 1):
                if t in dmas: cov += dmas[t]
            wv = Op("", "waitv", [], [f"ps:vw{i}"], covers=cov)
            wv.name = f"vw{i}"
            if i > 0:
                for c in cov: wv.deps.append((c, 0, 0))
            wv.cap = G(i, Cfg.bar_gap - 1)
            ops.append(wv)
            wr = [f"ps:vready{i // 2 % 2}", f"ps:vfree{(i // 2 + 1) % 2}", f"ps:kbar{i}"]
            bar = Op("s_barrier", "bar", [f"ps:vw{i}", "ps:vused"] + extra_bar_reads, wr)
            bar.cap = G(i, Cfg.bar_gap); bar.minGap = G(i, Cfg.bar_gap - 2)
            ops.append(bar)
            x = 0
            for t in (i + 2, i + 3):
                d = dma_ops(t % 16)
                for o in d:
                    o.cap = G(i, Cfg.bar_gap + 2 + 2 * x); x += 1
                ops += d
                dmas[t] = [o for o in d if o.kind == "dma"]
            if i == 14: late = dmas[16] + dmas[17]
            if pass0:
                if i + 8 < 16:
                    for t in (i + 8, i + 9):
                        d = k_dma_ops(t)
                        for o in d:
                            o.cap = G(i, Cfg.bar_gap + 2 + 2 * x); x += 1
                            if o.kind == "dma": o.reads.append(f"ps:kbar{i}")
                        ops += d; kd[t] = [o for o in d if o.kind == "dma"]
                if i + 8 < 16:
                    d = touch_ops(i + 8)
                    for o in d:
                        o.cap = G(i, Cfg.bar_gap + 2 + 2 * x); x += 1
                        o.reads.append(f"ps:kbar{i}")
                    ops += d
        kr = k_reads((n + 1) % 16, 0) + k_reads((n + 1) % 16, 1)
        if pass0 and n + 1 < 16:
            tb = n + 1
            bi = (tb - 2) // 2 * 2
            for o in kr: o.reads.append(f"ps:kbar{bi}")
        ops += kr
        for j in range(4):
            for kvt in range(2):
                ops += sm_ops(n, kvt, j)
        for dt in range(8):
            vr = v_reads(i, dt)
            ops += vr
            w = wait("waitl", vr)
            if dt == 7: w.writes.append("ps:vused")
            ops.append(w)
            pv = pv_ops(i, dt)
            if i == 15 and dt == 7: pv[-1].writes.append("ps:nomfma")
            ops += pv
        if kr:
            ops.append(wait("waitl", kr[:4]))
            if len(kr) > 4: ops.append(wait("waitl", kr[4:]))
        if i == 4:
            qraw = q_raw_loads(1)
            for x, o in enumerate(qraw):
                o.minGap = G(Cfg.q_start, 0) + Cfg.q_space * x
                o.cap = o.minGap + 8
            ops += qraw
    ops += epilogue_ops(15)
    ops += next_offsets_ops()
    return ops, late

ABL = set()
def emit(ops):
    lines = []
    for o in ops:
        t = optext(o)
        if t is None: continue
        if o.kind in ABL: continue
        lines.append("    " + t)
    return "\n".join(lines) + "\n"

T0, T1, T2, T3 = TMP + 8, TMP + 9, TMP + 10, TMP + 11
def fswz(dst, src, tmp):
    return f"    v_lshlrev_b32 v{tmp}, 1, v{src}\n    v_lshrrev_b32 v{dst}, v{tmp}, v{vTHR}\n    v_and_b32 v{dst}, 3, v{dst}\n"

def emit_fix(ops):
    lines = []
    for i, o in enumerate(ops):
        if o.kind == "dma" and i > 0 and "m0" in ops[i - 1].writes: lines.append("    s_nop 0")
        lines.append("    " + o.text)
    return "\n".join(lines) + "\n"

def prologue_text():
    c = f32bits(CSCALE)
    s = f"""
    s_cmp_ge_u32 s2, 256
    s_cbranch_scc1 L_end
    s_load_dwordx4 s[4:7], s[0:1], 0
    s_load_dwordx4 s[8:11], s[0:1], 16
PREFETCH
    v_and_b32 v{T0}, 63, v0                     ; lane
    v_lshrrev_b32 v{T1}, 6, v0                  ; wave
    v_mov_b32 v{vTHR}, 0x78                     ; lookup for f = (0,2,3,1)
    v_readfirstlane_b32 s{sW}, v{T1}
    ; i = lane%16, g = lane/16
    v_and_b32 v{T1}, 15, v{T0}
    v_lshrrev_b32 v{T2}, 4, v{T0}
    v_lshlrev_b32 v{vQO}, 8, v{T1}
    v_lshl_add_u32 v{vQO}, v{T2}, 4, v{vQO}     ; vQO = i*256 + g*16
    ; vK0 = (4i + (g ^ f(i>>2)))*16
    v_lshrrev_b32 v{T3}, 2, v{T1}
""" + fswz(T3, T3, TMP) + f"""
    v_xor_b32 v{T3}, v{T3}, v{T2}
    v_lshl_add_u32 v{T3}, v{T1}, 2, v{T3}
    v_lshlrev_b32 v{vK0}, 4, v{T3}
    v_add_u32 v{vK1}, 0x10000, v{vK0}
    ; vDMA = g*256 + ((i) ^ (g<<2))*16
    v_lshlrev_b32 v{T3}, 2, v{T2}
    v_xor_b32 v{T3}, v{T3}, v{T1}
    v_lshlrev_b32 v{T3}, 4, v{T3}
    v_lshl_add_u32 v{vDMA}, v{T2}, 8, v{T3}
    ; vQL: i' = lane>>2, x = lane&3 : i'*256 + ((x ^ f(i'>>2))<<4)
    v_lshrrev_b32 v{T1}, 4, v{T0}               ; i'>>2 = lane>>4
""" + fswz(T1, T1, TMP) + f"""
    v_and_b32 v{T3}, 3, v{T0}
    v_xor_b32 v{T1}, v{T1}, v{T3}
    v_lshlrev_b32 v{T1}, 4, v{T1}
    v_lshrrev_b32 v{T3}, 2, v{T0}
    v_lshl_add_u32 v{vQL}, v{T3}, 8, v{T1}
    ; V tr-read addresses: g=lane>>4, r=(lane>>2)&3, c=lane&3 : LDS_V + (4g+r)*256 + ((u^r)<<6) + 16c
    v_bfe_u32 v{T1}, v{T0}, 2, 2                ; r
    v_and_b32 v{T3}, 3, v{T0}                   ; c
    v_lshl_add_u32 v{T2}, v{T2}, 2, v{T1}       ; 4g+r
    v_lshlrev_b32 v{T2}, 8, v{T2}
    v_lshl_add_u32 v{T2}, v{T3}, 4, v{T2}
    v_add_u32 v{T2}, {LDS_V}, v{T2}
"""
    for u in range(4):
        s += f"    v_xor_b32 v{T3}, {u}, v{T1}\n    v_lshl_add_u32 v{vV[u]}, v{T3}, 6, v{T2}\n"
    s += f"""
    v_lshlrev_b32 v{vTCH}, 7, v{T0}             ; lane*128
    v_lshlrev_b32 v{T0}, 4, v{T0}               ; lane*16
    ; workgroup -> (group, half)
    s_and_b32 s{sT0}, s2, 7
    s_lshr_b32 s{sT1}, s2, 3
    s_lshl_b32 s{sT0}, s{sT0}, 4
    s_lshr_b32 s52, s{sT1}, 1
    s_add_u32 s{sT0}, s{sT0}, s52              ; group
    s_and_b32 s{sT1}, s{sT1}, 1                ; half
    s_lshl_b32 s{sKB}, s{sT0}, 17              ; group * 131072
    s_mul_i32 s{sQB}, s{sT0}, {1984 * 256}
    s_mul_i32 s52, s{sT1}, {992 * 256}
    s_add_u32 s{sQB}, s{sQB}, s52
    s_mul_i32 s53, s{sT1}, {Cfg.rot * 8192}      ; rotation
    s_mul_i32 s83, s{sT1}, {131072 - Cfg.rot * 8192}
    s_mov_b32 s84, s{sT1}                       ; half
    s_lshl_b32 s{sT0}, s{sW}, 11               ; w*2048
    s_add_u32 s{sVB}, s{sKB}, s{sT0}
    s_sub_u32 s{sVBH}, s{sVB}, s83
    s_add_u32 s{sVB}, s{sVB}, s53
    s_add_u32 s{sM0B}, s{sT0}, {LDS_V}
    s_mov_b32 s{sC}, {c:#x}
    s_mov_b32 s{sOOB}, 0x80000000
    s_mov_b64 s[{sFLAG}:{sFLAG+1}], 0
    s_mov_b32 s{sPASS}, 0
    s_lshl_b32 s{sROW}, s{sW}, 6
"""
    for j in range(4):
        s += f"    s_add_u32 s{sT0}, s{sROW}, {16*j}\n    s_lshl_b32 s{sT0}, s{sT0}, 8\n    s_add_u32 s{sQ[j]}, s{sT0}, s{sQB}\n    s_mov_b32 s{sO[j]}, s{sOOB}\n"
    s += f"""    s_lshr_b32 s{sT0}, s{sW}, 1
    s_lshl_b32 s{sT0}, s{sT0}, 13
    s_and_b32 s{sT1}, s{sW}, 1
    s_lshl_b32 s{sT1}, s{sT1}, 6
    s_add_u32 s{sT0}, s{sT0}, s{sT1}
    s_add_u32 s{sTL}, s{sT0}, s{sKB}
    s_sub_u32 s{sTH}, s{sTL}, s83
    s_add_u32 s{sTL}, s{sTL}, s53
"""
    s += f"""
    s_lshr_b32 s{sT0}, s{sW}, 1
    s_lshl_b32 s{sT0}, s{sT0}, 12
    s_and_b32 s{sT1}, s{sW}, 1
    s_lshl_b32 s52, s{sT1}, 7
    s_add_u32 s{sKL}, s{sKB}, s{sT0}
    s_add_u32 s{sKL}, s{sKL}, s52
    s_sub_u32 s{sKH}, s{sKL}, s83
    s_add_u32 s{sKL}, s{sKL}, s53
    s_lshl_b32 s{sT1}, s{sT1}, 11
    s_add_u32 s{sKM}, s{sT0}, s{sT1}
    v_add_u32 v{vKW[0]}, s{sKM}, v{T0}
    v_add_u32 v{vKW[1]}, 0x10000, v{vKW[0]}
    v_mov_b32 v{vTHR}, {f32bits(Cfg.thr):#x}
    s_waitcnt lgkmcnt(0)
"""
    for (srd, lo, size) in ((sSRD_Q, 4, Q_BYTES), (sSRD_K, 6, KV_BYTES), (sSRD_V, 8, KV_BYTES), (sSRD_O, 10, Q_BYTES)):
        s += f"    s_mov_b32 s{srd}, s{lo}\n    s_and_b32 s{srd+1}, s{lo+1}, 0xffff\n    s_mov_b32 s{srd+2}, {size}\n    s_mov_b32 s{srd+3}, 0x00020000\n"
    return s

LET = dict(valu="a", trans="E", perm="p", lds="L", vld="G", vst="Z", dma="D", salu="s", waitl="w", waitv="W", bar="B", nop="n", ldsw="l")
def show(ops):
    gaps = []; cur = None
    for o in ops:
        if o.kind == "mfma":
            cur = []; gaps.append(cur)
        elif o.kind != "phantom" and cur is not None:
            cur.append(LET[o.kind])
    tot = 0
    for i in range(0, len(gaps), 64):
        row = gaps[i:i + 64]
        c = 0
        for g in row:
            v = sum(8 if x == "E" else 4 for x in g if x in "aEp")
            nm = [x for x in g if x not in "aEp"]
            mem = [x for x in nm if x in "LGZDl"]
            cost = 4 + max(4, 4 * len(nm) + (4 if mem else 0) - (4 if (mem and v == 0) else 0)) + v
            c += max(16.5, cost)
        tot += c
        print(f"it{i//64:2d} est {c:6.0f}: " + " ".join("".join(g) if g else "-" for g in row))
    print("est total", tot)

vST0, vST1 = 250, 251
def stamp_setup():
    return f"""    s_load_dwordx2 s[54:55], s[0:1], 40
    s_waitcnt lgkmcnt(0)
    s_mov_b32 s56, s54
    s_and_b32 s57, s55, 0xffff
    s_mov_b32 s58, 0x10000000
    s_mov_b32 s59, 0x00020000
    s_lshl_b32 s60, s2, 2
    s_add_u32 s60, s60, s{sW}
    s_lshl_b32 s60, s60, 8
"""
def stamp(i, dyn=False):
    t = f"""    s_memrealtime s[62:63]
    s_memtime s[64:65]
    s_waitcnt lgkmcnt(0)
    v_mov_b32 v251, s62
"""
    so = "s60"
    if dyn:
        t += f"    s_lshl_b32 s61, s{sPASS}, 2\n    s_add_u32 s61, s61, s60\n"; so = "s61"
    t += f"    buffer_store_dword v251, off, s[56:59], {so} offset:{4*i}\n    s_nop 3\n    v_mov_b32 v251, s64\n    buffer_store_dword v251, off, s[56:59], {so} offset:{4*i+128}\n"
    return t

def main():
    ap = argparse.ArgumentParser()
    ap.add_argument("-o", default="standalone__gqa_softmax__near_ridge.s")
    ap.add_argument("--backlog", type=int, default=3)
    ap.add_argument("--lead", type=int, default=7)
    ap.add_argument("--show", action="store_true")
    ap.add_argument("--stamp", action="store_true")
    ap.add_argument("--stflags", default="")
    ap.add_argument("--qflags", default="")
    ap.add_argument("--kflags", default="")
    ap.add_argument("--vflags", default="")
    ap.add_argument("--abl", default="")
    ap.add_argument("--rot", type=int, default=0)
    ap.add_argument("--tflags", default="")
    ap.add_argument("--kfirst", type=int, default=4)
    ap.add_argument("--kbnovalu", action="store_true")
    ap.add_argument("--stampbar", action="store_true")
    ap.add_argument("--pf", type=int, default=6)
    ap.add_argument("--nopk", action="store_true")
    ap.add_argument("--stspace", type=int, default=14)
    ap.add_argument("--qstart", type=int, default=5)
    ap.add_argument("--qspace", type=int, default=24)
    ap.add_argument("--bargap", type=int, default=11)
    args = ap.parse_args()
    for x in args.abl.split(","):
        if x: ABL.add(x)
    Cfg.backlog = args.backlog; Cfg.lds_lead = args.lead
    Cfg.pf = args.pf
    Cfg.t_flags = (' ' + args.tflags) if args.tflags else ''
    Cfg.kb_novalu = args.kbnovalu
    Cfg.k_first = args.kfirst
    Cfg.rot = args.rot; Cfg.pkmul = not args.nopk
    Cfg.st_space = args.stspace; Cfg.q_start = args.qstart; Cfg.q_space = args.qspace; Cfg.bar_gap = args.bargap
    Cfg.st_flags = (" " + args.stflags) if args.stflags else ""
    Cfg.q_flags = (" " + args.qflags) if args.qflags else ""
    Cfg.k_flags = (" " + args.kflags) if args.kflags else ""
    Cfg.v_flags = (" " + args.vflags) if args.vflags else ""

    def pol(k, remaining, ready, emit_, state):
        state["backlog"] = Cfg.backlog
        default_policy(k, remaining, ready, emit_, state)
    init_ops, info = init_issue_ops()
    noff0 = next_offsets_ops()
    body0, late0 = build_body(True, info)
    body, late = build_body(False, None)
    for o in body:
        if o.kind == "waitv" and o.name == "vw0": o.covers = late0 + late
    body0_sched = schedule(body0, pol, verbose=True)
    body_sched = schedule(body, pol, verbose=True)
    tail = parked_stores(15)
    trace = [(init_ops, 0), (noff0, 0), (body0_sched, 0)] + [(body_sched, p) for p in range(1, 4)] + [(tail, 3)]
    resolve_waits(trace)
    errs = check_trace(trace)
    for e in errs[:40]: print("ERR", e)
    print("errors:", len(errs))
    nm = sum(1 for o in body_sched if o.kind == "mfma")
    print("body instrs:", sum(1 for o in body_sched if o.kind != "phantom"), "mfma:", nm, " body0 instrs:", sum(1 for o in body0_sched if o.kind != "phantom"))
    if args.show: show(body0_sched)
    if args.show: show(body_sched)

    s = f"""; GQA attention forward, bf16, B=16 Hq=32 Hkv=8 Sq=496 Sk=512 D=128  (generated by gen/gen.py)
; @launch grid=(256,1,1) block=(256,1,1) lds=163840
.amdgcn_target "amdgcn-amd-amdhsa--gfx950"
.text
.globl {KNAME}
.p2align 8
.type {KNAME},@function
{KNAME}:
"""
    pt = prologue_text()
    pf = ""
    if Cfg.pf:
        pf = f"""    s_getpc_b64 s[80:81]
L_pc:
    v_lshlrev_b32 v{TMP+12}, {Cfg.pf}, v0
    s_mov_b32 s82, L_code_end-L_pc-4
"""
        step = 256 << Cfg.pf
        for i in range((Cfg.code_bytes + step - 1) // step):
            pf += f"    v_min_u32 v{TMP+13}, s82, v{TMP+12}\n    global_load_dword v{TMP+14+i%4}, v{TMP+13}, s[80:81]\n    v_add_u32 v{TMP+12}, {step}, v{TMP+12}\n"
    pt = pt.replace("PREFETCH\n", pf)
    if args.stamp:
        a, b = pt.split("    ; workgroup -> (group, half)")
        pt = a + stamp_setup() + stamp(0) + "    ; workgroup -> (group, half)" + b
    s += pt
    s += emit_fix(init_ops)
    s += emit(noff0)
    if args.stamp: s += stamp(1)
    b0 = emit(body0_sched)
    if args.stamp and args.stampbar:
        parts = b0.split("    s_barrier\n")
        b0 = parts[0]
        for k, p_ in enumerate(parts[1:]):
            b0 += "    s_barrier\n" + stamp(8 + k) + p_
    s += b0
    if args.stamp: s += stamp(2)
    s += f"    s_mov_b32 s{sPASS}, 1\n"
    s += ".p2align 6\nL_pass:\n"
    b1 = emit(body_sched)
    if args.stamp and args.stampbar:
        parts = b1.split("    s_barrier\n")
        b1 = stamp(18) + parts[0]
        for k, p_ in enumerate(parts[1:]):
            b1 += "    s_barrier\n" + stamp(19 + k) + p_
        idx = b1.rindex("    v_mfma")
        idx = b1.index("\n", idx) + 1
        b1 = b1[:idx] + stamp(27) + b1[idx:] + stamp(28)
    s += b1
    if args.stamp: s += stamp(2, dyn=True)
    s += f"""    s_add_u32 s{sPASS}, s{sPASS}, 1
    s_cmp_lt_u32 s{sPASS}, 4
    s_cbranch_scc1 L_pass
"""
    s += emit(tail)
    if args.stamp: s += "    s_waitcnt vmcnt(0)\n" + stamp(6)
    s += f"""L_end:
    s_endpgm
L_code_end:
.section .rodata,"a"
.p2align 6
.amdhsa_kernel {KNAME}
  .amdhsa_next_free_vgpr 512
  .amdhsa_next_free_sgpr 88
  .amdhsa_accum_offset 256
  .amdhsa_group_segment_fixed_size 0
  .amdhsa_kernarg_size 48
  .amdhsa_user_sgpr_count 2
  .amdhsa_user_sgpr_kernarg_segment_ptr 1
  .amdhsa_system_sgpr_workgroup_id_x 1
.end_amdhsa_kernel
"""
    open(args.o, "w").write(s)

if __name__ == "__main__":
    main()
```

```python
import sys, os, struct, argparse
sys.path.insert(0, os.path.dirname(os.path.abspath(__file__)))
from sched import *

KNAME = "standalone__gqa_softmax__near_ridge_kernel"

def O_(dt, j): return (dt * 4 + j) * 4
def S_(kvt, j): return 128 + (kvt * 4 + j) * 4
def P_(buf, j): return 160 + buf * 16 + j * 4
def NM_(j): return 192 + 4 * j
def LS0_(j): return 208 + j
def LS1_(j): return 212 + j
TMP = 216
vK0, vK1 = 240, 241
vV = [242, 243, 244, 245]
vQO = 246
vDMA = 247
vRC = [248, 249, 250, 251]
def vRCP(j): return 248 + j
vQL = 252
vSTW = 253
vSTR = 254
vTHR = 255
def Q_(j, s): return (j * 4 + s) * 4
def X_(n): return 64 + n * 4
def KF_(kvt, s, par=0): return 128 + par * 32 + (kvt * 4 + s) * 4
def VF_(dt): return 192 + dt * 4
def L_(j): return 224 + 4 * j
ONES = 240
XS = [0]
def msum(j): return j >= 4 - XS[0]
def KR_(s): return 224 + 4 * s

sSRD_Q, sSRD_K, sSRD_V, sSRD_O = 12, 16, 20, 24
sW = 28; sPASS = 29
sQ = [30, 31, 32, 33]
sO = [34, 35, 36, 37]
sVB = 38; sVO = 39; sM0B = 40; sQB = 41
sFLAG = 42
sROW = 44
sT0, sT1 = 45, 46
sC = 47
sKB = 49; sOOB = 50; sVO2 = 51
sOP = [66, 67, 68, 69]
sVBH = 70
sKL, sKH = 71, 72
sKM = 73
sKO = 74
sVT, sVTH = 75, 76
vKW = [248, 249]
vTCH = 253

LDS_V = 131072
LDS_STG = 31 * 4096
Q_BYTES = 16 * 32 * 496 * 128 * 2
KV_BYTES = 16 * 8 * 512 * 128 * 2
CSCALE = (128 ** -0.5) * 1.4426950408889634
def f32bits(x): return struct.unpack("<I", struct.pack("<f", x))[0]

class Cfg:
    backlog = 3
    lds_lead = 7
    thr = 2.0 ** 30
    pkmul = True
    rot = 0
    k_ahead = 6
    k_issue = 2
    simple = False
    interleave = 2
    win_space = 9
    st_plan = [(n // 4, n % 4) for n in range(16)]
    q_plan = [(1, 4), (1, 5), (1, 6), (2, 4), (2, 5), (2, 6), (3, 4), (3, 5), (3, 6), (4, 0), (4, 2), (4, 4), (4, 6), (5, 0), (5, 2), (5, 4)]
    kb_off = 12
    touch_all = False
    touch_ahead = 8
    k_first = 4
    early0 = 2
    qcopy_span = 70
    kb_novalu = False
    t_flags = ''
    init_extra = [("t", 2), ("k", 4), ("k", 5)]
    early_list = [("t", 4), ("k", 6), ("k", 7), ("t", 6)]
    pf = 6
    code_bytes = 60000
    st_space = 14
    q_start = 5
    q_start0 = 3
    q_space0 = 40
    q_space = 24
    bar_gap = 11
    st_flags = ""
    q_flags = ""
    k_flags = ""
    v_flags = ""

def V(i): return f"v{i}"
def A(i): return f"a{i}"

def mfma(d, dpre, a, apre, b, bpre, c=None, rtag=None, wtag=None):
    dr = regs(dpre, d, 4)
    reads = regs(apre, a, 4) + regs(bpre, b, 4)
    if c is None:
        ctext = "0"; srcc = []
    else:
        ctext = rng(dpre, c, 4); srcc = regs(dpre, c, 4); reads += srcc
    return Op(f"v_mfma_f32_16x16x32_bf16 {rng(dpre, d, 4)}, {rng(apre, a, 4)}, {rng(bpre, b, 4)}, {ctext}", "mfma",
              reads, dr, rtag, wtag, srcc=srcc)

def valu(text, reads, writes, rtag=None, wtag=None, kind="valu"):
    return Op(text, kind, reads, writes, rtag, wtag)

def salu(text, reads=(), writes=()):
    return Op(text, "salu", reads, writes)

def ds_read(dst, n, vaddr, off, tagf, tr=False, extra_reads=(), lead=None):
    d = regs("a", dst, n)
    ins = "ds_read_b64_tr_b16" if tr else "ds_read_b128"
    return Op(f"{ins} {rng('a', dst, n)}, v{vaddr} offset:{off}", "lds", [V(vaddr)] + list(extra_reads),
              d + ["pend:" + r for r in d], None, {r: tagf for r in d}, lead=Cfg.lds_lead if lead is None else lead)

def wait(kind, loads, extra_covers=()):
    rs = []; ws = []
    for l in loads:
        for w in l.writes:
            if w.startswith("pend:"):
                rs.append(w); ws.append(w[5:])
    return Op("", kind, rs, ws, covers=list(loads) + list(extra_covers))

def k_reads(t, kvt):
    ops = []
    for s in range(4):
        off = t * 8192 + kvt * 4096 + s * 1024
        va = vK0
        if off >= 65536: off -= 65536; va = vK1
        ops.append(ds_read(KF_(kvt, s, t % 2), 4, va, off, ("K", None, None, t, kvt, s)))
    return ops

def kreg(t, kvt, s):
    return KF_(kvt, s, t % 2)

def v_reads(t, dt):
    slot = t % 4
    u, b = dt // 2, dt % 2
    ops = []
    for kvt in range(2):
        off = slot * 8192 + kvt * 4096 + 8 * b
        ops.append(ds_read(VF_(dt) + 2 * kvt, 2, vV[u], off, ("V", None, None, t, dt, kvt), tr=True,
                           extra_reads=[f"ps:vready{t // 2 % 2}"]))
    return ops

def qk_chain(n, kvt, j, first):
    t = n % 16; rp = n // 16
    l = []
    for s in range(4):
        q = X_(j * 4 + s) if n == 16 else Q_(j, s); kr = kreg(t, kvt, s)
        rt = {r: ("K", None, None, t, kvt, s) for r in regs("a", kr, 4)}
        rt.update({r: ("Q", None, rp, j, s) for r in regs("a", q, 4)})
        if s == 0:
            if first and kvt == 0: c = None
            else:
                c = NM_(j); rt.update({r: ("NM", None, rp, j) for r in regs("v", c, 4)})
        else:
            c = S_(kvt, j); rt.update({r: ("Sp", n, None, kvt, j, s - 1) for r in regs("v", c, 4)})
        wt = {r: (("Sp", n, None, kvt, j, s) if s < 3 else ("S", n, None, kvt, j, i))
              for i, r in enumerate(regs("v", S_(kvt, j), 4))}
        if s == 3 and first and kvt == 0:
            wt = {r: ("Sraw", n, None, kvt, j, i) for i, r in enumerate(regs("v", S_(kvt, j), 4))}
        l.append(mfma(S_(kvt, j), "v", kr, "a", q, "a", c, rt, wt))
    return l

def max_ops(n, j):
    rp = n // 16
    ops = []
    s = S_(0, j); t = TMP + 2 * j; u = TMP + 2 * j + 1
    raw = lambda i: {V(s + i): ("Sraw", n, None, 0, j, i)}
    rt = {}; [rt.update(raw(i)) for i in range(3)]
    ops.append(valu(f"v_max3_f32 v{t}, v{s}, v{s+1}, v{s+2}", [V(s), V(s+1), V(s+2)], [V(t)], rt))
    ops.append(valu(f"v_max_f32 v{t}, v{t}, v{s+3}", [V(t), V(s+3)], [V(t)], raw(3)))
    for sw in ("v_permlane16_swap_b32", "v_permlane32_swap_b32"):
        ops.append(valu(f"v_mov_b32 v{u}, v{t}", [V(t)], [V(u)]))
        ops.append(valu(f"{sw} v{t}, v{u}", [V(t), V(u)], [V(t), V(u)], kind="perm"))
        ops.append(valu(f"v_max_f32 v{t}, v{t}, v{u}", [V(t), V(u)], [V(t)]))
    for i in range(4):
        ops.append(valu(f"v_sub_f32 v{NM_(j)+i}, 0, v{t}", [V(t)], [V(NM_(j)+i)], None, {V(NM_(j)+i): ("NM", None, rp, j)}))
    for i in range(4):
        ops.append(valu(f"v_sub_f32 v{s+i}, v{s+i}, v{t}", [V(s+i), V(t)], [V(s+i)], raw(i), {V(s+i): ("S", n, None, 0, j, i)}))
    return ops

def sm_ops(n, kvt, j):
    ops = []
    s = S_(kvt, j); buf = n % 2
    t = n % 16
    for i in range(4):
        ops.append(valu(f"v_exp_f32 v{s+i}, v{s+i}", [V(s+i)], [V(s+i)], {V(s+i): ("S", n, None, kvt, j, i)},
                        {V(s+i): ("E", n, None, kvt, j, i)}, kind="trans"))
        et = {V(s+i): ("E", n, None, kvt, j, i)}
        if msum(j): pass
        elif t == 0:
            if kvt == 0 and i == 0: pass
            elif kvt == 0 and i == 1:
                ops.append(valu(f"v_add_f32 v{LS0_(j)}, v{s}, v{s+1}", [V(s), V(s+1)], [V(LS0_(j))], et))
            else:
                ops.append(valu(f"v_add_f32 v{LS0_(j)}, v{LS0_(j)}, v{s+i}", [V(LS0_(j)), V(s+i)], [V(LS0_(j))], et))
        elif t == 1 and kvt == 0 and i == 0:
            ops.append(valu(f"v_add_f32 v{LS1_(j)}, v{LS0_(j)}, v{s+i}", [V(LS0_(j)), V(s+i)], [V(LS1_(j))], et))
        else:
            ops.append(valu(f"v_add_f32 v{LS1_(j)}, v{LS1_(j)}, v{s+i}", [V(LS1_(j)), V(s+i)], [V(LS1_(j))], et))
        if i % 2 == 1:
            pr = P_(buf, j) + 2 * kvt + i // 2
            rt = {V(s+i-1): ("E", n, None, kvt, j, i-1), V(s+i): ("E", n, None, kvt, j, i)}
            ops.append(valu(f"v_cvt_pk_bf16_f32 v{pr}, v{s+i-1}, v{s+i}", [V(s+i-1), V(s+i)], [V(pr)], rt,
                            {V(pr): ("P", n, None, j, 2 * kvt + i // 2)}))
    return ops

def pv_ops(n, dt):
    t = n % 16; buf = n % 2
    l = []
    for j in range(4):
        rt = {}
        for kvt in range(2):
            rt.update({r: ("V", None, None, t, dt, kvt) for r in regs("a", VF_(dt) + 2 * kvt, 2)})
        rt.update({r: ("P", n, None, j, i) for i, r in enumerate(regs("v", P_(buf, j), 4))})
        if t == 0: c = None
        else:
            c = O_(dt, j); rt.update({r: ("O", n - 1, None, dt, j) for r in regs("v", c, 4)})
        wt = {r: ("O", n, None, dt, j) for r in regs("v", O_(dt, j), 4)}
        l.append(mfma(O_(dt, j), "v", VF_(dt), "a", P_(buf, j), "v", c, rt, wt))
    return l

def sum_ops(n):
    t = n % 16; buf = n % 2
    l = []
    for j in range(4):
        if not msum(j): continue
        rt = {r: ("P", n, None, j, i) for i, r in enumerate(regs("v", P_(buf, j), 4))}
        c = None if t == 0 else L_(j)
        l.append(mfma(L_(j), "a", ONES, "a", P_(buf, j), "v", c, rt, None))
    return l

def q_raw_loads(rp, direct=False):
    ops = []
    for j in range(4):
        for s in range(4):
            d = Q_(j, s) if direct else X_(j * 4 + s)
            dr = regs("a", d, 4)
            ops.append(Op(f"buffer_load_dwordx4 {rng('a', d, 4)}, v{vQO}, s[{sSRD_Q}:{sSRD_Q+3}], s{sQ[j]} offen offset:{64*s}{Cfg.q_flags}",
                          "vld", [V(vQO), f"s{sQ[j]}"], dr + ["pend:" + r for r in dr], None,
                          {r: ("Q", None, rp, j, s) for r in dr}))
    return ops

def q_copy(rp, j, s):
    ops = []
    for i in range(4):
        x = X_(j * 4 + s) + i; q = Q_(j, s) + i
        ops.append(valu(f"v_accvgpr_mov_b32 a{q}, a{x}", [A(x)], [A(q)], {A(x): ("Q", None, rp, j, s)}, {A(q): ("Q", None, rp, j, s)}))
    return ops

def dma_ops(t):
    slot = t % 4
    so = sVO if t % 2 == 0 else sVO2
    ops = [salu(f"s_add_u32 m0, s{sM0B}, {slot * 8192}", [f"s{sM0B}"], ["m0"]),
           salu(f"s_add_u32 s{so}, s{sVB if t < 16 - Cfg.rot else sVBH}, {t * 8192}", [f"s{sVB}"], [f"s{so}"])]
    for h in range(2):
        ops.append(Op(f"buffer_load_dwordx4 v{vDMA}, s[{sSRD_V}:{sSRD_V+3}], s{so} offen offset:{1024*h}{Cfg.v_flags} lds", "dma",
                      [V(vDMA), f"s{so}", "m0", f"ps:vfree{t // 2 % 2}"], [f"ps:vdst{t%4}_{h}"]))
    return ops

def epilogue_ops(n):
    ops = []
    for j in range(4):
        t = TMP + 8 + 2 * j; u = TMP + 8 + 2 * j + 1
        if msum(j):
            ops.append(valu(f"v_accvgpr_read_b32 v{t}, a{L_(j)}", [A(L_(j))], [V(t)]))
        else:
            ops.append(valu(f"v_mov_b32 v{t}, v{LS1_(j)}", [V(LS1_(j))], [V(t)]))
        for sw in ("v_permlane16_swap_b32", "v_permlane32_swap_b32"):
            if msum(j): break
            ops.append(valu(f"v_mov_b32 v{u}, v{t}", [V(t)], [V(u)]))
            ops.append(valu(f"{sw} v{t}, v{u}", [V(t), V(u)], [V(t), V(u)], kind="perm"))
            ops.append(valu(f"v_add_f32 v{t}, v{t}, v{u}", [V(t), V(u)], [V(t)]))
        ops.append(valu(f"v_rcp_f32 v{vRC[j]}, v{t}", [V(t)], [V(vRC[j])], kind="trans"))
        ops.append(valu(f"v_cmp_nle_f32 vcc, v{t}, v{vTHR}", [V(t), V(vTHR)], ["vcc"]))
        ops.append(salu(f"s_or_b64 s[{sFLAG}:{sFLAG+1}], s[{sFLAG}:{sFLAG+1}], vcc", ["vcc", f"s{sFLAG}"], [f"s{sFLAG}"]))
    cnt = 0
    for u in range(4):
        for j in range(4):
            tb = TMP + 16 + 4 * (cnt % 2); cnt += 1
            for b in range(2):
                o = O_(2 * u + b, j)
                if Cfg.pkmul:
                    for i in (0, 2):
                        pb = 248 + (j & ~1); sel = j & 1
                        op = valu(f"v_pk_mul_f32 v[{o+i}:{o+i+1}], v[{o+i}:{o+i+1}], v[{pb}:{pb+1}] op_sel:[0,{sel}] op_sel_hi:[1,{sel}]",
                                  [V(o+i), V(o+i+1), V(vRC[j])], [V(o+i), V(o+i+1)],
                                  {V(o+i): ("O", n, None, 2 * u + b, j), V(o+i+1): ("O", n, None, 2 * u + b, j)})
                        op.reads.append("ps:nomfma")
                        ops.append(op)
                else:
                    for i in range(4):
                        ops.append(valu(f"v_mul_f32 v{o+i}, v{o+i}, v{vRC[j]}", [V(o+i), V(vRC[j])], [V(o+i)],
                                        {V(o+i): ("O", n, None, 2 * u + b, j)}))
                for h in range(2):
                    ops.append(valu(f"v_cvt_pk_bf16_f32 v{tb+2*b+h}, v{o+2*h}, v{o+2*h+1}", [V(o+2*h), V(o+2*h+1)], [V(tb+2*b+h)]))
            x = X_(u * 4 + j)
            for i in range(4):
                ops.append(valu(f"v_accvgpr_write_b32 a{x+i}, v{tb+i}", [V(tb+i)], [A(x+i)], None, {A(x+i): ("OX", n, None, u, j)}))
    return ops

def parked_stores(n):
    ops = []
    for u in range(4):
        for j in range(4):
            x = X_(u * 4 + j); xr = regs("a", x, 4)
            ops.append(Op(f"buffer_store_dwordx4 {rng('a', x, 4)}, v{vQO}, s[{sSRD_O}:{sSRD_O+3}], s{sOP[j]} offen offset:{64*u}{Cfg.st_flags}",
                          "vst", xr + [V(vQO), f"s{sOP[j]}"], [], {r: ("OX", n, None, u, j) for r in xr}))
    return ops

def k_dma_ops(t):
    ops = []
    for h in range(2):
        ops.append(salu(f"s_add_u32 m0, s{sKM}, {t * 8192 + h * 1024}", [f"s{sKM}"], ["m0"]))
        ops.append(salu(f"s_add_u32 s{sKO}, s{sKL if t < 16 - Cfg.rot else sKH}, {t * 8192 + h * 64}", [], [f"s{sKO}"]))
        ops.append(Op(f"buffer_load_dwordx4 v{vQL}, s[{sSRD_K}:{sSRD_K+3}], s{sKO} offen{Cfg.k_flags} lds", "dma",
                      [V(vQL), f"s{sKO}", "m0"], [f"pend:ps:kraw{t}_{h}"]))
    return ops

def k_build_ops(t, idx):
    ops = []
    for h in range(2):
        base = TMP + 12 * ((2 * idx + h) % 2)
        off = t * 8192 + h * 1024
        va = vKW[0]
        if off >= 65536: off -= 65536; va = vKW[1]
        d = regs("v", base, 4)
        rd = Op(f"ds_read_b128 {rng('v', base, 4)}, v{va} offset:{off}", "lds", [V(va), f"ps:kraw{t}_{h}"],
                d + ["pend:" + r for r in d], lead=Cfg.lds_lead)
        ops.append(rd); ops.append(wait("waitl", [rd]))
        for i in range(4):
            if Cfg.kb_novalu and t >= 4: break
            r = base + i; a, b = base + 4 + 2 * i, base + 5 + 2 * i
            ops.append(valu(f"v_lshlrev_b32 v{a}, 16, v{r}", [V(r)], [V(a)]))
            ops.append(valu(f"v_and_b32 v{b}, 0xffff0000, v{r}", [V(r)], [V(b)]))
            ops.append(valu(f"v_mul_f32 v{a}, s{sC}, v{a}", [V(a)], [V(a)]))
            ops.append(valu(f"v_mul_f32 v{b}, s{sC}, v{b}", [V(b)], [V(b)]))
            ops.append(valu(f"v_cvt_pk_bf16_f32 v{r}, v{a}, v{b}", [V(a), V(b)], [V(r)]))
        ops.append(Op(f"ds_write_b128 v{va}, {rng('v', base, 4)} offset:{off}", "ldsw", [V(va)] + d, [f"ps:kw{t}_{h}", f"pend:ps:kws{t}_{h}"]))
    return ops

sTL, sTH, sTO = 75, 76, 77
def touch_ops(t):
    return [salu(f"s_add_u32 s{sTO}, s{sTL if t < 16 - Cfg.rot else sTH}, {t * 8192}", [], [f"s{sTO}"]),
            Op(f"buffer_load_dword a255, v{vTCH}, s[{sSRD_V}:{sSRD_V+3}], s{sTO} offen{Cfg.t_flags}", "vld",
               [V(vTCH), f"s{sTO}"], [A(255)])]

def next_offsets_ops():
    ops = []
    for j in range(4):
        ops.append(salu(f"s_mov_b32 s{sOP[j]}, s{sO[j]}", [f"s{sO[j]}"], [f"s{sOP[j]}"]))
        ops.append(salu(f"s_mov_b32 s{sO[j]}, s{sQ[j]}", [f"s{sQ[j]}"], [f"s{sO[j]}"]))
    ops.append(salu(f"s_add_u32 s{sROW}, s{sROW}, 256", [f"s{sROW}"], [f"s{sROW}", "scc"]))
    for j in range(4):
        o = Op(f"s_add_u32 s{sT0}, s{sROW}, {16*j}\n    s_lshl_b32 s{sT1}, s{sT0}, 8\n    s_add_u32 s{sT1}, s{sT1}, s{sQB}\n"
               f"    s_cmp_lt_u32 s{sT0}, 992\n    s_cselect_b32 s{sQ[j]}, s{sT1}, s{sOOB}", "salu",
               [f"s{sROW}", f"s{sQB}"], [f"s{sQ[j]}", f"s{sT0}", f"s{sT1}", "scc"])
        ops.append(o)
    return ops

def qk_seq(n, first):
    ops = []
    if first:
        for j in range(4): ops += qk_chain(n, 0, j, True)
        for j in range(4): ops += max_ops(n, j)
        for j in range(4): ops += qk_chain(n, 1, j, True)
    else:
        for j in range(4):
            for kvt in range(2): ops += qk_chain(n, kvt, j, False)
    return ops

G = lambda i, k: (64 + XS[0]) * i + k + GOFF[0]
GOFF = [0]

def init_issue_ops():
    ops = []; info = {"kd": {}, "vd": {}}
    def kd(t):
        d = k_dma_ops(t); ops.extend(d); info["kd"][t] = [o for o in d if o.kind == "dma"]
    for t in range(Cfg.k_first): kd(t)
    q = q_raw_loads(0, direct=True); ops.extend(q); info["q"] = q
    for t in range(Cfg.k_first, 4): kd(t)
    for t in (0, 1):
        d = dma_ops(t); ops.extend(d); info["vd"][t] = [o for o in d if o.kind == "dma"]
    for grp in Cfg.init_extra:
        if grp[0] == "t": ops.extend(touch_ops(grp[1]))
        else: kd(grp[1])
    return ops, info

def build_simple_prologue():
    ops = []; kd = {}
    prev = [None]
    def chain(d):
        for o in d:
            if prev[0] is not None: o.deps.append((prev[0], 0, 0))
            prev[0] = o
        ops.extend(d)
    def issue_k(t):
        d = k_dma_ops(t); chain(d); kd[t] = [o for o in d if o.kind == "dma"]
    AHEAD = Cfg.k_ahead
    for t in range(min(AHEAD, 16)): issue_k(t)
    later = []
    for t in range(AHEAD, 16): later.append(("k", t))
    q = q_raw_loads(0, direct=True)
    for n in range(0, 16, 2): later.append(("q", q[n:n + 2]))
    vd = []
    for t in (0, 1): later.append(("v", t))
    def issue_next(n):
        for _ in range(n):
            if not later: return
            k, a = later.pop(0)
            if k == "k": issue_k(a)
            elif k == "q": chain(a)
            elif k == "v":
                d = dma_ops(a); chain(d); vd.extend([o for o in d if o.kind == "dma"])
            else: chain(touch_ops(a))
    wr_all = []
    for t in range(16):
        w = wait("waitv", kd[t]); chain([w])
        kb = k_build_ops(t, t); chain(kb)
        wr_all += [o for o in kb if o.kind == "ldsw"]
        issue_next(Cfg.k_issue)
    issue_next(100)
    chain([wait("waitl", wr_all)])
    chain([Op("s_barrier", "bar", [f"ps:kws{t}_{h}" for t in range(16) for h in (0, 1)], ["ps:kready0"])])
    kr = k_reads(0, 0) + k_reads(0, 1)
    for o in kr: o.reads.append("ps:kready0")
    ops += kr
    ops.append(wait("waitl", kr[:4])); ops.append(wait("waitl", kr[4:]))
    for j in range(4): ops.append(wait("waitv", q[4 * j:4 * j + 4]))
    ops += qk_seq(0, True)
    x = 0
    for t in range(2, 16, 2):
        for o in touch_ops(t):
            o.minGap = 1 + 2 * x; o.cap = o.minGap; x += 1
            ops.append(o)
    kr = k_reads(1, 0) + k_reads(1, 1)
    for o in kr: o.reads.append("ps:kready0")
    ops += kr
    for j in range(4):
        for kvt in range(2): ops += sm_ops(0, kvt, j)
    ops.append(wait("waitl", kr[:4])); ops.append(wait("waitl", kr[4:]))
    return ops, vd

def build_body(pass0, info):
    ops = []
    dmas = {}
    kd = {}
    GOFF[0] = 0
    if pass0:
        kd = dict(info["kd"])
        GOFF[0] = 32
        pre = list(range(Cfg.k_first))
        wr_all = []
        for t in pre:
            w = wait("waitv", kd[t]); ops.append(w)
            kb = k_build_ops(t, t); ops += kb
            wr_all += [o for o in kb if o.kind == "ldsw"]
        ops.append(wait("waitl", wr_all))
        barA = Op("s_barrier", "bar", [f"ps:kws{t}_{h}" for t in pre for h in (0, 1)], ["ps:kready0"] + (["ps:kready1"] if 1 in pre else []))
        ops.append(barA)
        kr = k_reads(0, 0) + k_reads(0, 1)
        for o in kr: o.reads.append("ps:kready0")
        ops += kr
        ops.append(wait("waitl", kr[:4])); ops.append(wait("waitl", kr[4:]))
        for j in range(4):
            ops.append(wait("waitv", info["q"][4 * j:4 * j + 4]))
        ops += qk_seq(0, True)
        x = 0
        for grp in Cfg.early_list:
            d = touch_ops(grp[1]) if grp[0] == "t" else k_dma_ops(grp[1])
            for o in d:
                o.minGap = Cfg.early0 + x; o.cap = o.minGap; x += 1
            ops += d
            if grp[0] == "k": kd[grp[1]] = [o for o in d if o.kind == "dma"]
        if 1 not in pre:
            w = wait("waitv", kd[1]); w.cap = 0; ops.append(w)
            kb = k_build_ops(1, 1)
            for x, o in enumerate(kb): o.cap = 1 + x // 3
            ops += kb
            ops.append(wait("waitl", [o for o in kb if o.kind == "ldsw"]))
            barB = Op("s_barrier", "bar", [f"ps:kws1_{h}" for h in (0, 1)], ["ps:kready1"])
            barB.cap = 20
            ops.append(barB)
        kr = k_reads(1, 0) + k_reads(1, 1)
        for o in kr: o.reads.append("ps:kready1")
        ops += kr
        for j in range(4):
            for kvt in range(2): ops += sm_ops(0, kvt, j)
        ops.append(wait("waitl", kr[:4])); ops.append(wait("waitl", kr[4:]))
        dmas[0] = info["vd"][0]; dmas[1] = info["vd"][1]
    else:
        ps = parked_stores(-1)
        for x, o in enumerate(ps):
            if Cfg.interleave == 2:
                e, k = Cfg.st_plan[x]
                o.minGap = G(2 * e, Cfg.bar_gap + 12) + k * Cfg.win_space
            else:
                o.minGap = 2 + Cfg.st_space * x
            o.cap = o.minGap + 4
        ops += ps
    qraw = None
    for i in range(16):
        n = i + 1
        first = (n == 16)
        if first:
            for j in range(4):
                wq = wait("waitv", qraw[4 * j:4 * j + 4]); wq.cap = G(14, 4 + 8 * j); ops.append(wq)
        ops += qk_seq(n, first)
        if first:
            x = 0
            for j in range(4):
                for s_ in range(4):
                    for o in q_copy(1, j, s_):
                        o.cap = G(14, 10 + 8 * j) + ((x % 16) * Cfg.qcopy_span) // 16; x += 1
                        ops.append(o)
        extra_bar_reads = []
        if pass0 and i % 2 == 0 and i <= 12 and not (i == 0 and Cfg.k_first == 4):
            w = wait("waitv", kd[i + 2] + kd[i + 3]); ops.append(w)
            W_ = 64 + XS[0]
            if i > 2 or (i == 2):
                w.cap = G(i - 2, Cfg.bar_gap + Cfg.kb_off); w.minGap = w.cap
                span = 2 * W_ - Cfg.kb_off - 8
            else:
                w.cap = 0; span = 30
            kb = k_build_ops(i + 2, 0) + k_build_ops(i + 3, 1)
            for x, o in enumerate(kb):
                o.cap = w.cap + 2 + (x * span) // len(kb)
                o.minGap = o.cap - 2
            ops += kb
            wr = [o for o in kb if o.kind == "ldsw"]
            ops.append(wait("waitl", wr))
            extra_bar_reads = [f"ps:kws{t}_{h}" for t in (i + 2, i + 3) for h in (0, 1)]
        if i % 2 == 0:
            cov = []
            for t in (i, i + 1):
                if t in dmas: cov += dmas[t]
            wv = Op("", "waitv", [], [f"ps:vw{i}"], covers=cov)
            wv.name = f"vw{i}"
            if i > 0:
                for c in cov: wv.deps.append((c, 0, 0))
            wv.cap = G(i, Cfg.bar_gap - 1)
            ops.append(wv)
            wr = [f"ps:vready{i // 2 % 2}", f"ps:vfree{(i // 2 + 1) % 2}", f"ps:kbar{i}"]
            bar = Op("s_barrier", "bar", [f"ps:vw{i}", "ps:vused"] + extra_bar_reads, wr)
            bar.cap = G(i, Cfg.bar_gap); bar.minGap = G(i, Cfg.bar_gap - 2)
            ops.append(bar)
            x = 0
            for t in (i + 2, i + 3):
                d = dma_ops(t % 16)
                for o in d:
                    o.cap = G(i, Cfg.bar_gap + 2 + 2 * x); x += 1
                ops += d
                dmas[t] = [o for o in d if o.kind == "dma"]
            if i == 14: late = dmas[16] + dmas[17]
            if not pass0 and Cfg.touch_all:
                d = touch_ops((i + Cfg.touch_ahead) % 16)
                for o in d:
                    o.cap = G(i, Cfg.bar_gap + 2 + 2 * x); x += 1
                    o.reads.append(f"ps:kbar{i}")
                ops += d
            if pass0:
                if i + 8 < 16:
                    for t in (i + 8, i + 9):
                        d = k_dma_ops(t)
                        for o in d:
                            o.cap = G(i, Cfg.bar_gap + 2 + 2 * x); x += 1
                            if o.kind == "dma": o.reads.append(f"ps:kbar{i}")
                        ops += d; kd[t] = [o for o in d if o.kind == "dma"]
                if i + 8 < 16 or Cfg.touch_all:
                    d = touch_ops((i + 8) % 16)
                    for o in d:
                        o.cap = G(i, Cfg.bar_gap + 2 + 2 * x); x += 1
                        o.reads.append(f"ps:kbar{i}")
                    ops += d
        kr = k_reads((n + 1) % 16, 0) + k_reads((n + 1) % 16, 1)
        if pass0 and n + 1 < 16:
            tb = n + 1
            bi = (tb - 2) // 2 * 2
            for o in kr: o.reads.append(f"ps:kbar{bi}")
        ops += kr
        for j in range(4):
            for kvt in range(2):
                ops += sm_ops(n, kvt, j)
        ops += sum_ops(i)
        for dt in range(8):
            vr = v_reads(i, dt)
            ops += vr
            w = wait("waitl", vr)
            if dt == 7: w.writes.append("ps:vused")
            ops.append(w)
            pv = pv_ops(i, dt)
            if i == 15 and dt == 7: pv[-1].writes.append("ps:nomfma")
            ops += pv
        if kr:
            ops.append(wait("waitl", kr[:4]))
            if len(kr) > 4: ops.append(wait("waitl", kr[4:]))
        if i == 4:
            qraw = q_raw_loads(1)
            for x, o in enumerate(qraw):
                if Cfg.interleave == 2:
                    e, k = Cfg.q_plan[x]
                    o.minGap = G(2 * e, Cfg.bar_gap + 12) + k * Cfg.win_space
                elif pass0: o.minGap = G(Cfg.q_start0, 0) + Cfg.q_space0 * x
                elif Cfg.interleave: o.minGap = 2 + Cfg.st_space * x + Cfg.st_space // 2
                else: o.minGap = G(Cfg.q_start, 0) + Cfg.q_space * x
                o.cap = o.minGap + 4
            ops += qraw
    ops += epilogue_ops(15)
    ops += next_offsets_ops()
    return ops, late

ABL = set()
def emit(ops):
    lines = []
    for o in ops:
        t = optext(o)
        if t is None: continue
        if o.kind in ABL: continue
        lines.append("    " + t)
    return "\n".join(lines) + "\n"

T0, T1, T2, T3 = TMP + 8, TMP + 9, TMP + 10, TMP + 11
def fswz(dst, src, tmp):
    return f"    v_lshlrev_b32 v{tmp}, 1, v{src}\n    v_lshrrev_b32 v{dst}, v{tmp}, v{vTHR}\n    v_and_b32 v{dst}, 3, v{dst}\n"

def emit_fix(ops):
    lines = []
    for i, o in enumerate(ops):
        if o.kind == "dma" and i > 0 and "m0" in ops[i - 1].writes: lines.append("    s_nop 0")
        lines.append("    " + o.text)
    return "\n".join(lines) + "\n" if lines else ""

def prologue_text():
    c = f32bits(CSCALE)
    s = f"""
    s_cmp_ge_u32 s2, 256
    s_cbranch_scc1 L_end
    s_load_dwordx4 s[4:7], s[0:1], 0
    s_load_dwordx4 s[8:11], s[0:1], 16
PREFETCH
    v_and_b32 v{T0}, 63, v0                     ; lane
    v_lshrrev_b32 v{T1}, 6, v0                  ; wave
    v_mov_b32 v{vTHR}, 0x78                     ; lookup for f = (0,2,3,1)
    v_readfirstlane_b32 s{sW}, v{T1}
    ; i = lane%16, g = lane/16
    v_and_b32 v{T1}, 15, v{T0}
    v_lshrrev_b32 v{T2}, 4, v{T0}
    v_lshlrev_b32 v{vQO}, 8, v{T1}
    v_lshl_add_u32 v{vQO}, v{T2}, 4, v{vQO}     ; vQO = i*256 + g*16
    ; vK0 = (4i + (g ^ f(i>>2)))*16
    v_lshrrev_b32 v{T3}, 2, v{T1}
""" + fswz(T3, T3, TMP) + f"""
    v_xor_b32 v{T3}, v{T3}, v{T2}
    v_lshl_add_u32 v{T3}, v{T1}, 2, v{T3}
    v_lshlrev_b32 v{vK0}, 4, v{T3}
    v_add_u32 v{vK1}, 0x10000, v{vK0}
    ; vDMA = g*256 + ((i) ^ (g<<2))*16
    v_lshlrev_b32 v{T3}, 2, v{T2}
    v_xor_b32 v{T3}, v{T3}, v{T1}
    v_lshlrev_b32 v{T3}, 4, v{T3}
    v_lshl_add_u32 v{vDMA}, v{T2}, 8, v{T3}
    ; vQL: i' = lane>>2, x = lane&3 : i'*256 + ((x ^ f(i'>>2))<<4)
    v_lshrrev_b32 v{T1}, 4, v{T0}               ; i'>>2 = lane>>4
""" + fswz(T1, T1, TMP) + f"""
    v_and_b32 v{T3}, 3, v{T0}
    v_xor_b32 v{T1}, v{T1}, v{T3}
    v_lshlrev_b32 v{T1}, 4, v{T1}
    v_lshrrev_b32 v{T3}, 2, v{T0}
    v_lshl_add_u32 v{vQL}, v{T3}, 8, v{T1}
    ; V tr-read addresses: g=lane>>4, r=(lane>>2)&3, c=lane&3 : LDS_V + (4g+r)*256 + ((u^r)<<6) + 16c
    v_bfe_u32 v{T1}, v{T0}, 2, 2                ; r
    v_and_b32 v{T3}, 3, v{T0}                   ; c
    v_lshl_add_u32 v{T2}, v{T2}, 2, v{T1}       ; 4g+r
    v_lshlrev_b32 v{T2}, 8, v{T2}
    v_lshl_add_u32 v{T2}, v{T3}, 4, v{T2}
    v_add_u32 v{T2}, {LDS_V}, v{T2}
"""
    for u in range(4):
        s += f"    v_xor_b32 v{T3}, {u}, v{T1}\n    v_lshl_add_u32 v{vV[u]}, v{T3}, 6, v{T2}\n"
    s += f"""
    v_lshlrev_b32 v{vTCH}, 7, v{T0}             ; lane*128
    v_lshlrev_b32 v{T0}, 4, v{T0}               ; lane*16
    ; workgroup -> (group, half)
    s_and_b32 s{sT0}, s2, 7
    s_lshr_b32 s{sT1}, s2, 3
    s_lshl_b32 s{sT0}, s{sT0}, 4
    s_lshr_b32 s52, s{sT1}, 1
    s_add_u32 s{sT0}, s{sT0}, s52              ; group
    s_and_b32 s{sT1}, s{sT1}, 1                ; half
    s_lshl_b32 s{sKB}, s{sT0}, 17              ; group * 131072
    s_mul_i32 s{sQB}, s{sT0}, {1984 * 256}
    s_mul_i32 s52, s{sT1}, {992 * 256}
    s_add_u32 s{sQB}, s{sQB}, s52
    s_mul_i32 s53, s{sT1}, {Cfg.rot * 8192}      ; rotation
    s_mul_i32 s83, s{sT1}, {131072 - Cfg.rot * 8192}
    s_mov_b32 s84, s{sT1}                       ; half
    s_lshl_b32 s{sT0}, s{sW}, 11               ; w*2048
    s_add_u32 s{sVB}, s{sKB}, s{sT0}
    s_sub_u32 s{sVBH}, s{sVB}, s83
    s_add_u32 s{sVB}, s{sVB}, s53
    s_add_u32 s{sM0B}, s{sT0}, {LDS_V}
    s_mov_b32 s{sC}, {c:#x}
    s_mov_b32 s{sOOB}, 0x80000000
    s_mov_b64 s[{sFLAG}:{sFLAG+1}], 0
    s_mov_b32 s{sPASS}, 0
    s_lshl_b32 s{sROW}, s{sW}, 6
"""
    for j in range(4):
        s += f"    s_add_u32 s{sT0}, s{sROW}, {16*j}\n    s_lshl_b32 s{sT0}, s{sT0}, 8\n    s_add_u32 s{sQ[j]}, s{sT0}, s{sQB}\n    s_mov_b32 s{sO[j]}, s{sOOB}\n"
    s += f"""    s_lshr_b32 s{sT0}, s{sW}, 1
    s_lshl_b32 s{sT0}, s{sT0}, 13
    s_and_b32 s{sT1}, s{sW}, 1
    s_lshl_b32 s{sT1}, s{sT1}, 6
    s_add_u32 s{sT0}, s{sT0}, s{sT1}
    s_add_u32 s{sTL}, s{sT0}, s{sKB}
    s_sub_u32 s{sTH}, s{sTL}, s83
    s_add_u32 s{sTL}, s{sTL}, s53
"""
    s += f"""
    s_lshr_b32 s{sT0}, s{sW}, 1
    s_lshl_b32 s{sT0}, s{sT0}, 12
    s_and_b32 s{sT1}, s{sW}, 1
    s_lshl_b32 s52, s{sT1}, 7
    s_add_u32 s{sKL}, s{sKB}, s{sT0}
    s_add_u32 s{sKL}, s{sKL}, s52
    s_sub_u32 s{sKH}, s{sKL}, s83
    s_add_u32 s{sKL}, s{sKL}, s53
    s_lshl_b32 s{sT1}, s{sT1}, 11
    s_add_u32 s{sKM}, s{sT0}, s{sT1}
    v_add_u32 v{vKW[0]}, s{sKM}, v{T0}
    v_add_u32 v{vKW[1]}, 0x10000, v{vKW[0]}
    v_mov_b32 v{vTHR}, 0x3f803f80
    v_accvgpr_write_b32 a{ONES}, v{vTHR}
    v_accvgpr_write_b32 a{ONES+1}, v{vTHR}
    v_accvgpr_write_b32 a{ONES+2}, v{vTHR}
    v_accvgpr_write_b32 a{ONES+3}, v{vTHR}
    v_mov_b32 v{vTHR}, {f32bits(Cfg.thr):#x}
    s_waitcnt lgkmcnt(0)
"""
    for (srd, lo, size) in ((sSRD_Q, 4, Q_BYTES), (sSRD_K, 6, KV_BYTES), (sSRD_V, 8, KV_BYTES), (sSRD_O, 10, Q_BYTES)):
        s += f"    s_mov_b32 s{srd}, s{lo}\n    s_and_b32 s{srd+1}, s{lo+1}, 0xffff\n    s_mov_b32 s{srd+2}, {size}\n    s_mov_b32 s{srd+3}, 0x00020000\n"
    return s

LET = dict(valu="a", trans="E", perm="p", lds="L", vld="G", vst="Z", dma="D", salu="s", waitl="w", waitv="W", bar="B", nop="n", ldsw="l")
def show(ops):
    gaps = []; cur = None
    for o in ops:
        if o.kind == "mfma":
            cur = []; gaps.append(cur)
        elif o.kind != "phantom" and cur is not None:
            cur.append(LET[o.kind])
    tot = 0
    W = 64 + XS[0]
    for i in range(0, len(gaps), W):
        row = gaps[i:i + W]
        c = 0
        for g in row:
            v = sum(8 if x == "E" else 4 for x in g if x in "aEp")
            nm = [x for x in g if x not in "aEp"]
            mem = [x for x in nm if x in "LGZDl"]
            cost = 4 + max(4, 4 * len(nm) + (4 if mem else 0) - (4 if (mem and v == 0) else 0)) + v
            c += max(16.5, cost)
        tot += c
        print(f"it{i//W:2d} est {c:6.0f}: " + " ".join("".join(g) if g else "-" for g in row))
    print("est total", tot)

vST0, vST1 = 250, 251
def stamp_setup():
    return f"""    s_load_dwordx2 s[54:55], s[0:1], 40
    s_waitcnt lgkmcnt(0)
    s_mov_b32 s56, s54
    s_and_b32 s57, s55, 0xffff
    s_mov_b32 s58, 0x10000000
    s_mov_b32 s59, 0x00020000
    s_lshl_b32 s60, s2, 2
    s_add_u32 s60, s60, s{sW}
    s_lshl_b32 s60, s60, 8
"""
def stamp(i, dyn=False):
    t = f"""    s_memrealtime s[62:63]
    s_memtime s[64:65]
    s_waitcnt lgkmcnt(0)
    v_mov_b32 v251, s62
"""
    so = "s60"
    if dyn:
        t += f"    s_lshl_b32 s61, s{sPASS}, 2\n    s_add_u32 s61, s61, s60\n"; so = "s61"
    t += f"    buffer_store_dword v251, off, s[56:59], {so} offset:{4*i}\n    s_nop 3\n    v_mov_b32 v251, s64\n    buffer_store_dword v251, off, s[56:59], {so} offset:{4*i+128}\n"
    return t

def slow_path_text():
    t = []
    A_ = t.append
    vKa, vVa, vMx = TMP, TMP + 1, TMP + 2
    vL = TMP + 6
    vU = TMP + 10
    sT, sP, sSo, sVs = 78, 79, 85, 86
    A_("L_slow:")
    A_("    s_waitcnt vmcnt(0) lgkmcnt(0)")
    A_(f"    v_mbcnt_lo_u32_b32 v{vU}, -1, 0")
    A_(f"    v_mbcnt_hi_u32_b32 v{vU}, -1, v{vU}")
    A_(f"    v_lshrrev_b32 v{vVa}, 4, v{vU}")
    A_(f"    v_lshlrev_b32 v{vVa}, 10, v{vVa}")
    A_(f"    v_bfe_u32 v{vU+1}, v{vU}, 2, 2")
    A_(f"    v_lshl_add_u32 v{vVa}, v{vU+1}, 4, v{vVa}")
    A_(f"    v_and_b32 v{vU+1}, 3, v{vU}")
    A_(f"    v_lshl_add_u32 v{vVa}, v{vU+1}, 1, v{vVa}")
    A_(f"    s_lshl_b32 s{sROW}, s{sW}, 6")
    A_(f"    s_mov_b32 s{sP}, 0")
    A_("L_slow_pass:")
    for j in range(4):
        A_(f"    s_add_u32 s{sT0}, s{sROW}, {16*j}")
        A_(f"    s_lshl_b32 s{sT1}, s{sT0}, 8")
        A_(f"    s_add_u32 s{sT1}, s{sT1}, s{sQB}")
        A_(f"    s_cmp_lt_u32 s{sT0}, 992")
        A_(f"    s_cselect_b32 s{sQ[j]}, s{sT1}, s{sOOB}")
    for j in range(4):
        for ss in range(4):
            A_(f"    buffer_load_dwordx4 a[{Q_(j,ss)}:{Q_(j,ss)+3}], v{vQO}, s[{sSRD_Q}:{sSRD_Q+3}], s{sQ[j]} offen offset:{64*ss}")
    for j in range(4): A_(f"    v_mov_b32 v{vMx+j}, 0xff800000")
    A_("    s_waitcnt vmcnt(0)")
    def kload():
        for kvt in range(2):
            for ss in range(4):
                A_(f"    ds_read_b128 a[{KF_(kvt,ss)}:{KF_(kvt,ss)+3}], v{vKa} offset:{kvt*4096+ss*1024}")
        A_("    s_waitcnt lgkmcnt(0)")
    def qk(usenm):
        for kvt in range(2):
            for j in range(4):
                for ss in range(4):
                    d = S_(kvt, j)
                    c = (f"v[{NM_(j)}:{NM_(j)+3}]" if usenm else "0") if ss == 0 else f"v[{d}:{d+3}]"
                    A_(f"    v_mfma_f32_16x16x32_bf16 v[{d}:{d+3}], a[{KF_(kvt,ss)}:{KF_(kvt,ss)+3}], a[{Q_(j,ss)}:{Q_(j,ss)+3}], {c}")
        A_("    s_nop 15")
    A_(f"    v_mov_b32 v{vKa}, v{vK0}")
    A_(f"    s_mov_b32 s{sT}, 0")
    A_("L_slow_max:")
    kload(); qk(False)
    for j in range(4):
        for kvt in range(2):
            d = S_(kvt, j)
            A_(f"    v_max3_f32 v{vMx+j}, v{vMx+j}, v{d}, v{d+1}")
            A_(f"    v_max3_f32 v{vMx+j}, v{vMx+j}, v{d+2}, v{d+3}")
    A_(f"    v_add_u32 v{vKa}, 8192, v{vKa}")
    A_(f"    s_add_u32 s{sT}, s{sT}, 1")
    A_(f"    s_cmp_lt_u32 s{sT}, 16")
    A_("    s_nop 7")
    A_("    s_cbranch_scc1 L_slow_max")
    def xlane(reg, op):
        for sw in ("v_permlane16_swap_b32", "v_permlane32_swap_b32"):
            A_(f"    v_mov_b32 v{vU}, v{reg}")
            A_("    s_nop 1")
            A_(f"    {sw} v{reg}, v{vU}")
            A_("    s_nop 1")
            A_(f"    {op} v{reg}, v{reg}, v{vU}")
    for j in range(4):
        xlane(vMx + j, "v_max_f32")
        for i in range(4): A_(f"    v_sub_f32 v{NM_(j)+i}, 0, v{vMx+j}")
        A_(f"    v_mov_b32 v{vL+j}, 0")
    for r in range(128): A_(f"    v_mov_b32 v{r}, 0")
    A_(f"    v_mov_b32 v{vKa}, v{vK0}")
    A_(f"    s_mov_b32 s{sT}, 0")
    A_("L_slow_pv:")
    A_(f"    s_mul_i32 s{sVs}, s84, {Cfg.rot}")
    A_(f"    s_add_u32 s{sVs}, s{sVs}, s{sT}")
    A_(f"    s_and_b32 s{sVs}, s{sVs}, 15")
    A_(f"    s_lshl_b32 s{sVs}, s{sVs}, 13")
    A_(f"    s_add_u32 s{sVs}, s{sVs}, s{sKB}")
    A_(f"    s_add_u32 s{sSo}, s{sVs}, 4096")
    kload(); qk(True)
    for j in range(4):
        for kvt in range(2):
            d = S_(kvt, j)
            for i in range(4): A_(f"    v_exp_f32 v{d+i}, v{d+i}")
            A_("    s_nop 0")
            for h in range(2): A_(f"    v_cvt_pk_bf16_f32 v{P_(0,j)+2*kvt+h}, v{d+2*h}, v{d+2*h+1}")
            for i in range(4): A_(f"    v_add_f32 v{vL+j}, v{vL+j}, v{d+i}")
    raw = P_(1, 0); pk = P_(1, 2)
    for dt in range(8):
        u, b = dt // 2, dt % 2
        for kvt in range(2):
            so = sVs if kvt == 0 else sSo
            for r in range(4):
                A_(f"    buffer_load_ushort v{raw + 4*kvt + r}, v{vVa}, s[{sSRD_V}:{sSRD_V+3}], s{so} offen offset:{r*256 + (32*u + 4*b)*2}")
        A_("    s_waitcnt vmcnt(0)")
        for h in range(4):
            A_(f"    v_lshl_or_b32 v{pk + h}, v{raw + 2*h + 1}, 16, v{raw + 2*h}")
        A_("    s_nop 1")
        for j in range(4):
            o = O_(dt, j)
            A_(f"    v_mfma_f32_16x16x32_bf16 v[{o}:{o+3}], v[{pk}:{pk+3}], v[{P_(0,j)}:{P_(0,j)+3}], v[{o}:{o+3}]")
        A_("    s_nop 7")
    A_(f"    v_add_u32 v{vKa}, 8192, v{vKa}")
    A_(f"    s_add_u32 s{sT}, s{sT}, 1")
    A_(f"    s_cmp_lt_u32 s{sT}, 16")
    A_("    s_nop 15")
    A_("    s_cbranch_scc1 L_slow_pv")
    for j in range(4):
        xlane(vL + j, "v_add_f32")
        A_(f"    v_rcp_f32 v{vL+j}, v{vL+j}")
    A_("    s_nop 1")
    for u in range(4):
        for j in range(4):
            tb = S_(0, 0) + 4 * ((u * 4 + j) % 8)
            for b in range(2):
                o = O_(2 * u + b, j)
                for i in range(4): A_(f"    v_mul_f32 v{o+i}, v{o+i}, v{vL+j}")
                for h in range(2): A_(f"    v_cvt_pk_bf16_f32 v{tb+2*b+h}, v{o+2*h}, v{o+2*h+1}")
            A_(f"    buffer_store_dwordx4 v[{tb}:{tb+3}], v{vQO}, s[{sSRD_O}:{sSRD_O+3}], s{sQ[j]} offen offset:{64*u}")
            A_("    s_nop 1")
    A_("    s_waitcnt vmcnt(0)")
    A_(f"    s_add_u32 s{sROW}, s{sROW}, 256")
    A_(f"    s_add_u32 s{sP}, s{sP}, 1")
    A_(f"    s_cmp_lt_u32 s{sP}, 4")
    A_("    s_cbranch_scc1 L_slow_pass")
    A_("    s_endpgm")
    txt = "\n".join(t) + "\n"
    return txt

def SLOWV(dt): return VF_(dt)

def main():
    ap = argparse.ArgumentParser()
    ap.add_argument("-o", default="standalone__gqa_softmax__near_ridge.s")
    ap.add_argument("--backlog", type=int, default=3)
    ap.add_argument("--lead", type=int, default=7)
    ap.add_argument("--show", action="store_true")
    ap.add_argument("--stamp", action="store_true")
    ap.add_argument("--stflags", default="")
    ap.add_argument("--qflags", default="")
    ap.add_argument("--kflags", default="")
    ap.add_argument("--vflags", default="")
    ap.add_argument("--abl", default="")
    ap.add_argument("--rot", type=int, default=0)
    ap.add_argument("--tflags", default="")
    ap.add_argument("--simple", action="store_true")
    ap.add_argument("--kahead", type=int, default=6)
    ap.add_argument("--kissue", type=int, default=2)
    ap.add_argument("--winspace", type=int, default=9)
    ap.add_argument("--nointer", action="store_true")
    ap.add_argument("--touchall", action="store_true")
    ap.add_argument("--qstart0", type=int, default=3)
    ap.add_argument("--qspace0", type=int, default=40)
    ap.add_argument("--initx", type=int, default=1)
    ap.add_argument("--x", type=int, default=0)
    ap.add_argument("--x0", type=int, default=0)
    ap.add_argument("--kfirst", type=int, default=4)
    ap.add_argument("--kbnovalu", action="store_true")
    ap.add_argument("--stampbar", action="store_true")
    ap.add_argument("--pf", type=int, default=6)
    ap.add_argument("--nopk", action="store_true")
    ap.add_argument("--stspace", type=int, default=14)
    ap.add_argument("--qstart", type=int, default=5)
    ap.add_argument("--qspace", type=int, default=24)
    ap.add_argument("--bargap", type=int, default=11)
    args = ap.parse_args()
    for x in args.abl.split(","):
        if x: ABL.add(x)
    Cfg.backlog = args.backlog; Cfg.lds_lead = args.lead
    Cfg.pf = args.pf
    Cfg.t_flags = (' ' + args.tflags) if args.tflags else ''
    Cfg.kb_novalu = args.kbnovalu
    Cfg.k_first = args.kfirst
    Cfg.q_start0 = args.qstart0; Cfg.q_space0 = args.qspace0
    if args.initx == 0:
        Cfg.early_list = Cfg.init_extra + Cfg.early_list; Cfg.init_extra = []
    elif args.initx == 2:
        Cfg.init_extra = Cfg.init_extra + Cfg.early_list; Cfg.early_list = []
    Cfg.touch_all = args.touchall
    if args.nointer: Cfg.interleave = 0
    Cfg.win_space = args.winspace
    Cfg.simple = args.simple; Cfg.k_ahead = args.kahead; Cfg.k_issue = args.kissue
    Cfg.rot = args.rot; Cfg.pkmul = not args.nopk
    Cfg.st_space = args.stspace; Cfg.q_start = args.qstart; Cfg.q_space = args.qspace; Cfg.bar_gap = args.bargap
    Cfg.st_flags = (" " + args.stflags) if args.stflags else ""
    Cfg.q_flags = (" " + args.qflags) if args.qflags else ""
    Cfg.k_flags = (" " + args.kflags) if args.kflags else ""
    Cfg.v_flags = (" " + args.vflags) if args.vflags else ""

    def pol(k, remaining, ready, emit_, state):
        state["backlog"] = Cfg.backlog
        default_policy(k, remaining, ready, emit_, state)
    noff0 = next_offsets_ops()
    tail = parked_stores(15)
    if Cfg.simple:
        XS[0] = args.x
        init_ops = []
        body0, vd0 = build_simple_prologue()
        body, late = build_body(False, None)
        for o in body:
            if o.kind == "waitv" and o.name == "vw0": o.covers = vd0 + late
        body0_sched = schedule(body0, pol, verbose=True)
        body_sched = schedule(body, pol, verbose=True)
        setx = Op("", "valu", [], regs("a", X_(0), 64), None, {r: ("OX", -1, None, u, j) for u in range(4) for j in range(4) for r in regs("a", X_(u * 4 + j), 4)})
        trace = [(body0_sched, 0), ([setx], 0), (noff0, 0)] + [(body_sched, p) for p in range(0, 4)] + [(tail, 3)]
    else:
        init_ops, info = init_issue_ops()
        XS[0] = args.x0
        body0, late0 = build_body(True, info)
        XS[0] = args.x
        body, late = build_body(False, None)
        for o in body:
            if o.kind == "waitv" and o.name == "vw0": o.covers = late0 + late
        body0_sched = schedule(body0, pol, verbose=True)
        body_sched = schedule(body, pol, verbose=True)
        trace = [(init_ops, 0), (noff0, 0), (body0_sched, 0)] + [(body_sched, p) for p in range(1, 4)] + [(tail, 3)]
    resolve_waits(trace)
    errs = check_trace(trace)
    for e in errs[:40]: print("ERR", e)
    print("errors:", len(errs))
    nm = sum(1 for o in body_sched if o.kind == "mfma")
    print("body instrs:", sum(1 for o in body_sched if o.kind != "phantom"), "mfma:", nm, " body0 instrs:", sum(1 for o in body0_sched if o.kind != "phantom"))
    if args.show:
        XS[0] = args.x0; show(body0_sched); XS[0] = args.x; show(body_sched)

    s = f"""; GQA attention forward, bf16, B=16 Hq=32 Hkv=8 Sq=496 Sk=512 D=128  (generated by gen/gen.py)
; @launch grid=(256,1,1) block=(256,1,1) lds=163840
.amdgcn_target "amdgcn-amd-amdhsa--gfx950"
.text
.globl {KNAME}
.p2align 8
.type {KNAME},@function
{KNAME}:
"""
    pt = prologue_text()
    pf = ""
    if Cfg.pf:
        pf = f"""    s_getpc_b64 s[80:81]
L_pc:
    v_lshlrev_b32 v{TMP+12}, {Cfg.pf}, v0
    s_mov_b32 s82, L_code_end-L_pc-4
"""
        step = 256 << Cfg.pf
        for i in range((Cfg.code_bytes + step - 1) // step):
            pf += f"    v_min_u32 v{TMP+13}, s82, v{TMP+12}\n    global_load_dword v{TMP+14+i%4}, v{TMP+13}, s[80:81]\n    v_add_u32 v{TMP+12}, {step}, v{TMP+12}\n"
    pt = pt.replace("PREFETCH\n", pf)
    if args.stamp:
        a, b = pt.split("    ; workgroup -> (group, half)")
        pt = a + stamp_setup() + stamp(0) + "    ; workgroup -> (group, half)" + b
    s += pt
    s += emit_fix(init_ops)
    if not Cfg.simple: s += emit(noff0)
    if args.stamp: s += stamp(1)
    b0 = emit(body0_sched)
    if args.stamp and args.stampbar:
        parts = b0.split("    s_barrier\n")
        b0 = parts[0]
        for k, p_ in enumerate(parts[1:]):
            b0 += "    s_barrier\n" + stamp(8 + k) + p_
    s += b0
    if Cfg.simple: s += emit(noff0)
    if args.stamp: s += stamp(2)
    s += f"    s_mov_b32 s{sPASS}, {0 if Cfg.simple else 1}\n"
    s += ".p2align 6\nL_pass:\n"
    b1 = emit(body_sched)
    if args.stamp and args.stampbar:
        parts = b1.split("    s_barrier\n")
        b1 = stamp(18) + parts[0]
        for k, p_ in enumerate(parts[1:]):
            b1 += "    s_barrier\n" + stamp(19 + k) + p_
        idx = b1.rindex("    v_mfma")
        idx = b1.index("\n", idx) + 1
        b1 = b1[:idx] + stamp(27) + b1[idx:] + stamp(28)
    s += b1
    if args.stamp: s += stamp(3 if Cfg.simple else 2, dyn=True)
    s += f"""    s_add_u32 s{sPASS}, s{sPASS}, 1
    s_cmp_lt_u32 s{sPASS}, 4
    s_cbranch_scc1 L_pass
"""
    s += emit(tail)
    if args.stamp: s += "    s_waitcnt vmcnt(0)\n" + stamp(7 if Cfg.simple else 6)
    s += f"""    s_cmp_lg_u64 s[{sFLAG}:{sFLAG+1}], 0
    s_cbranch_scc1 L_slow
L_end:
    s_endpgm
L_code_end:
"""
    s += slow_path_text()
    s += f"""
.section .rodata,"a"
.p2align 6
.amdhsa_kernel {KNAME}
  .amdhsa_next_free_vgpr 512
  .amdhsa_next_free_sgpr 88
  .amdhsa_accum_offset 256
  .amdhsa_group_segment_fixed_size 0
  .amdhsa_kernarg_size 48
  .amdhsa_user_sgpr_count 2
  .amdhsa_user_sgpr_kernarg_segment_ptr 1
  .amdhsa_system_sgpr_workgroup_id_x 1
.end_amdhsa_kernel
"""
    open(args.o, "w").write(s)

if __name__ == "__main__":
    main()
```

```python
import sys, os, struct, argparse
sys.path.insert(0, os.path.dirname(os.path.abspath(__file__)))
from sched import *

KNAME = "standalone__gqa_softmax__near_ridge_kernel"

def O_(dt, j): return (dt * 4 + j) * 4
def S_(kvt, j): return 128 + (kvt * 4 + j) * 4
def P_(buf, j): return 160 + buf * 16 + j * 4
def NM_(j): return 192 + 4 * j
def LS0_(j): return 208 + j
def LS1_(j): return 212 + j
TMP = 216
vK0, vK1 = 240, 241
vV = [242, 243, 244, 245]
vQO = 246
vDMA = 247
vRC = [248, 249, 250, 251]
def vRCP(j): return 248 + j
vQL = 252
vSTW = 253
vSTR = 254
vTHR = 255
def Q_(j, s): return (j * 4 + s) * 4
def X_(n): return 64 + n * 4
def KF_(kvt, s, par=0): return 128 + par * 32 + (kvt * 4 + s) * 4
def VF_(dt): return 192 + dt * 4
def L_(j): return 224 + 4 * j
ONES = 240
XS = [0]
def msum(j): return j >= 4 - XS[0]
def KR_(s): return 224 + 4 * s

sSRD_Q, sSRD_K, sSRD_V, sSRD_O = 12, 16, 20, 24
sW = 28; sPASS = 29
sQ = [30, 31, 32, 33]
sO = [34, 35, 36, 37]
sVB = 38; sVO = 39; sM0B = 40; sQB = 41
sFLAG = 42
sROW = 44
sT0, sT1 = 45, 46
sC = 47
sKB = 49; sOOB = 50; sVO2 = 51
sOP = [66, 67, 68, 69]
sVBH = 70
sKL, sKH = 71, 72
sKM = 73
sKO = 74
sVT, sVTH = 75, 76
vKW = [248, 249]
vTCH = 253

LDS_V = 131072
LDS_STG = 31 * 4096
Q_BYTES = 16 * 32 * 496 * 128 * 2
KV_BYTES = 16 * 8 * 512 * 128 * 2
CSCALE = (128 ** -0.5) * 1.4426950408889634
def f32bits(x): return struct.unpack("<I", struct.pack("<f", x))[0]

class Cfg:
    backlog = 3
    lds_lead = 7
    thr = 2.0 ** 30
    pkmul = True
    rot = 0
    kall = False
    k_ahead = 6
    k_issue = 2
    simple = False
    interleave = 2
    win_space = 9
    st_plan = [(n // 4, n % 4) for n in range(16)]
    q_plan = [(1, 4), (1, 5), (1, 6), (2, 4), (2, 5), (2, 6), (3, 4), (3, 5), (3, 6), (4, 0), (4, 2), (4, 4), (4, 6), (5, 0), (5, 2), (5, 4)]
    kb_off = 12
    touch_all = False
    touch_ahead = 8
    k_first = 4
    early0 = 2
    qcopy_span = 70
    kb_novalu = False
    t_flags = ''
    init_extra = [("t", 2), ("k", 4), ("k", 5)]
    early_list = [("t", 4), ("k", 6), ("k", 7), ("t", 6)]
    pf = 6
    code_bytes = 60000
    st_space = 14
    q_start = 5
    q_start0 = 3
    q_space0 = 40
    q_space = 24
    bar_gap = 11
    st_flags = ""
    q_flags = ""
    k_flags = ""
    v_flags = ""

def V(i): return f"v{i}"
def A(i): return f"a{i}"

def mfma(d, dpre, a, apre, b, bpre, c=None, rtag=None, wtag=None):
    dr = regs(dpre, d, 4)
    reads = regs(apre, a, 4) + regs(bpre, b, 4)
    if c is None:
        ctext = "0"; srcc = []
    else:
        ctext = rng(dpre, c, 4); srcc = regs(dpre, c, 4); reads += srcc
    return Op(f"v_mfma_f32_16x16x32_bf16 {rng(dpre, d, 4)}, {rng(apre, a, 4)}, {rng(bpre, b, 4)}, {ctext}", "mfma",
              reads, dr, rtag, wtag, srcc=srcc)

def valu(text, reads, writes, rtag=None, wtag=None, kind="valu"):
    return Op(text, kind, reads, writes, rtag, wtag)

def salu(text, reads=(), writes=()):
    return Op(text, "salu", reads, writes)

def ds_read(dst, n, vaddr, off, tagf, tr=False, extra_reads=(), lead=None):
    d = regs("a", dst, n)
    ins = "ds_read_b64_tr_b16" if tr else "ds_read_b128"
    return Op(f"{ins} {rng('a', dst, n)}, v{vaddr} offset:{off}", "lds", [V(vaddr)] + list(extra_reads),
              d + ["pend:" + r for r in d], None, {r: tagf for r in d}, lead=Cfg.lds_lead if lead is None else lead)

def wait(kind, loads, extra_covers=()):
    rs = []; ws = []
    for l in loads:
        for w in l.writes:
            if w.startswith("pend:"):
                rs.append(w); ws.append(w[5:])
    return Op("", kind, rs, ws, covers=list(loads) + list(extra_covers))

def k_reads(t, kvt):
    ops = []
    for s in range(4):
        off = t * 8192 + kvt * 4096 + s * 1024
        va = vK0
        if off >= 65536: off -= 65536; va = vK1
        ops.append(ds_read(KF_(kvt, s, t % 2), 4, va, off, ("K", None, None, t, kvt, s)))
    return ops

def kreg(t, kvt, s):
    return KF_(kvt, s, t % 2)

def v_reads(t, dt):
    slot = t % 4
    u, b = dt // 2, dt % 2
    ops = []
    for kvt in range(2):
        off = slot * 8192 + kvt * 4096 + 8 * b
        ops.append(ds_read(VF_(dt) + 2 * kvt, 2, vV[u], off, ("V", None, None, t, dt, kvt), tr=True,
                           extra_reads=[f"ps:vready{t // 2 % 2}"]))
    return ops

def qk_chain(n, kvt, j, first):
    t = n % 16; rp = n // 16
    l = []
    for s in range(4):
        q = X_(j * 4 + s) if n == 16 else Q_(j, s); kr = kreg(t, kvt, s)
        rt = {r: ("K", None, None, t, kvt, s) for r in regs("a", kr, 4)}
        rt.update({r: ("Q", None, rp, j, s) for r in regs("a", q, 4)})
        if s == 0:
            if first and kvt == 0: c = None
            else:
                c = NM_(j); rt.update({r: ("NM", None, rp, j) for r in regs("v", c, 4)})
        else:
            c = S_(kvt, j); rt.update({r: ("Sp", n, None, kvt, j, s - 1) for r in regs("v", c, 4)})
        wt = {r: (("Sp", n, None, kvt, j, s) if s < 3 else ("S", n, None, kvt, j, i))
              for i, r in enumerate(regs("v", S_(kvt, j), 4))}
        if s == 3 and first and kvt == 0:
            wt = {r: ("Sraw", n, None, kvt, j, i) for i, r in enumerate(regs("v", S_(kvt, j), 4))}
        l.append(mfma(S_(kvt, j), "v", kr, "a", q, "a", c, rt, wt))
    return l

def max_ops(n, j):
    rp = n // 16
    ops = []
    s = S_(0, j); t = TMP + 2 * j; u = TMP + 2 * j + 1
    raw = lambda i: {V(s + i): ("Sraw", n, None, 0, j, i)}
    rt = {}; [rt.update(raw(i)) for i in range(3)]
    ops.append(valu(f"v_max3_f32 v{t}, v{s}, v{s+1}, v{s+2}", [V(s), V(s+1), V(s+2)], [V(t)], rt))
    ops.append(valu(f"v_max_f32 v{t}, v{t}, v{s+3}", [V(t), V(s+3)], [V(t)], raw(3)))
    for sw in ("v_permlane16_swap_b32", "v_permlane32_swap_b32"):
        ops.append(valu(f"v_mov_b32 v{u}, v{t}", [V(t)], [V(u)]))
        ops.append(valu(f"{sw} v{t}, v{u}", [V(t), V(u)], [V(t), V(u)], kind="perm"))
        ops.append(valu(f"v_max_f32 v{t}, v{t}, v{u}", [V(t), V(u)], [V(t)]))
    for i in range(4):
        ops.append(valu(f"v_sub_f32 v{NM_(j)+i}, 0, v{t}", [V(t)], [V(NM_(j)+i)], None, {V(NM_(j)+i): ("NM", None, rp, j)}))
    for i in range(4):
        ops.append(valu(f"v_sub_f32 v{s+i}, v{s+i}, v{t}", [V(s+i), V(t)], [V(s+i)], raw(i), {V(s+i): ("S", n, None, 0, j, i)}))
    return ops

def sm_ops(n, kvt, j):
    ops = []
    s = S_(kvt, j); buf = n % 2
    t = n % 16
    for i in range(4):
        ops.append(valu(f"v_exp_f32 v{s+i}, v{s+i}", [V(s+i)], [V(s+i)], {V(s+i): ("S", n, None, kvt, j, i)},
                        {V(s+i): ("E", n, None, kvt, j, i)}, kind="trans"))
        et = {V(s+i): ("E", n, None, kvt, j, i)}
        if msum(j): pass
        elif t == 0:
            if kvt == 0 and i == 0: pass
            elif kvt == 0 and i == 1:
                ops.append(valu(f"v_add_f32 v{LS0_(j)}, v{s}, v{s+1}", [V(s), V(s+1)], [V(LS0_(j))], et))
            else:
                ops.append(valu(f"v_add_f32 v{LS0_(j)}, v{LS0_(j)}, v{s+i}", [V(LS0_(j)), V(s+i)], [V(LS0_(j))], et))
        elif t == 1 and kvt == 0 and i == 0:
            ops.append(valu(f"v_add_f32 v{LS1_(j)}, v{LS0_(j)}, v{s+i}", [V(LS0_(j)), V(s+i)], [V(LS1_(j))], et))
        else:
            ops.append(valu(f"v_add_f32 v{LS1_(j)}, v{LS1_(j)}, v{s+i}", [V(LS1_(j)), V(s+i)], [V(LS1_(j))], et))
        if i % 2 == 1:
            pr = P_(buf, j) + 2 * kvt + i // 2
            rt = {V(s+i-1): ("E", n, None, kvt, j, i-1), V(s+i): ("E", n, None, kvt, j, i)}
            ops.append(valu(f"v_cvt_pk_bf16_f32 v{pr}, v{s+i-1}, v{s+i}", [V(s+i-1), V(s+i)], [V(pr)], rt,
                            {V(pr): ("P", n, None, j, 2 * kvt + i // 2)}))
    return ops

def pv_ops(n, dt):
    t = n % 16; buf = n % 2
    l = []
    for j in range(4):
        rt = {}
        for kvt in range(2):
            rt.update({r: ("V", None, None, t, dt, kvt) for r in regs("a", VF_(dt) + 2 * kvt, 2)})
        rt.update({r: ("P", n, None, j, i) for i, r in enumerate(regs("v", P_(buf, j), 4))})
        if t == 0: c = None
        else:
            c = O_(dt, j); rt.update({r: ("O", n - 1, None, dt, j) for r in regs("v", c, 4)})
        wt = {r: ("O", n, None, dt, j) for r in regs("v", O_(dt, j), 4)}
        l.append(mfma(O_(dt, j), "v", VF_(dt), "a", P_(buf, j), "v", c, rt, wt))
    return l

def sum_ops(n):
    t = n % 16; buf = n % 2
    l = []
    for j in range(4):
        if not msum(j): continue
        rt = {r: ("P", n, None, j, i) for i, r in enumerate(regs("v", P_(buf, j), 4))}
        c = None if t == 0 else L_(j)
        l.append(mfma(L_(j), "a", ONES, "a", P_(buf, j), "v", c, rt, None))
    return l

def q_raw_loads(rp, direct=False):
    ops = []
    for j in range(4):
        for s in range(4):
            d = Q_(j, s) if direct else X_(j * 4 + s)
            dr = regs("a", d, 4)
            ops.append(Op(f"buffer_load_dwordx4 {rng('a', d, 4)}, v{vQO}, s[{sSRD_Q}:{sSRD_Q+3}], s{sQ[j]} offen offset:{64*s}{Cfg.q_flags}",
                          "vld", [V(vQO), f"s{sQ[j]}"], dr + ["pend:" + r for r in dr], None,
                          {r: ("Q", None, rp, j, s) for r in dr}))
    return ops

def q_copy(rp, j, s):
    ops = []
    for i in range(4):
        x = X_(j * 4 + s) + i; q = Q_(j, s) + i
        ops.append(valu(f"v_accvgpr_mov_b32 a{q}, a{x}", [A(x)], [A(q)], {A(x): ("Q", None, rp, j, s)}, {A(q): ("Q", None, rp, j, s)}))
    return ops

def dma_ops(t):
    slot = t % 4
    so = sVO if t % 2 == 0 else sVO2
    ops = [salu(f"s_add_u32 m0, s{sM0B}, {slot * 8192}", [f"s{sM0B}"], ["m0"]),
           salu(f"s_add_u32 s{so}, s{sVB if t < 16 - Cfg.rot else sVBH}, {t * 8192}", [f"s{sVB}"], [f"s{so}"])]
    for h in range(2):
        ops.append(Op(f"buffer_load_dwordx4 v{vDMA}, s[{sSRD_V}:{sSRD_V+3}], s{so} offen offset:{1024*h}{Cfg.v_flags} lds", "dma",
                      [V(vDMA), f"s{so}", "m0", f"ps:vfree{t // 2 % 2}"], [f"ps:vdst{t%4}_{h}"]))
    return ops

def epilogue_ops(n):
    ops = []
    for j in range(4):
        t = TMP + 8 + 2 * j; u = TMP + 8 + 2 * j + 1
        if msum(j):
            ops.append(valu(f"v_accvgpr_read_b32 v{t}, a{L_(j)}", [A(L_(j))], [V(t)]))
        else:
            ops.append(valu(f"v_mov_b32 v{t}, v{LS1_(j)}", [V(LS1_(j))], [V(t)]))
        for sw in ("v_permlane16_swap_b32", "v_permlane32_swap_b32"):
            if msum(j): break
            ops.append(valu(f"v_mov_b32 v{u}, v{t}", [V(t)], [V(u)]))
            ops.append(valu(f"{sw} v{t}, v{u}", [V(t), V(u)], [V(t), V(u)], kind="perm"))
            ops.append(valu(f"v_add_f32 v{t}, v{t}, v{u}", [V(t), V(u)], [V(t)]))
        ops.append(valu(f"v_rcp_f32 v{vRC[j]}, v{t}", [V(t)], [V(vRC[j])], kind="trans"))
        ops.append(valu(f"v_cmp_nle_f32 vcc, v{t}, v{vTHR}", [V(t), V(vTHR)], ["vcc"]))
        ops.append(salu(f"s_or_b64 s[{sFLAG}:{sFLAG+1}], s[{sFLAG}:{sFLAG+1}], vcc", ["vcc", f"s{sFLAG}"], [f"s{sFLAG}"]))
    cnt = 0
    for u in range(4):
        for j in range(4):
            tb = TMP + 16 + 4 * (cnt % 2); cnt += 1
            for b in range(2):
                o = O_(2 * u + b, j)
                if Cfg.pkmul:
                    for i in (0, 2):
                        pb = 248 + (j & ~1); sel = j & 1
                        op = valu(f"v_pk_mul_f32 v[{o+i}:{o+i+1}], v[{o+i}:{o+i+1}], v[{pb}:{pb+1}] op_sel:[0,{sel}] op_sel_hi:[1,{sel}]",
                                  [V(o+i), V(o+i+1), V(vRC[j])], [V(o+i), V(o+i+1)],
                                  {V(o+i): ("O", n, None, 2 * u + b, j), V(o+i+1): ("O", n, None, 2 * u + b, j)})
                        op.reads.append("ps:nomfma")
                        ops.append(op)
                else:
                    for i in range(4):
                        ops.append(valu(f"v_mul_f32 v{o+i}, v{o+i}, v{vRC[j]}", [V(o+i), V(vRC[j])], [V(o+i)],
                                        {V(o+i): ("O", n, None, 2 * u + b, j)}))
                for h in range(2):
                    ops.append(valu(f"v_cvt_pk_bf16_f32 v{tb+2*b+h}, v{o+2*h}, v{o+2*h+1}", [V(o+2*h), V(o+2*h+1)], [V(tb+2*b+h)]))
            x = X_(u * 4 + j)
            for i in range(4):
                ops.append(valu(f"v_accvgpr_write_b32 a{x+i}, v{tb+i}", [V(tb+i)], [A(x+i)], None, {A(x+i): ("OX", n, None, u, j)}))
    return ops

def parked_stores(n):
    ops = []
    for u in range(4):
        for j in range(4):
            x = X_(u * 4 + j); xr = regs("a", x, 4)
            ops.append(Op(f"buffer_store_dwordx4 {rng('a', x, 4)}, v{vQO}, s[{sSRD_O}:{sSRD_O+3}], s{sOP[j]} offen offset:{64*u}{Cfg.st_flags}",
                          "vst", xr + [V(vQO), f"s{sOP[j]}"], [], {r: ("OX", n, None, u, j) for r in xr}))
    return ops

def k_dma_ops(t):
    ops = []
    for h in range(2):
        ops.append(salu(f"s_add_u32 m0, s{sKM}, {t * 8192 + h * 1024}", [f"s{sKM}"], ["m0"]))
        ops.append(salu(f"s_add_u32 s{sKO}, s{sKL if t < 16 - Cfg.rot else sKH}, {t * 8192 + h * 64}", [], [f"s{sKO}"]))
        ops.append(Op(f"buffer_load_dwordx4 v{vQL}, s[{sSRD_K}:{sSRD_K+3}], s{sKO} offen{Cfg.k_flags} lds", "dma",
                      [V(vQL), f"s{sKO}", "m0"], [f"pend:ps:kraw{t}_{h}"]))
    return ops

def k_build_ops(t, idx):
    ops = []
    for h in range(2):
        base = TMP + 12 * ((2 * idx + h) % 2)
        off = t * 8192 + h * 1024
        va = vKW[0]
        if off >= 65536: off -= 65536; va = vKW[1]
        d = regs("v", base, 4)
        rd = Op(f"ds_read_b128 {rng('v', base, 4)}, v{va} offset:{off}", "lds", [V(va), f"ps:kraw{t}_{h}"],
                d + ["pend:" + r for r in d], lead=Cfg.lds_lead)
        ops.append(rd); ops.append(wait("waitl", [rd]))
        for i in range(4):
            if Cfg.kb_novalu and t >= 4: break
            r = base + i; a, b = base + 4 + 2 * i, base + 5 + 2 * i
            ops.append(valu(f"v_lshlrev_b32 v{a}, 16, v{r}", [V(r)], [V(a)]))
            ops.append(valu(f"v_and_b32 v{b}, 0xffff0000, v{r}", [V(r)], [V(b)]))
            ops.append(valu(f"v_mul_f32 v{a}, s{sC}, v{a}", [V(a)], [V(a)]))
            ops.append(valu(f"v_mul_f32 v{b}, s{sC}, v{b}", [V(b)], [V(b)]))
            ops.append(valu(f"v_cvt_pk_bf16_f32 v{r}, v{a}, v{b}", [V(a), V(b)], [V(r)]))
        ops.append(Op(f"ds_write_b128 v{va}, {rng('v', base, 4)} offset:{off}", "ldsw", [V(va)] + d, [f"ps:kw{t}_{h}", f"pend:ps:kws{t}_{h}"]))
    return ops

sTL, sTH, sTO = 75, 76, 77
def touch_ops(t):
    return [salu(f"s_add_u32 s{sTO}, s{sTL if t < 16 - Cfg.rot else sTH}, {t * 8192}", [], [f"s{sTO}"]),
            Op(f"buffer_load_dword a255, v{vTCH}, s[{sSRD_V}:{sSRD_V+3}], s{sTO} offen{Cfg.t_flags}", "vld",
               [V(vTCH), f"s{sTO}"], [A(255)])]

def next_offsets_ops():
    ops = []
    for j in range(4):
        ops.append(salu(f"s_mov_b32 s{sOP[j]}, s{sO[j]}", [f"s{sO[j]}"], [f"s{sOP[j]}"]))
        ops.append(salu(f"s_mov_b32 s{sO[j]}, s{sQ[j]}", [f"s{sQ[j]}"], [f"s{sO[j]}"]))
    ops.append(salu(f"s_add_u32 s{sROW}, s{sROW}, 256", [f"s{sROW}"], [f"s{sROW}", "scc"]))
    for j in range(4):
        o = Op(f"s_add_u32 s{sT0}, s{sROW}, {16*j}\n    s_lshl_b32 s{sT1}, s{sT0}, 8\n    s_add_u32 s{sT1}, s{sT1}, s{sQB}\n"
               f"    s_cmp_lt_u32 s{sT0}, 992\n    s_cselect_b32 s{sQ[j]}, s{sT1}, s{sOOB}", "salu",
               [f"s{sROW}", f"s{sQB}"], [f"s{sQ[j]}", f"s{sT0}", f"s{sT1}", "scc"])
        ops.append(o)
    return ops

def qk_seq(n, first):
    ops = []
    if first:
        for j in range(4): ops += qk_chain(n, 0, j, True)
        for j in range(4): ops += max_ops(n, j)
        for j in range(4): ops += qk_chain(n, 1, j, True)
    else:
        for j in range(4):
            for kvt in range(2): ops += qk_chain(n, kvt, j, False)
    return ops

G = lambda i, k: (64 + XS[0]) * i + k + GOFF[0]
GOFF = [0]

def init_issue_ops():
    ops = []; info = {"kd": {}, "vd": {}}
    def kd(t):
        d = k_dma_ops(t); ops.extend(d); info["kd"][t] = [o for o in d if o.kind == "dma"]
    for t in range(Cfg.k_first): kd(t)
    q = q_raw_loads(0, direct=True); ops.extend(q); info["q"] = q
    for t in range(Cfg.k_first, 4): kd(t)
    for t in (0, 1):
        d = dma_ops(t); ops.extend(d); info["vd"][t] = [o for o in d if o.kind == "dma"]
    for grp in Cfg.init_extra:
        if grp[0] == "t": ops.extend(touch_ops(grp[1]))
        else: kd(grp[1])
    return ops, info

def build_simple_prologue():
    ops = []; kd = {}
    prev = [None]
    def chain(d):
        for o in d:
            if prev[0] is not None: o.deps.append((prev[0], 0, 0))
            prev[0] = o
        ops.extend(d)
    def issue_k(t):
        d = k_dma_ops(t); chain(d); kd[t] = [o for o in d if o.kind == "dma"]
    AHEAD = Cfg.k_ahead
    for t in range(min(AHEAD, 16)): issue_k(t)
    later = []
    for t in range(AHEAD, 16): later.append(("k", t))
    q = q_raw_loads(0, direct=True)
    for n in range(0, 16, 2): later.append(("q", q[n:n + 2]))
    vd = []
    for t in (0, 1): later.append(("v", t))
    def issue_next(n):
        for _ in range(n):
            if not later: return
            k, a = later.pop(0)
            if k == "k": issue_k(a)
            elif k == "q": chain(a)
            elif k == "v":
                d = dma_ops(a); chain(d); vd.extend([o for o in d if o.kind == "dma"])
            else: chain(touch_ops(a))
    wr_all = []
    for t in range(16):
        w = wait("waitv", kd[t]); chain([w])
        kb = k_build_ops(t, t); chain(kb)
        wr_all += [o for o in kb if o.kind == "ldsw"]
        issue_next(Cfg.k_issue)
    issue_next(100)
    chain([wait("waitl", wr_all)])
    chain([Op("s_barrier", "bar", [f"ps:kws{t}_{h}" for t in range(16) for h in (0, 1)], ["ps:kready0"])])
    kr = k_reads(0, 0) + k_reads(0, 1)
    for o in kr: o.reads.append("ps:kready0")
    ops += kr
    ops.append(wait("waitl", kr[:4])); ops.append(wait("waitl", kr[4:]))
    for j in range(4): ops.append(wait("waitv", q[4 * j:4 * j + 4]))
    ops += qk_seq(0, True)
    x = 0
    for t in range(2, 16, 2):
        for o in touch_ops(t):
            o.minGap = 1 + 2 * x; o.cap = o.minGap; x += 1
            ops.append(o)
    kr = k_reads(1, 0) + k_reads(1, 1)
    for o in kr: o.reads.append("ps:kready0")
    ops += kr
    for j in range(4):
        for kvt in range(2): ops += sm_ops(0, kvt, j)
    ops.append(wait("waitl", kr[:4])); ops.append(wait("waitl", kr[4:]))
    return ops, vd

def build_body(pass0, info):
    ops = []
    dmas = {}
    kd = {}
    GOFF[0] = 0
    if pass0:
        kd = dict(info["kd"])
        GOFF[0] = 32
        pre = list(range(Cfg.k_first))
        wr_all = []
        for t in pre:
            w = wait("waitv", kd[t]); ops.append(w)
            kb = k_build_ops(t, t); ops += kb
            wr_all += [o for o in kb if o.kind == "ldsw"]
        ops.append(wait("waitl", wr_all))
        barA = Op("s_barrier", "bar", [f"ps:kws{t}_{h}" for t in pre for h in (0, 1)], ["ps:kready0"] + (["ps:kready1"] if 1 in pre else []))
        ops.append(barA)
        kr = k_reads(0, 0) + k_reads(0, 1)
        for o in kr: o.reads.append("ps:kready0")
        ops += kr
        ops.append(wait("waitl", kr[:4])); ops.append(wait("waitl", kr[4:]))
        for j in range(4):
            ops.append(wait("waitv", info["q"][4 * j:4 * j + 4]))
        ops += qk_seq(0, True)
        x = 0
        for grp in Cfg.early_list:
            d = touch_ops(grp[1]) if grp[0] == "t" else k_dma_ops(grp[1])
            for o in d:
                o.minGap = Cfg.early0 + x; o.cap = o.minGap; x += 1
            ops += d
            if grp[0] == "k": kd[grp[1]] = [o for o in d if o.kind == "dma"]
        if 1 not in pre:
            w = wait("waitv", kd[1]); w.cap = 0; ops.append(w)
            kb = k_build_ops(1, 1)
            for x, o in enumerate(kb): o.cap = 1 + x // 3
            ops += kb
            ops.append(wait("waitl", [o for o in kb if o.kind == "ldsw"]))
            barB = Op("s_barrier", "bar", [f"ps:kws1_{h}" for h in (0, 1)], ["ps:kready1"])
            barB.cap = 20
            ops.append(barB)
        kr = k_reads(1, 0) + k_reads(1, 1)
        for o in kr: o.reads.append("ps:kready1")
        ops += kr
        for j in range(4):
            for kvt in range(2): ops += sm_ops(0, kvt, j)
        ops.append(wait("waitl", kr[:4])); ops.append(wait("waitl", kr[4:]))
        dmas[0] = info["vd"][0]; dmas[1] = info["vd"][1]
    else:
        ps = parked_stores(-1)
        for x, o in enumerate(ps):
            if Cfg.interleave == 2:
                e, k = Cfg.st_plan[x]
                o.minGap = G(2 * e, Cfg.bar_gap + 12) + k * Cfg.win_space
            else:
                o.minGap = 2 + Cfg.st_space * x
            o.cap = o.minGap + 4
        ops += ps
    qraw = None
    for i in range(16):
        n = i + 1
        first = (n == 16)
        if first:
            for j in range(4):
                wq = wait("waitv", qraw[4 * j:4 * j + 4]); wq.cap = G(14, 4 + 8 * j); ops.append(wq)
        ops += qk_seq(n, first)
        if first:
            x = 0
            for j in range(4):
                for s_ in range(4):
                    for o in q_copy(1, j, s_):
                        o.cap = G(14, 10 + 8 * j) + ((x % 16) * Cfg.qcopy_span) // 16; x += 1
                        ops.append(o)
        extra_bar_reads = []
        if pass0 and i % 2 == 0 and i <= 12 and not (i == 0 and Cfg.k_first == 4):
            w = wait("waitv", kd[i + 2] + kd[i + 3]); ops.append(w)
            W_ = 64 + XS[0]
            if i > 2 or (i == 2):
                w.cap = G(i - 2, Cfg.bar_gap + Cfg.kb_off); w.minGap = w.cap
                span = 2 * W_ - Cfg.kb_off - 8
            else:
                w.cap = 0; span = 30
            kb = k_build_ops(i + 2, 0) + k_build_ops(i + 3, 1)
            for x, o in enumerate(kb):
                o.cap = w.cap + 2 + (x * span) // len(kb)
                o.minGap = o.cap - 2
            ops += kb
            wr = [o for o in kb if o.kind == "ldsw"]
            ops.append(wait("waitl", wr))
            extra_bar_reads = [f"ps:kws{t}_{h}" for t in (i + 2, i + 3) for h in (0, 1)]
        if i % 2 == 0:
            cov = []
            for t in (i, i + 1):
                if t in dmas: cov += dmas[t]
            wv = Op("", "waitv", [], [f"ps:vw{i}"], covers=cov)
            wv.name = f"vw{i}"
            if i > 0:
                for c in cov: wv.deps.append((c, 0, 0))
            wv.cap = G(i, Cfg.bar_gap - 1)
            ops.append(wv)
            wr = [f"ps:vready{i // 2 % 2}", f"ps:vfree{(i // 2 + 1) % 2}", f"ps:kbar{i}"]
            bar = Op("s_barrier", "bar", [f"ps:vw{i}", "ps:vused"] + extra_bar_reads, wr)
            bar.cap = G(i, Cfg.bar_gap); bar.minGap = G(i, Cfg.bar_gap - 2)
            ops.append(bar)
            x = 0
            for t in (i + 2, i + 3):
                d = dma_ops(t % 16)
                for o in d:
                    o.cap = G(i, Cfg.bar_gap + 2 + 2 * x); x += 1
                ops += d
                dmas[t] = [o for o in d if o.kind == "dma"]
            if i == 14: late = dmas[16] + dmas[17]
            if not pass0 and Cfg.touch_all:
                d = touch_ops((i + Cfg.touch_ahead) % 16)
                for o in d:
                    o.cap = G(i, Cfg.bar_gap + 2 + 2 * x); x += 1
                    o.reads.append(f"ps:kbar{i}")
                ops += d
            if pass0:
                if i + 8 < 16 and not Cfg.kall:
                    for t in (i + 8, i + 9):
                        d = k_dma_ops(t)
                        for o in d:
                            o.cap = G(i, Cfg.bar_gap + 2 + 2 * x); x += 1
                            if o.kind == "dma": o.reads.append(f"ps:kbar{i}")
                        ops += d; kd[t] = [o for o in d if o.kind == "dma"]
                if i + 8 < 16 or Cfg.touch_all:
                    d = touch_ops((i + 8) % 16)
                    for o in d:
                        o.cap = G(i, Cfg.bar_gap + 2 + 2 * x); x += 1
                        o.reads.append(f"ps:kbar{i}")
                    ops += d
        kr = k_reads((n + 1) % 16, 0) + k_reads((n + 1) % 16, 1)
        if pass0 and n + 1 < 16:
            tb = n + 1
            bi = (tb - 2) // 2 * 2
            for o in kr: o.reads.append(f"ps:kbar{bi}")
        ops += kr
        for j in range(4):
            for kvt in range(2):
                ops += sm_ops(n, kvt, j)
        ops += sum_ops(i)
        for dt in range(8):
            vr = v_reads(i, dt)
            ops += vr
            w = wait("waitl", vr)
            if dt == 7: w.writes.append("ps:vused")
            ops.append(w)
            pv = pv_ops(i, dt)
            if i == 15 and dt == 7: pv[-1].writes.append("ps:nomfma")
            ops += pv
        if kr:
            ops.append(wait("waitl", kr[:4]))
            if len(kr) > 4: ops.append(wait("waitl", kr[4:]))
        if i == 4:
            qraw = q_raw_loads(1)
            for x, o in enumerate(qraw):
                if Cfg.interleave == 2:
                    e, k = Cfg.q_plan[x]
                    o.minGap = G(2 * e, Cfg.bar_gap + 12) + k * Cfg.win_space
                elif pass0: o.minGap = G(Cfg.q_start0, 0) + Cfg.q_space0 * x
                elif Cfg.interleave: o.minGap = 2 + Cfg.st_space * x + Cfg.st_space // 2
                else: o.minGap = G(Cfg.q_start, 0) + Cfg.q_space * x
                o.cap = o.minGap + 4
            ops += qraw
    ops += epilogue_ops(15)
    ops += next_offsets_ops()
    return ops, late

ABL = set()
def emit(ops):
    lines = []
    for o in ops:
        t = optext(o)
        if t is None: continue
        if o.kind in ABL: continue
        lines.append("    " + t)
    return "\n".join(lines) + "\n"

T0, T1, T2, T3 = TMP + 8, TMP + 9, TMP + 10, TMP + 11
def fswz(dst, src, tmp):
    return f"    v_lshlrev_b32 v{tmp}, 1, v{src}\n    v_lshrrev_b32 v{dst}, v{tmp}, v{vTHR}\n    v_and_b32 v{dst}, 3, v{dst}\n"

def emit_fix(ops):
    lines = []
    for i, o in enumerate(ops):
        if o.kind == "dma" and i > 0 and "m0" in ops[i - 1].writes: lines.append("    s_nop 0")
        lines.append("    " + o.text)
    return "\n".join(lines) + "\n" if lines else ""

def prologue_text():
    c = f32bits(CSCALE)
    s = f"""
    s_cmp_ge_u32 s2, 256
    s_cbranch_scc1 L_end
    s_load_dwordx4 s[4:7], s[0:1], 0
    s_load_dwordx4 s[8:11], s[0:1], 16
PREFETCH
    v_and_b32 v{T0}, 63, v0                     ; lane
    v_lshrrev_b32 v{T1}, 6, v0                  ; wave
    v_mov_b32 v{vTHR}, 0x78                     ; lookup for f = (0,2,3,1)
    v_readfirstlane_b32 s{sW}, v{T1}
    ; i = lane%16, g = lane/16
    v_and_b32 v{T1}, 15, v{T0}
    v_lshrrev_b32 v{T2}, 4, v{T0}
    v_lshlrev_b32 v{vQO}, 8, v{T1}
    v_lshl_add_u32 v{vQO}, v{T2}, 4, v{vQO}     ; vQO = i*256 + g*16
    ; vK0 = (4i + (g ^ f(i>>2)))*16
    v_lshrrev_b32 v{T3}, 2, v{T1}
""" + fswz(T3, T3, TMP) + f"""
    v_xor_b32 v{T3}, v{T3}, v{T2}
    v_lshl_add_u32 v{T3}, v{T1}, 2, v{T3}
    v_lshlrev_b32 v{vK0}, 4, v{T3}
    v_add_u32 v{vK1}, 0x10000, v{vK0}
    ; vDMA = g*256 + ((i) ^ (g<<2))*16
    v_lshlrev_b32 v{T3}, 2, v{T2}
    v_xor_b32 v{T3}, v{T3}, v{T1}
    v_lshlrev_b32 v{T3}, 4, v{T3}
    v_lshl_add_u32 v{vDMA}, v{T2}, 8, v{T3}
    ; vQL: i' = lane>>2, x = lane&3 : i'*256 + ((x ^ f(i'>>2))<<4)
    v_lshrrev_b32 v{T1}, 4, v{T0}               ; i'>>2 = lane>>4
""" + fswz(T1, T1, TMP) + f"""
    v_and_b32 v{T3}, 3, v{T0}
    v_xor_b32 v{T1}, v{T1}, v{T3}
    v_lshlrev_b32 v{T1}, 4, v{T1}
    v_lshrrev_b32 v{T3}, 2, v{T0}
    v_lshl_add_u32 v{vQL}, v{T3}, 8, v{T1}
    ; V tr-read addresses: g=lane>>4, r=(lane>>2)&3, c=lane&3 : LDS_V + (4g+r)*256 + ((u^r)<<6) + 16c
    v_bfe_u32 v{T1}, v{T0}, 2, 2                ; r
    v_and_b32 v{T3}, 3, v{T0}                   ; c
    v_lshl_add_u32 v{T2}, v{T2}, 2, v{T1}       ; 4g+r
    v_lshlrev_b32 v{T2}, 8, v{T2}
    v_lshl_add_u32 v{T2}, v{T3}, 4, v{T2}
    v_add_u32 v{T2}, {LDS_V}, v{T2}
"""
    for u in range(4):
        s += f"    v_xor_b32 v{T3}, {u}, v{T1}\n    v_lshl_add_u32 v{vV[u]}, v{T3}, 6, v{T2}\n"
    s += f"""
    v_lshlrev_b32 v{vTCH}, 7, v{T0}             ; lane*128
    v_lshlrev_b32 v{T0}, 4, v{T0}               ; lane*16
    ; workgroup -> (group, half)
    s_and_b32 s{sT0}, s2, 7
    s_lshr_b32 s{sT1}, s2, 3
    s_lshl_b32 s{sT0}, s{sT0}, 4
    s_lshr_b32 s52, s{sT1}, 1
    s_add_u32 s{sT0}, s{sT0}, s52              ; group
    s_and_b32 s{sT1}, s{sT1}, 1                ; half
    s_lshl_b32 s{sKB}, s{sT0}, 17              ; group * 131072
    s_mul_i32 s{sQB}, s{sT0}, {1984 * 256}
    s_mul_i32 s52, s{sT1}, {992 * 256}
    s_add_u32 s{sQB}, s{sQB}, s52
    s_mul_i32 s53, s{sT1}, {Cfg.rot * 8192}      ; rotation
    s_mul_i32 s83, s{sT1}, {131072 - Cfg.rot * 8192}
    s_mov_b32 s84, s{sT1}                       ; half
    s_lshl_b32 s{sT0}, s{sW}, 11               ; w*2048
    s_add_u32 s{sVB}, s{sKB}, s{sT0}
    s_sub_u32 s{sVBH}, s{sVB}, s83
    s_add_u32 s{sVB}, s{sVB}, s53
    s_add_u32 s{sM0B}, s{sT0}, {LDS_V}
    s_mov_b32 s{sC}, {c:#x}
    s_mov_b32 s{sOOB}, 0x80000000
    s_mov_b64 s[{sFLAG}:{sFLAG+1}], 0
    s_mov_b32 s{sPASS}, 0
    s_lshl_b32 s{sROW}, s{sW}, 6
"""
    for j in range(4):
        s += f"    s_add_u32 s{sT0}, s{sROW}, {16*j}\n    s_lshl_b32 s{sT0}, s{sT0}, 8\n    s_add_u32 s{sQ[j]}, s{sT0}, s{sQB}\n    s_mov_b32 s{sO[j]}, s{sOOB}\n"
    s += f"""    s_lshr_b32 s{sT0}, s{sW}, 1
    s_lshl_b32 s{sT0}, s{sT0}, 13
    s_and_b32 s{sT1}, s{sW}, 1
    s_lshl_b32 s{sT1}, s{sT1}, 6
    s_add_u32 s{sT0}, s{sT0}, s{sT1}
    s_add_u32 s{sTL}, s{sT0}, s{sKB}
    s_sub_u32 s{sTH}, s{sTL}, s83
    s_add_u32 s{sTL}, s{sTL}, s53
"""
    s += f"""
    s_lshr_b32 s{sT0}, s{sW}, 1
    s_lshl_b32 s{sT0}, s{sT0}, 12
    s_and_b32 s{sT1}, s{sW}, 1
    s_lshl_b32 s52, s{sT1}, 7
    s_add_u32 s{sKL}, s{sKB}, s{sT0}
    s_add_u32 s{sKL}, s{sKL}, s52
    s_sub_u32 s{sKH}, s{sKL}, s83
    s_add_u32 s{sKL}, s{sKL}, s53
    s_lshl_b32 s{sT1}, s{sT1}, 11
    s_add_u32 s{sKM}, s{sT0}, s{sT1}
    v_add_u32 v{vKW[0]}, s{sKM}, v{T0}
    v_add_u32 v{vKW[1]}, 0x10000, v{vKW[0]}
    v_mov_b32 v{vTHR}, 0x3f803f80
    v_accvgpr_write_b32 a{ONES}, v{vTHR}
    v_accvgpr_write_b32 a{ONES+1}, v{vTHR}
    v_accvgpr_write_b32 a{ONES+2}, v{vTHR}
    v_accvgpr_write_b32 a{ONES+3}, v{vTHR}
    v_mov_b32 v{vTHR}, {f32bits(Cfg.thr):#x}
    s_waitcnt lgkmcnt(0)
"""
    for (srd, lo, size) in ((sSRD_Q, 4, Q_BYTES), (sSRD_K, 6, KV_BYTES), (sSRD_V, 8, KV_BYTES), (sSRD_O, 10, Q_BYTES)):
        s += f"    s_mov_b32 s{srd}, s{lo}\n    s_and_b32 s{srd+1}, s{lo+1}, 0xffff\n    s_mov_b32 s{srd+2}, {size}\n    s_mov_b32 s{srd+3}, 0x00020000\n"
    return s

LET = dict(valu="a", trans="E", perm="p", lds="L", vld="G", vst="Z", dma="D", salu="s", waitl="w", waitv="W", bar="B", nop="n", ldsw="l")
def show(ops):
    gaps = []; cur = None
    for o in ops:
        if o.kind == "mfma":
            cur = []; gaps.append(cur)
        elif o.kind != "phantom" and cur is not None:
            cur.append(LET[o.kind])
    tot = 0
    W = 64 + XS[0]
    for i in range(0, len(gaps), W):
        row = gaps[i:i + W]
        c = 0
        for g in row:
            v = sum(8 if x == "E" else 4 for x in g if x in "aEp")
            nm = [x for x in g if x not in "aEp"]
            mem = [x for x in nm if x in "LGZDl"]
            cost = 4 + max(4, 4 * len(nm) + (4 if mem else 0) - (4 if (mem and v == 0) else 0)) + v
            c += max(16.5, cost)
        tot += c
        print(f"it{i//W:2d} est {c:6.0f}: " + " ".join("".join(g) if g else "-" for g in row))
    print("est total", tot)

vST0, vST1 = 250, 251
def stamp_setup():
    return f"""    s_load_dwordx2 s[54:55], s[0:1], 40
    s_waitcnt lgkmcnt(0)
    s_mov_b32 s56, s54
    s_and_b32 s57, s55, 0xffff
    s_mov_b32 s58, 0x10000000
    s_mov_b32 s59, 0x00020000
    s_lshl_b32 s60, s2, 2
    s_add_u32 s60, s60, s{sW}
    s_lshl_b32 s60, s60, 8
"""
def stamp(i, dyn=False):
    t = f"""    s_memrealtime s[62:63]
    s_memtime s[64:65]
    s_waitcnt lgkmcnt(0)
    v_mov_b32 v251, s62
"""
    so = "s60"
    if dyn:
        t += f"    s_lshl_b32 s61, s{sPASS}, 2\n    s_add_u32 s61, s61, s60\n"; so = "s61"
    t += f"    buffer_store_dword v251, off, s[56:59], {so} offset:{4*i}\n    s_nop 3\n    v_mov_b32 v251, s64\n    buffer_store_dword v251, off, s[56:59], {so} offset:{4*i+128}\n"
    return t

def slow_path_text():
    t = []
    A_ = t.append
    vKa, vVa, vMx = TMP, TMP + 1, TMP + 2
    vL = TMP + 6
    vU = TMP + 10
    sT, sP, sSo, sVs = 78, 79, 85, 86
    A_("L_slow:")
    A_("    s_waitcnt vmcnt(0) lgkmcnt(0)")
    A_(f"    v_mbcnt_lo_u32_b32 v{vU}, -1, 0")
    A_(f"    v_mbcnt_hi_u32_b32 v{vU}, -1, v{vU}")
    A_(f"    v_lshrrev_b32 v{vVa}, 4, v{vU}")
    A_(f"    v_lshlrev_b32 v{vVa}, 10, v{vVa}")
    A_(f"    v_bfe_u32 v{vU+1}, v{vU}, 2, 2")
    A_(f"    v_lshl_add_u32 v{vVa}, v{vU+1}, 4, v{vVa}")
    A_(f"    v_and_b32 v{vU+1}, 3, v{vU}")
    A_(f"    v_lshl_add_u32 v{vVa}, v{vU+1}, 1, v{vVa}")
    A_(f"    s_lshl_b32 s{sROW}, s{sW}, 6")
    A_(f"    s_mov_b32 s{sP}, 0")
    A_("L_slow_pass:")
    for j in range(4):
        A_(f"    s_add_u32 s{sT0}, s{sROW}, {16*j}")
        A_(f"    s_lshl_b32 s{sT1}, s{sT0}, 8")
        A_(f"    s_add_u32 s{sT1}, s{sT1}, s{sQB}")
        A_(f"    s_cmp_lt_u32 s{sT0}, 992")
        A_(f"    s_cselect_b32 s{sQ[j]}, s{sT1}, s{sOOB}")
    for j in range(4):
        for ss in range(4):
            A_(f"    buffer_load_dwordx4 a[{Q_(j,ss)}:{Q_(j,ss)+3}], v{vQO}, s[{sSRD_Q}:{sSRD_Q+3}], s{sQ[j]} offen offset:{64*ss}")
    for j in range(4): A_(f"    v_mov_b32 v{vMx+j}, 0xff800000")
    A_("    s_waitcnt vmcnt(0)")
    def kload():
        for kvt in range(2):
            for ss in range(4):
                A_(f"    ds_read_b128 a[{KF_(kvt,ss)}:{KF_(kvt,ss)+3}], v{vKa} offset:{kvt*4096+ss*1024}")
        A_("    s_waitcnt lgkmcnt(0)")
    def qk(usenm):
        for kvt in range(2):
            for j in range(4):
                for ss in range(4):
                    d = S_(kvt, j)
                    c = (f"v[{NM_(j)}:{NM_(j)+3}]" if usenm else "0") if ss == 0 else f"v[{d}:{d+3}]"
                    A_(f"    v_mfma_f32_16x16x32_bf16 v[{d}:{d+3}], a[{KF_(kvt,ss)}:{KF_(kvt,ss)+3}], a[{Q_(j,ss)}:{Q_(j,ss)+3}], {c}")
        A_("    s_nop 15")
    A_(f"    v_mov_b32 v{vKa}, v{vK0}")
    A_(f"    s_mov_b32 s{sT}, 0")
    A_("L_slow_max:")
    kload(); qk(False)
    for j in range(4):
        for kvt in range(2):
            d = S_(kvt, j)
            A_(f"    v_max3_f32 v{vMx+j}, v{vMx+j}, v{d}, v{d+1}")
            A_(f"    v_max3_f32 v{vMx+j}, v{vMx+j}, v{d+2}, v{d+3}")
    A_(f"    v_add_u32 v{vKa}, 8192, v{vKa}")
    A_(f"    s_add_u32 s{sT}, s{sT}, 1")
    A_(f"    s_cmp_lt_u32 s{sT}, 16")
    A_("    s_nop 7")
    A_("    s_cbranch_scc1 L_slow_max")
    def xlane(reg, op):
        for sw in ("v_permlane16_swap_b32", "v_permlane32_swap_b32"):
            A_(f"    v_mov_b32 v{vU}, v{reg}")
            A_("    s_nop 1")
            A_(f"    {sw} v{reg}, v{vU}")
            A_("    s_nop 1")
            A_(f"    {op} v{reg}, v{reg}, v{vU}")
    for j in range(4):
        xlane(vMx + j, "v_max_f32")
        for i in range(4): A_(f"    v_sub_f32 v{NM_(j)+i}, 0, v{vMx+j}")
        A_(f"    v_mov_b32 v{vL+j}, 0")
    for r in range(128): A_(f"    v_mov_b32 v{r}, 0")
    A_(f"    v_mov_b32 v{vKa}, v{vK0}")
    A_(f"    s_mov_b32 s{sT}, 0")
    A_("L_slow_pv:")
    A_(f"    s_mul_i32 s{sVs}, s84, {Cfg.rot}")
    A_(f"    s_add_u32 s{sVs}, s{sVs}, s{sT}")
    A_(f"    s_and_b32 s{sVs}, s{sVs}, 15")
    A_(f"    s_lshl_b32 s{sVs}, s{sVs}, 13")
    A_(f"    s_add_u32 s{sVs}, s{sVs}, s{sKB}")
    A_(f"    s_add_u32 s{sSo}, s{sVs}, 4096")
    kload(); qk(True)
    for j in range(4):
        for kvt in range(2):
            d = S_(kvt, j)
            for i in range(4): A_(f"    v_exp_f32 v{d+i}, v{d+i}")
            A_("    s_nop 0")
            for h in range(2): A_(f"    v_cvt_pk_bf16_f32 v{P_(0,j)+2*kvt+h}, v{d+2*h}, v{d+2*h+1}")
            for i in range(4): A_(f"    v_add_f32 v{vL+j}, v{vL+j}, v{d+i}")
    raw = P_(1, 0); pk = P_(1, 2)
    for dt in range(8):
        u, b = dt // 2, dt % 2
        for kvt in range(2):
            so = sVs if kvt == 0 else sSo
            for r in range(4):
                A_(f"    buffer_load_ushort v{raw + 4*kvt + r}, v{vVa}, s[{sSRD_V}:{sSRD_V+3}], s{so} offen offset:{r*256 + (32*u + 4*b)*2}")
        A_("    s_waitcnt vmcnt(0)")
        for h in range(4):
            A_(f"    v_lshl_or_b32 v{pk + h}, v{raw + 2*h + 1}, 16, v{raw + 2*h}")
        A_("    s_nop 1")
        for j in range(4):
            o = O_(dt, j)
            A_(f"    v_mfma_f32_16x16x32_bf16 v[{o}:{o+3}], v[{pk}:{pk+3}], v[{P_(0,j)}:{P_(0,j)+3}], v[{o}:{o+3}]")
        A_("    s_nop 7")
    A_(f"    v_add_u32 v{vKa}, 8192, v{vKa}")
    A_(f"    s_add_u32 s{sT}, s{sT}, 1")
    A_(f"    s_cmp_lt_u32 s{sT}, 16")
    A_("    s_nop 15")
    A_("    s_cbranch_scc1 L_slow_pv")
    for j in range(4):
        xlane(vL + j, "v_add_f32")
        A_(f"    v_rcp_f32 v{vL+j}, v{vL+j}")
    A_("    s_nop 1")
    for u in range(4):
        for j in range(4):
            tb = S_(0, 0) + 4 * ((u * 4 + j) % 8)
            for b in range(2):
                o = O_(2 * u + b, j)
                for i in range(4): A_(f"    v_mul_f32 v{o+i}, v{o+i}, v{vL+j}")
                for h in range(2): A_(f"    v_cvt_pk_bf16_f32 v{tb+2*b+h}, v{o+2*h}, v{o+2*h+1}")
            A_(f"    buffer_store_dwordx4 v[{tb}:{tb+3}], v{vQO}, s[{sSRD_O}:{sSRD_O+3}], s{sQ[j]} offen offset:{64*u}")
            A_("    s_nop 1")
    A_("    s_waitcnt vmcnt(0)")
    A_(f"    s_add_u32 s{sROW}, s{sROW}, 256")
    A_(f"    s_add_u32 s{sP}, s{sP}, 1")
    A_(f"    s_cmp_lt_u32 s{sP}, 4")
    A_("    s_cbranch_scc1 L_slow_pass")
    A_("    s_endpgm")
    txt = "\n".join(t) + "\n"
    return txt

def SLOWV(dt): return VF_(dt)

def main():
    ap = argparse.ArgumentParser()
    ap.add_argument("-o", default="standalone__gqa_softmax__near_ridge.s")
    ap.add_argument("--backlog", type=int, default=3)
    ap.add_argument("--lead", type=int, default=7)
    ap.add_argument("--show", action="store_true")
    ap.add_argument("--stamp", action="store_true")
    ap.add_argument("--stflags", default="")
    ap.add_argument("--qflags", default="")
    ap.add_argument("--kflags", default="")
    ap.add_argument("--vflags", default="")
    ap.add_argument("--abl", default="")
    ap.add_argument("--rot", type=int, default=0)
    ap.add_argument("--tflags", default="")
    ap.add_argument("--kall", action="store_true")
    ap.add_argument("--simple", action="store_true")
    ap.add_argument("--kahead", type=int, default=6)
    ap.add_argument("--kissue", type=int, default=2)
    ap.add_argument("--winspace", type=int, default=9)
    ap.add_argument("--nointer", action="store_true")
    ap.add_argument("--touchall", action="store_true")
    ap.add_argument("--qstart0", type=int, default=3)
    ap.add_argument("--qspace0", type=int, default=40)
    ap.add_argument("--initx", type=int, default=1)
    ap.add_argument("--x", type=int, default=0)
    ap.add_argument("--x0", type=int, default=0)
    ap.add_argument("--kfirst", type=int, default=4)
    ap.add_argument("--kbnovalu", action="store_true")
    ap.add_argument("--stampbar", action="store_true")
    ap.add_argument("--pf", type=int, default=6)
    ap.add_argument("--nopk", action="store_true")
    ap.add_argument("--stspace", type=int, default=14)
    ap.add_argument("--qstart", type=int, default=5)
    ap.add_argument("--qspace", type=int, default=24)
    ap.add_argument("--bargap", type=int, default=11)
    args = ap.parse_args()
    for x in args.abl.split(","):
        if x: ABL.add(x)
    Cfg.backlog = args.backlog; Cfg.lds_lead = args.lead
    Cfg.pf = args.pf
    Cfg.t_flags = (' ' + args.tflags) if args.tflags else ''
    Cfg.kb_novalu = args.kbnovalu
    Cfg.k_first = args.kfirst
    Cfg.q_start0 = args.qstart0; Cfg.q_space0 = args.qspace0
    if args.kall:
        Cfg.kall = True
        Cfg.init_extra = [("k", t) for t in range(4, 16)] + [("t", 2)]
        Cfg.early_list = [("t", 4), ("t", 6)]
    elif args.initx == 0:
        Cfg.early_list = Cfg.init_extra + Cfg.early_list; Cfg.init_extra = []
    elif args.initx == 2:
        Cfg.init_extra = Cfg.init_extra + Cfg.early_list; Cfg.early_list = []
    Cfg.touch_all = args.touchall
    if args.nointer: Cfg.interleave = 0
    Cfg.win_space = args.winspace
    Cfg.simple = args.simple; Cfg.k_ahead = args.kahead; Cfg.k_issue = args.kissue
    Cfg.rot = args.rot; Cfg.pkmul = not args.nopk
    Cfg.st_space = args.stspace; Cfg.q_start = args.qstart; Cfg.q_space = args.qspace; Cfg.bar_gap = args.bargap
    Cfg.st_flags = (" " + args.stflags) if args.stflags else ""
    Cfg.q_flags = (" " + args.qflags) if args.qflags else ""
    Cfg.k_flags = (" " + args.kflags) if args.kflags else ""
    Cfg.v_flags = (" " + args.vflags) if args.vflags else ""

    def pol(k, remaining, ready, emit_, state):
        state["backlog"] = Cfg.backlog
        default_policy(k, remaining, ready, emit_, state)
    noff0 = next_offsets_ops()
    tail = parked_stores(15)
    if Cfg.simple:
        XS[0] = args.x
        init_ops = []
        body0, vd0 = build_simple_prologue()
        body, late = build_body(False, None)
        for o in body:
            if o.kind == "waitv" and o.name == "vw0": o.covers = vd0 + late
        body0_sched = schedule(body0, pol, verbose=True)
        body_sched = schedule(body, pol, verbose=True)
        setx = Op("", "valu", [], regs("a", X_(0), 64), None, {r: ("OX", -1, None, u, j) for u in range(4) for j in range(4) for r in regs("a", X_(u * 4 + j), 4)})
        trace = [(body0_sched, 0), ([setx], 0), (noff0, 0)] + [(body_sched, p) for p in range(0, 4)] + [(tail, 3)]
    else:
        init_ops, info = init_issue_ops()
        XS[0] = args.x0
        body0, late0 = build_body(True, info)
        XS[0] = args.x
        body, late = build_body(False, None)
        for o in body:
            if o.kind == "waitv" and o.name == "vw0": o.covers = late0 + late
        body0_sched = schedule(body0, pol, verbose=True)
        body_sched = schedule(body, pol, verbose=True)
        trace = [(init_ops, 0), (noff0, 0), (body0_sched, 0)] + [(body_sched, p) for p in range(1, 4)] + [(tail, 3)]
    resolve_waits(trace)
    errs = check_trace(trace)
    for e in errs[:40]: print("ERR", e)
    print("errors:", len(errs))
    nm = sum(1 for o in body_sched if o.kind == "mfma")
    print("body instrs:", sum(1 for o in body_sched if o.kind != "phantom"), "mfma:", nm, " body0 instrs:", sum(1 for o in body0_sched if o.kind != "phantom"))
    if args.show:
        XS[0] = args.x0; show(body0_sched); XS[0] = args.x; show(body_sched)

    s = f"""; GQA attention forward, bf16, B=16 Hq=32 Hkv=8 Sq=496 Sk=512 D=128  (generated by gen/gen.py)
; @launch grid=(256,1,1) block=(256,1,1) lds=163840
.amdgcn_target "amdgcn-amd-amdhsa--gfx950"
.text
.globl {KNAME}
.p2align 8
.type {KNAME},@function
{KNAME}:
"""
    pt = prologue_text()
    pf = ""
    if Cfg.pf:
        pf = f"""    s_getpc_b64 s[80:81]
L_pc:
    v_lshlrev_b32 v{TMP+12}, {Cfg.pf}, v0
    s_mov_b32 s82, L_code_end-L_pc-4
"""
        step = 256 << Cfg.pf
        for i in range((Cfg.code_bytes + step - 1) // step):
            pf += f"    v_min_u32 v{TMP+13}, s82, v{TMP+12}\n    global_load_dword v{TMP+14+i%4}, v{TMP+13}, s[80:81]\n    v_add_u32 v{TMP+12}, {step}, v{TMP+12}\n"
    pt = pt.replace("PREFETCH\n", pf)
    if args.stamp:
        a, b = pt.split("    ; workgroup -> (group, half)")
        pt = a + stamp_setup() + stamp(0) + "    ; workgroup -> (group, half)" + b
    s += pt
    s += emit_fix(init_ops)
    if not Cfg.simple: s += emit(noff0)
    if args.stamp: s += stamp(1)
    b0 = emit(body0_sched)
    if args.stamp and args.stampbar:
        parts = b0.split("    s_barrier\n")
        b0 = parts[0]
        for k, p_ in enumerate(parts[1:]):
            b0 += "    s_barrier\n" + stamp(8 + k) + p_
    s += b0
    if Cfg.simple: s += emit(noff0)
    if args.stamp: s += stamp(2)
    s += f"    s_mov_b32 s{sPASS}, {0 if Cfg.simple else 1}\n"
    s += ".p2align 6\nL_pass:\n"
    b1 = emit(body_sched)
    if args.stamp and args.stampbar:
        parts = b1.split("    s_barrier\n")
        b1 = stamp(18) + parts[0]
        for k, p_ in enumerate(parts[1:]):
            b1 += "    s_barrier\n" + stamp(19 + k) + p_
        idx = b1.rindex("    v_mfma")
        idx = b1.index("\n", idx) + 1
        b1 = b1[:idx] + stamp(27) + b1[idx:] + stamp(28)
    s += b1
    if args.stamp: s += stamp(3 if Cfg.simple else 2, dyn=True)
    s += f"""    s_add_u32 s{sPASS}, s{sPASS}, 1
    s_cmp_lt_u32 s{sPASS}, 4
    s_cbranch_scc1 L_pass
"""
    s += emit(tail)
    if args.stamp: s += "    s_waitcnt vmcnt(0)\n" + stamp(7 if Cfg.simple else 6)
    s += f"""    s_cmp_lg_u64 s[{sFLAG}:{sFLAG+1}], 0
    s_cbranch_scc1 L_slow
L_end:
    s_endpgm
L_code_end:
"""
    s += slow_path_text()
    s += f"""
.section .rodata,"a"
.p2align 6
.amdhsa_kernel {KNAME}
  .amdhsa_next_free_vgpr 512
  .amdhsa_next_free_sgpr 88
  .amdhsa_accum_offset 256
  .amdhsa_group_segment_fixed_size 0
  .amdhsa_kernarg_size 48
  .amdhsa_user_sgpr_count 2
  .amdhsa_user_sgpr_kernarg_segment_ptr 1
  .amdhsa_system_sgpr_workgroup_id_x 1
.end_amdhsa_kernel
"""
    open(args.o, "w").write(s)

if __name__ == "__main__":
    main()
```

```python
import sys, os, struct, argparse
sys.path.insert(0, os.path.dirname(os.path.abspath(__file__)))
from sched import *

KNAME = "standalone__gqa_softmax__near_ridge_kernel"

def O_(dt, j): return (dt * 4 + j) * 4
def S_(kvt, j): return 128 + (kvt * 4 + j) * 4
def P_(buf, j): return 160 + buf * 16 + j * 4
def NM_(j): return 192 + 4 * j
def LS0_(j): return 208 + j
def LS1_(j): return 212 + j
TMP = 216
vK0, vK1 = 240, 241
vV = [242, 243, 244, 245]
vQO = 246
vDMA = 247
vRC = [248, 249, 250, 251]
def vRCP(j): return 248 + j
vQL = 252
vSTW = 253
vSTR = 254
vTHR = 255
def Q_(j, s): return (j * 4 + s) * 4
def X_(n): return 64 + n * 4
def KF_(kvt, s, par=0): return 128 + par * 32 + (kvt * 4 + s) * 4
def VF_(dt): return 192 + dt * 4
def L_(j): return 224 + 4 * j
ONES = 240
XS = [0]
def msum(j): return j >= 4 - XS[0]
def KR_(s): return 224 + 4 * s

sSRD_Q, sSRD_K, sSRD_V, sSRD_O = 12, 16, 20, 24
sW = 28; sPASS = 29
sQ = [30, 31, 32, 33]
sO = [34, 35, 36, 37]
sVB = 38; sVO = 39; sM0B = 40; sQB = 41
sFLAG = 42
sROW = 44
sT0, sT1 = 45, 46
sC = 47
sKB = 49; sOOB = 50; sVO2 = 51
sOP = [66, 67, 68, 69]
sVBH = 70
sKL, sKH = 71, 72
sKM = 73
sKO = 74
sVT, sVTH = 75, 76
vKW = [248, 249]
vTCH = 253

LDS_V = 131072
LDS_STG = 31 * 4096
Q_BYTES = 16 * 32 * 496 * 128 * 2
KV_BYTES = 16 * 8 * 512 * 128 * 2
CSCALE = (128 ** -0.5) * 1.4426950408889634
def f32bits(x): return struct.unpack("<I", struct.pack("<f", x))[0]

class Cfg:
    backlog = 3
    lds_lead = 7
    thr = 2.0 ** 30
    pkmul = True
    rot = 0
    st_jmajor = False
    kall = False
    k_ahead = 6
    k_issue = 2
    simple = False
    interleave = 2
    win_space = 9
    st_plan = [(n // 4, n % 4) for n in range(16)]
    q_plan = [(1, 4), (1, 5), (1, 6), (2, 4), (2, 5), (2, 6), (3, 4), (3, 5), (3, 6), (4, 0), (4, 2), (4, 4), (4, 6), (5, 0), (5, 2), (5, 4)]
    kb_off = 12
    touch_all = False
    touch_ahead = 8
    k_first = 4
    early0 = 2
    qcopy_span = 70
    kb_novalu = False
    t_flags = ''
    init_extra = [("t", 2), ("k", 4), ("k", 5)]
    early_list = [("t", 4), ("k", 6), ("k", 7), ("t", 6)]
    pf = 6
    code_bytes = 60000
    st_space = 14
    q_start = 5
    q_start0 = 3
    q_space0 = 40
    q_space = 24
    bar_gap = 11
    st_flags = ""
    q_flags = ""
    k_flags = ""
    v_flags = ""

def V(i): return f"v{i}"
def A(i): return f"a{i}"

def mfma(d, dpre, a, apre, b, bpre, c=None, rtag=None, wtag=None):
    dr = regs(dpre, d, 4)
    reads = regs(apre, a, 4) + regs(bpre, b, 4)
    if c is None:
        ctext = "0"; srcc = []
    else:
        ctext = rng(dpre, c, 4); srcc = regs(dpre, c, 4); reads += srcc
    return Op(f"v_mfma_f32_16x16x32_bf16 {rng(dpre, d, 4)}, {rng(apre, a, 4)}, {rng(bpre, b, 4)}, {ctext}", "mfma",
              reads, dr, rtag, wtag, srcc=srcc)

def valu(text, reads, writes, rtag=None, wtag=None, kind="valu"):
    return Op(text, kind, reads, writes, rtag, wtag)

def salu(text, reads=(), writes=()):
    return Op(text, "salu", reads, writes)

def ds_read(dst, n, vaddr, off, tagf, tr=False, extra_reads=(), lead=None):
    d = regs("a", dst, n)
    ins = "ds_read_b64_tr_b16" if tr else "ds_read_b128"
    return Op(f"{ins} {rng('a', dst, n)}, v{vaddr} offset:{off}", "lds", [V(vaddr)] + list(extra_reads),
              d + ["pend:" + r for r in d], None, {r: tagf for r in d}, lead=Cfg.lds_lead if lead is None else lead)

def wait(kind, loads, extra_covers=()):
    rs = []; ws = []
    for l in loads:
        for w in l.writes:
            if w.startswith("pend:"):
                rs.append(w); ws.append(w[5:])
    return Op("", kind, rs, ws, covers=list(loads) + list(extra_covers))

def k_reads(t, kvt):
    ops = []
    for s in range(4):
        off = t * 8192 + kvt * 4096 + s * 1024
        va = vK0
        if off >= 65536: off -= 65536; va = vK1
        ops.append(ds_read(KF_(kvt, s, t % 2), 4, va, off, ("K", None, None, t, kvt, s)))
    return ops

def kreg(t, kvt, s):
    return KF_(kvt, s, t % 2)

def v_reads(t, dt):
    slot = t % 4
    u, b = dt // 2, dt % 2
    ops = []
    for kvt in range(2):
        off = slot * 8192 + kvt * 4096 + 8 * b
        ops.append(ds_read(VF_(dt) + 2 * kvt, 2, vV[u], off, ("V", None, None, t, dt, kvt), tr=True,
                           extra_reads=[f"ps:vready{t // 2 % 2}"]))
    return ops

def qk_chain(n, kvt, j, first):
    t = n % 16; rp = n // 16
    l = []
    for s in range(4):
        q = X_(j * 4 + s) if n == 16 else Q_(j, s); kr = kreg(t, kvt, s)
        rt = {r: ("K", None, None, t, kvt, s) for r in regs("a", kr, 4)}
        rt.update({r: ("Q", None, rp, j, s) for r in regs("a", q, 4)})
        if s == 0:
            if first and kvt == 0: c = None
            else:
                c = NM_(j); rt.update({r: ("NM", None, rp, j) for r in regs("v", c, 4)})
        else:
            c = S_(kvt, j); rt.update({r: ("Sp", n, None, kvt, j, s - 1) for r in regs("v", c, 4)})
        wt = {r: (("Sp", n, None, kvt, j, s) if s < 3 else ("S", n, None, kvt, j, i))
              for i, r in enumerate(regs("v", S_(kvt, j), 4))}
        if s == 3 and first and kvt == 0:
            wt = {r: ("Sraw", n, None, kvt, j, i) for i, r in enumerate(regs("v", S_(kvt, j), 4))}
        l.append(mfma(S_(kvt, j), "v", kr, "a", q, "a", c, rt, wt))
    return l

def max_ops(n, j):
    rp = n // 16
    ops = []
    s = S_(0, j); t = TMP + 2 * j; u = TMP + 2 * j + 1
    raw = lambda i: {V(s + i): ("Sraw", n, None, 0, j, i)}
    rt = {}; [rt.update(raw(i)) for i in range(3)]
    ops.append(valu(f"v_max3_f32 v{t}, v{s}, v{s+1}, v{s+2}", [V(s), V(s+1), V(s+2)], [V(t)], rt))
    ops.append(valu(f"v_max_f32 v{t}, v{t}, v{s+3}", [V(t), V(s+3)], [V(t)], raw(3)))
    for sw in ("v_permlane16_swap_b32", "v_permlane32_swap_b32"):
        ops.append(valu(f"v_mov_b32 v{u}, v{t}", [V(t)], [V(u)]))
        ops.append(valu(f"{sw} v{t}, v{u}", [V(t), V(u)], [V(t), V(u)], kind="perm"))
        ops.append(valu(f"v_max_f32 v{t}, v{t}, v{u}", [V(t), V(u)], [V(t)]))
    for i in range(4):
        ops.append(valu(f"v_sub_f32 v{NM_(j)+i}, 0, v{t}", [V(t)], [V(NM_(j)+i)], None, {V(NM_(j)+i): ("NM", None, rp, j)}))
    for i in range(4):
        ops.append(valu(f"v_sub_f32 v{s+i}, v{s+i}, v{t}", [V(s+i), V(t)], [V(s+i)], raw(i), {V(s+i): ("S", n, None, 0, j, i)}))
    return ops

def sm_ops(n, kvt, j):
    ops = []
    s = S_(kvt, j); buf = n % 2
    t = n % 16
    for i in range(4):
        ops.append(valu(f"v_exp_f32 v{s+i}, v{s+i}", [V(s+i)], [V(s+i)], {V(s+i): ("S", n, None, kvt, j, i)},
                        {V(s+i): ("E", n, None, kvt, j, i)}, kind="trans"))
        et = {V(s+i): ("E", n, None, kvt, j, i)}
        if msum(j): pass
        elif t == 0:
            if kvt == 0 and i == 0: pass
            elif kvt == 0 and i == 1:
                ops.append(valu(f"v_add_f32 v{LS0_(j)}, v{s}, v{s+1}", [V(s), V(s+1)], [V(LS0_(j))], et))
            else:
                ops.append(valu(f"v_add_f32 v{LS0_(j)}, v{LS0_(j)}, v{s+i}", [V(LS0_(j)), V(s+i)], [V(LS0_(j))], et))
        elif t == 1 and kvt == 0 and i == 0:
            ops.append(valu(f"v_add_f32 v{LS1_(j)}, v{LS0_(j)}, v{s+i}", [V(LS0_(j)), V(s+i)], [V(LS1_(j))], et))
        else:
            ops.append(valu(f"v_add_f32 v{LS1_(j)}, v{LS1_(j)}, v{s+i}", [V(LS1_(j)), V(s+i)], [V(LS1_(j))], et))
        if i % 2 == 1:
            pr = P_(buf, j) + 2 * kvt + i // 2
            rt = {V(s+i-1): ("E", n, None, kvt, j, i-1), V(s+i): ("E", n, None, kvt, j, i)}
            ops.append(valu(f"v_cvt_pk_bf16_f32 v{pr}, v{s+i-1}, v{s+i}", [V(s+i-1), V(s+i)], [V(pr)], rt,
                            {V(pr): ("P", n, None, j, 2 * kvt + i // 2)}))
    return ops

def pv_ops(n, dt):
    t = n % 16; buf = n % 2
    l = []
    for j in range(4):
        rt = {}
        for kvt in range(2):
            rt.update({r: ("V", None, None, t, dt, kvt) for r in regs("a", VF_(dt) + 2 * kvt, 2)})
        rt.update({r: ("P", n, None, j, i) for i, r in enumerate(regs("v", P_(buf, j), 4))})
        if t == 0: c = None
        else:
            c = O_(dt, j); rt.update({r: ("O", n - 1, None, dt, j) for r in regs("v", c, 4)})
        wt = {r: ("O", n, None, dt, j) for r in regs("v", O_(dt, j), 4)}
        l.append(mfma(O_(dt, j), "v", VF_(dt), "a", P_(buf, j), "v", c, rt, wt))
    return l

def sum_ops(n):
    t = n % 16; buf = n % 2
    l = []
    for j in range(4):
        if not msum(j): continue
        rt = {r: ("P", n, None, j, i) for i, r in enumerate(regs("v", P_(buf, j), 4))}
        c = None if t == 0 else L_(j)
        l.append(mfma(L_(j), "a", ONES, "a", P_(buf, j), "v", c, rt, None))
    return l

def q_raw_loads(rp, direct=False):
    ops = []
    for j in range(4):
        for s in range(4):
            d = Q_(j, s) if direct else X_(j * 4 + s)
            dr = regs("a", d, 4)
            ops.append(Op(f"buffer_load_dwordx4 {rng('a', d, 4)}, v{vQO}, s[{sSRD_Q}:{sSRD_Q+3}], s{sQ[j]} offen offset:{64*s}{Cfg.q_flags}",
                          "vld", [V(vQO), f"s{sQ[j]}"], dr + ["pend:" + r for r in dr], None,
                          {r: ("Q", None, rp, j, s) for r in dr}))
    return ops

def q_copy(rp, j, s):
    ops = []
    for i in range(4):
        x = X_(j * 4 + s) + i; q = Q_(j, s) + i
        ops.append(valu(f"v_accvgpr_mov_b32 a{q}, a{x}", [A(x)], [A(q)], {A(x): ("Q", None, rp, j, s)}, {A(q): ("Q", None, rp, j, s)}))
    return ops

def dma_ops(t):
    slot = t % 4
    so = sVO if t % 2 == 0 else sVO2
    ops = [salu(f"s_add_u32 m0, s{sM0B}, {slot * 8192}", [f"s{sM0B}"], ["m0"]),
           salu(f"s_add_u32 s{so}, s{sVB if t < 16 - Cfg.rot else sVBH}, {t * 8192}", [f"s{sVB}"], [f"s{so}"])]
    for h in range(2):
        ops.append(Op(f"buffer_load_dwordx4 v{vDMA}, s[{sSRD_V}:{sSRD_V+3}], s{so} offen offset:{1024*h}{Cfg.v_flags} lds", "dma",
                      [V(vDMA), f"s{so}", "m0", f"ps:vfree{t // 2 % 2}"], [f"ps:vdst{t%4}_{h}"]))
    return ops

def epilogue_ops(n):
    ops = []
    for j in range(4):
        t = TMP + 8 + 2 * j; u = TMP + 8 + 2 * j + 1
        if msum(j):
            ops.append(valu(f"v_accvgpr_read_b32 v{t}, a{L_(j)}", [A(L_(j))], [V(t)]))
        else:
            ops.append(valu(f"v_mov_b32 v{t}, v{LS1_(j)}", [V(LS1_(j))], [V(t)]))
        for sw in ("v_permlane16_swap_b32", "v_permlane32_swap_b32"):
            if msum(j): break
            ops.append(valu(f"v_mov_b32 v{u}, v{t}", [V(t)], [V(u)]))
            ops.append(valu(f"{sw} v{t}, v{u}", [V(t), V(u)], [V(t), V(u)], kind="perm"))
            ops.append(valu(f"v_add_f32 v{t}, v{t}, v{u}", [V(t), V(u)], [V(t)]))
        ops.append(valu(f"v_rcp_f32 v{vRC[j]}, v{t}", [V(t)], [V(vRC[j])], kind="trans"))
        ops.append(valu(f"v_cmp_nle_f32 vcc, v{t}, v{vTHR}", [V(t), V(vTHR)], ["vcc"]))
        ops.append(salu(f"s_or_b64 s[{sFLAG}:{sFLAG+1}], s[{sFLAG}:{sFLAG+1}], vcc", ["vcc", f"s{sFLAG}"], [f"s{sFLAG}"]))
    cnt = 0
    for u in range(4):
        for j in range(4):
            tb = TMP + 16 + 4 * (cnt % 2); cnt += 1
            for b in range(2):
                o = O_(2 * u + b, j)
                if Cfg.pkmul:
                    for i in (0, 2):
                        pb = 248 + (j & ~1); sel = j & 1
                        op = valu(f"v_pk_mul_f32 v[{o+i}:{o+i+1}], v[{o+i}:{o+i+1}], v[{pb}:{pb+1}] op_sel:[0,{sel}] op_sel_hi:[1,{sel}]",
                                  [V(o+i), V(o+i+1), V(vRC[j])], [V(o+i), V(o+i+1)],
                                  {V(o+i): ("O", n, None, 2 * u + b, j), V(o+i+1): ("O", n, None, 2 * u + b, j)})
                        op.reads.append("ps:nomfma")
                        ops.append(op)
                else:
                    for i in range(4):
                        ops.append(valu(f"v_mul_f32 v{o+i}, v{o+i}, v{vRC[j]}", [V(o+i), V(vRC[j])], [V(o+i)],
                                        {V(o+i): ("O", n, None, 2 * u + b, j)}))
                for h in range(2):
                    ops.append(valu(f"v_cvt_pk_bf16_f32 v{tb+2*b+h}, v{o+2*h}, v{o+2*h+1}", [V(o+2*h), V(o+2*h+1)], [V(tb+2*b+h)]))
            x = X_(u * 4 + j)
            for i in range(4):
                ops.append(valu(f"v_accvgpr_write_b32 a{x+i}, v{tb+i}", [V(tb+i)], [A(x+i)], None, {A(x+i): ("OX", n, None, u, j)}))
    return ops

def parked_stores(n):
    ops = []
    order = [(u, j) for u in range(4) for j in range(4)] if not Cfg.st_jmajor else [(u, j) for j in range(4) for u in range(4)]
    for (u, j) in order:
        if True:
            x = X_(u * 4 + j); xr = regs("a", x, 4)
            ops.append(Op(f"buffer_store_dwordx4 {rng('a', x, 4)}, v{vQO}, s[{sSRD_O}:{sSRD_O+3}], s{sOP[j]} offen offset:{64*u}{Cfg.st_flags}",
                          "vst", xr + [V(vQO), f"s{sOP[j]}"], [], {r: ("OX", n, None, u, j) for r in xr}))
    return ops

def k_dma_ops(t):
    ops = []
    for h in range(2):
        ops.append(salu(f"s_add_u32 m0, s{sKM}, {t * 8192 + h * 1024}", [f"s{sKM}"], ["m0"]))
        ops.append(salu(f"s_add_u32 s{sKO}, s{sKL if t < 16 - Cfg.rot else sKH}, {t * 8192 + h * 64}", [], [f"s{sKO}"]))
        ops.append(Op(f"buffer_load_dwordx4 v{vQL}, s[{sSRD_K}:{sSRD_K+3}], s{sKO} offen{Cfg.k_flags} lds", "dma",
                      [V(vQL), f"s{sKO}", "m0"], [f"pend:ps:kraw{t}_{h}"]))
    return ops

def k_build_ops(t, idx):
    ops = []
    for h in range(2):
        base = TMP + 12 * ((2 * idx + h) % 2)
        off = t * 8192 + h * 1024
        va = vKW[0]
        if off >= 65536: off -= 65536; va = vKW[1]
        d = regs("v", base, 4)
        rd = Op(f"ds_read_b128 {rng('v', base, 4)}, v{va} offset:{off}", "lds", [V(va), f"ps:kraw{t}_{h}"],
                d + ["pend:" + r for r in d], lead=Cfg.lds_lead)
        ops.append(rd); ops.append(wait("waitl", [rd]))
        for i in range(4):
            if Cfg.kb_novalu and t >= 4: break
            r = base + i; a, b = base + 4 + 2 * i, base + 5 + 2 * i
            ops.append(valu(f"v_lshlrev_b32 v{a}, 16, v{r}", [V(r)], [V(a)]))
            ops.append(valu(f"v_and_b32 v{b}, 0xffff0000, v{r}", [V(r)], [V(b)]))
            ops.append(valu(f"v_mul_f32 v{a}, s{sC}, v{a}", [V(a)], [V(a)]))
            ops.append(valu(f"v_mul_f32 v{b}, s{sC}, v{b}", [V(b)], [V(b)]))
            ops.append(valu(f"v_cvt_pk_bf16_f32 v{r}, v{a}, v{b}", [V(a), V(b)], [V(r)]))
        ops.append(Op(f"ds_write_b128 v{va}, {rng('v', base, 4)} offset:{off}", "ldsw", [V(va)] + d, [f"ps:kw{t}_{h}", f"pend:ps:kws{t}_{h}"]))
    return ops

sTL, sTH, sTO = 75, 76, 77
def touch_ops(t):
    return [salu(f"s_add_u32 s{sTO}, s{sTL if t < 16 - Cfg.rot else sTH}, {t * 8192}", [], [f"s{sTO}"]),
            Op(f"buffer_load_dword a255, v{vTCH}, s[{sSRD_V}:{sSRD_V+3}], s{sTO} offen{Cfg.t_flags}", "vld",
               [V(vTCH), f"s{sTO}"], [A(255)])]

def next_offsets_ops():
    ops = []
    for j in range(4):
        ops.append(salu(f"s_mov_b32 s{sOP[j]}, s{sO[j]}", [f"s{sO[j]}"], [f"s{sOP[j]}"]))
        ops.append(salu(f"s_mov_b32 s{sO[j]}, s{sQ[j]}", [f"s{sQ[j]}"], [f"s{sO[j]}"]))
    ops.append(salu(f"s_add_u32 s{sROW}, s{sROW}, 256", [f"s{sROW}"], [f"s{sROW}", "scc"]))
    for j in range(4):
        o = Op(f"s_add_u32 s{sT0}, s{sROW}, {16*j}\n    s_lshl_b32 s{sT1}, s{sT0}, 8\n    s_add_u32 s{sT1}, s{sT1}, s{sQB}\n"
               f"    s_cmp_lt_u32 s{sT0}, 992\n    s_cselect_b32 s{sQ[j]}, s{sT1}, s{sOOB}", "salu",
               [f"s{sROW}", f"s{sQB}"], [f"s{sQ[j]}", f"s{sT0}", f"s{sT1}", "scc"])
        ops.append(o)
    return ops

def qk_seq(n, first):
    ops = []
    if first:
        for j in range(4): ops += qk_chain(n, 0, j, True)
        for j in range(4): ops += max_ops(n, j)
        for j in range(4): ops += qk_chain(n, 1, j, True)
    else:
        for j in range(4):
            for kvt in range(2): ops += qk_chain(n, kvt, j, False)
    return ops

G = lambda i, k: (64 + XS[0]) * i + k + GOFF[0]
GOFF = [0]

def init_issue_ops():
    ops = []; info = {"kd": {}, "vd": {}}
    def kd(t):
        d = k_dma_ops(t); ops.extend(d); info["kd"][t] = [o for o in d if o.kind == "dma"]
    for t in range(Cfg.k_first): kd(t)
    q = q_raw_loads(0, direct=True); ops.extend(q); info["q"] = q
    for t in range(Cfg.k_first, 4): kd(t)
    for t in (0, 1):
        d = dma_ops(t); ops.extend(d); info["vd"][t] = [o for o in d if o.kind == "dma"]
    for grp in Cfg.init_extra:
        if grp[0] == "t": ops.extend(touch_ops(grp[1]))
        else: kd(grp[1])
    return ops, info

def build_simple_prologue():
    ops = []; kd = {}
    prev = [None]
    def chain(d):
        for o in d:
            if prev[0] is not None: o.deps.append((prev[0], 0, 0))
            prev[0] = o
        ops.extend(d)
    def issue_k(t):
        d = k_dma_ops(t); chain(d); kd[t] = [o for o in d if o.kind == "dma"]
    AHEAD = Cfg.k_ahead
    for t in range(min(AHEAD, 16)): issue_k(t)
    later = []
    for t in range(AHEAD, 16): later.append(("k", t))
    q = q_raw_loads(0, direct=True)
    for n in range(0, 16, 2): later.append(("q", q[n:n + 2]))
    vd = []
    for t in (0, 1): later.append(("v", t))
    def issue_next(n):
        for _ in range(n):
            if not later: return
            k, a = later.pop(0)
            if k == "k": issue_k(a)
            elif k == "q": chain(a)
            elif k == "v":
                d = dma_ops(a); chain(d); vd.extend([o for o in d if o.kind == "dma"])
            else: chain(touch_ops(a))
    wr_all = []
    for t in range(16):
        w = wait("waitv", kd[t]); chain([w])
        kb = k_build_ops(t, t); chain(kb)
        wr_all += [o for o in kb if o.kind == "ldsw"]
        issue_next(Cfg.k_issue)
    issue_next(100)
    chain([wait("waitl", wr_all)])
    chain([Op("s_barrier", "bar", [f"ps:kws{t}_{h}" for t in range(16) for h in (0, 1)], ["ps:kready0"])])
    kr = k_reads(0, 0) + k_reads(0, 1)
    for o in kr: o.reads.append("ps:kready0")
    ops += kr
    ops.append(wait("waitl", kr[:4])); ops.append(wait("waitl", kr[4:]))
    for j in range(4): ops.append(wait("waitv", q[4 * j:4 * j + 4]))
    ops += qk_seq(0, True)
    x = 0
    for t in range(2, 16, 2):
        for o in touch_ops(t):
            o.minGap = 1 + 2 * x; o.cap = o.minGap; x += 1
            ops.append(o)
    kr = k_reads(1, 0) + k_reads(1, 1)
    for o in kr: o.reads.append("ps:kready0")
    ops += kr
    for j in range(4):
        for kvt in range(2): ops += sm_ops(0, kvt, j)
    ops.append(wait("waitl", kr[:4])); ops.append(wait("waitl", kr[4:]))
    return ops, vd

def build_body(pass0, info):
    ops = []
    dmas = {}
    kd = {}
    GOFF[0] = 0
    if pass0:
        kd = dict(info["kd"])
        GOFF[0] = 32
        pre = list(range(Cfg.k_first))
        wr_all = []
        for t in pre:
            w = wait("waitv", kd[t]); ops.append(w)
            kb = k_build_ops(t, t); ops += kb
            wr_all += [o for o in kb if o.kind == "ldsw"]
        ops.append(wait("waitl", wr_all))
        barA = Op("s_barrier", "bar", [f"ps:kws{t}_{h}" for t in pre for h in (0, 1)], ["ps:kready0"] + (["ps:kready1"] if 1 in pre else []))
        ops.append(barA)
        kr = k_reads(0, 0) + k_reads(0, 1)
        for o in kr: o.reads.append("ps:kready0")
        ops += kr
        ops.append(wait("waitl", kr[:4])); ops.append(wait("waitl", kr[4:]))
        for j in range(4):
            ops.append(wait("waitv", info["q"][4 * j:4 * j + 4]))
        ops += qk_seq(0, True)
        x = 0
        for grp in Cfg.early_list:
            d = touch_ops(grp[1]) if grp[0] == "t" else k_dma_ops(grp[1])
            for o in d:
                o.minGap = Cfg.early0 + x; o.cap = o.minGap; x += 1
            ops += d
            if grp[0] == "k": kd[grp[1]] = [o for o in d if o.kind == "dma"]
        if 1 not in pre:
            w = wait("waitv", kd[1]); w.cap = 0; ops.append(w)
            kb = k_build_ops(1, 1)
            for x, o in enumerate(kb): o.cap = 1 + x // 3
            ops += kb
            ops.append(wait("waitl", [o for o in kb if o.kind == "ldsw"]))
            barB = Op("s_barrier", "bar", [f"ps:kws1_{h}" for h in (0, 1)], ["ps:kready1"])
            barB.cap = 20
            ops.append(barB)
        kr = k_reads(1, 0) + k_reads(1, 1)
        for o in kr: o.reads.append("ps:kready1")
        ops += kr
        for j in range(4):
            for kvt in range(2): ops += sm_ops(0, kvt, j)
        ops.append(wait("waitl", kr[:4])); ops.append(wait("waitl", kr[4:]))
        dmas[0] = info["vd"][0]; dmas[1] = info["vd"][1]
    else:
        ps = parked_stores(-1)
        for x, o in enumerate(ps):
            if Cfg.interleave == 2:
                e, k = Cfg.st_plan[x]
                o.minGap = G(2 * e, Cfg.bar_gap + 12) + k * Cfg.win_space
            else:
                o.minGap = 2 + Cfg.st_space * x
            o.cap = o.minGap + 4
        ops += ps
    qraw = None
    for i in range(16):
        n = i + 1
        first = (n == 16)
        if first:
            for j in range(4):
                wq = wait("waitv", qraw[4 * j:4 * j + 4]); wq.cap = G(14, 4 + 8 * j); ops.append(wq)
        ops += qk_seq(n, first)
        if first:
            x = 0
            for j in range(4):
                for s_ in range(4):
                    for o in q_copy(1, j, s_):
                        o.cap = G(14, 10 + 8 * j) + ((x % 16) * Cfg.qcopy_span) // 16; x += 1
                        ops.append(o)
        extra_bar_reads = []
        if pass0 and i % 2 == 0 and i <= 12 and not (i == 0 and Cfg.k_first == 4):
            w = wait("waitv", kd[i + 2] + kd[i + 3]); ops.append(w)
            W_ = 64 + XS[0]
            if i > 2 or (i == 2):
                w.cap = G(i - 2, Cfg.bar_gap + Cfg.kb_off); w.minGap = w.cap
                span = 2 * W_ - Cfg.kb_off - 8
            else:
                w.cap = 0; span = 30
            kb = k_build_ops(i + 2, 0) + k_build_ops(i + 3, 1)
            for x, o in enumerate(kb):
                o.cap = w.cap + 2 + (x * span) // len(kb)
                o.minGap = o.cap - 2
            ops += kb
            wr = [o for o in kb if o.kind == "ldsw"]
            ops.append(wait("waitl", wr))
            extra_bar_reads = [f"ps:kws{t}_{h}" for t in (i + 2, i + 3) for h in (0, 1)]
        if i % 2 == 0:
            cov = []
            for t in (i, i + 1):
                if t in dmas: cov += dmas[t]
            wv = Op("", "waitv", [], [f"ps:vw{i}"], covers=cov)
            wv.name = f"vw{i}"
            if i > 0:
                for c in cov: wv.deps.append((c, 0, 0))
            wv.cap = G(i, Cfg.bar_gap - 1)
            ops.append(wv)
            wr = [f"ps:vready{i // 2 % 2}", f"ps:vfree{(i // 2 + 1) % 2}", f"ps:kbar{i}"]
            bar = Op("s_barrier", "bar", [f"ps:vw{i}", "ps:vused"] + extra_bar_reads, wr)
            bar.cap = G(i, Cfg.bar_gap); bar.minGap = G(i, Cfg.bar_gap - 2)
            ops.append(bar)
            x = 0
            for t in (i + 2, i + 3):
                d = dma_ops(t % 16)
                for o in d:
                    o.cap = G(i, Cfg.bar_gap + 2 + 2 * x); x += 1
                ops += d
                dmas[t] = [o for o in d if o.kind == "dma"]
            if i == 14: late = dmas[16] + dmas[17]
            if not pass0 and Cfg.touch_all:
                d = touch_ops((i + Cfg.touch_ahead) % 16)
                for o in d:
                    o.cap = G(i, Cfg.bar_gap + 2 + 2 * x); x += 1
                    o.reads.append(f"ps:kbar{i}")
                ops += d
            if pass0:
                if i + 8 < 16 and not Cfg.kall:
                    for t in (i + 8, i + 9):
                        d = k_dma_ops(t)
                        for o in d:
                            o.cap = G(i, Cfg.bar_gap + 2 + 2 * x); x += 1
                            if o.kind == "dma": o.reads.append(f"ps:kbar{i}")
                        ops += d; kd[t] = [o for o in d if o.kind == "dma"]
                if i + 8 < 16 or Cfg.touch_all:
                    d = touch_ops((i + 8) % 16)
                    for o in d:
                        o.cap = G(i, Cfg.bar_gap + 2 + 2 * x); x += 1
                        o.reads.append(f"ps:kbar{i}")
                    ops += d
        kr = k_reads((n + 1) % 16, 0) + k_reads((n + 1) % 16, 1)
        if pass0 and n + 1 < 16:
            tb = n + 1
            bi = (tb - 2) // 2 * 2
            for o in kr: o.reads.append(f"ps:kbar{bi}")
        ops += kr
        for j in range(4):
            for kvt in range(2):
                ops += sm_ops(n, kvt, j)
        ops += sum_ops(i)
        for dt in range(8):
            vr = v_reads(i, dt)
            ops += vr
            w = wait("waitl", vr)
            if dt == 7: w.writes.append("ps:vused")
            ops.append(w)
            pv = pv_ops(i, dt)
            if i == 15 and dt == 7: pv[-1].writes.append("ps:nomfma")
            ops += pv
        if kr:
            ops.append(wait("waitl", kr[:4]))
            if len(kr) > 4: ops.append(wait("waitl", kr[4:]))
        if i == 4:
            qraw = q_raw_loads(1)
            for x, o in enumerate(qraw):
                if Cfg.interleave == 2:
                    e, k = Cfg.q_plan[x]
                    o.minGap = G(2 * e, Cfg.bar_gap + 12) + k * Cfg.win_space
                elif pass0: o.minGap = G(Cfg.q_start0, 0) + Cfg.q_space0 * x
                elif Cfg.interleave: o.minGap = 2 + Cfg.st_space * x + Cfg.st_space // 2
                else: o.minGap = G(Cfg.q_start, 0) + Cfg.q_space * x
                o.cap = o.minGap + 4
            ops += qraw
    ops += epilogue_ops(15)
    ops += next_offsets_ops()
    return ops, late

ABL = set()
def emit(ops):
    lines = []
    for o in ops:
        t = optext(o)
        if t is None: continue
        if o.kind in ABL: continue
        lines.append("    " + t)
    return "\n".join(lines) + "\n"

T0, T1, T2, T3 = TMP + 8, TMP + 9, TMP + 10, TMP + 11
def fswz(dst, src, tmp):
    return f"    v_lshlrev_b32 v{tmp}, 1, v{src}\n    v_lshrrev_b32 v{dst}, v{tmp}, v{vTHR}\n    v_and_b32 v{dst}, 3, v{dst}\n"

def emit_fix(ops):
    lines = []
    for i, o in enumerate(ops):
        if o.kind == "dma" and i > 0 and "m0" in ops[i - 1].writes: lines.append("    s_nop 0")
        lines.append("    " + o.text)
    return "\n".join(lines) + "\n" if lines else ""

def prologue_text():
    c = f32bits(CSCALE)
    s = f"""
    s_cmp_ge_u32 s2, 256
    s_cbranch_scc1 L_end
    s_load_dwordx4 s[4:7], s[0:1], 0
    s_load_dwordx4 s[8:11], s[0:1], 16
PREFETCH
    v_and_b32 v{T0}, 63, v0                     ; lane
    v_lshrrev_b32 v{T1}, 6, v0                  ; wave
    v_mov_b32 v{vTHR}, 0x78                     ; lookup for f = (0,2,3,1)
    v_readfirstlane_b32 s{sW}, v{T1}
    ; i = lane%16, g = lane/16
    v_and_b32 v{T1}, 15, v{T0}
    v_lshrrev_b32 v{T2}, 4, v{T0}
    v_lshlrev_b32 v{vQO}, 8, v{T1}
    v_lshl_add_u32 v{vQO}, v{T2}, 4, v{vQO}     ; vQO = i*256 + g*16
    ; vK0 = (4i + (g ^ f(i>>2)))*16
    v_lshrrev_b32 v{T3}, 2, v{T1}
""" + fswz(T3, T3, TMP) + f"""
    v_xor_b32 v{T3}, v{T3}, v{T2}
    v_lshl_add_u32 v{T3}, v{T1}, 2, v{T3}
    v_lshlrev_b32 v{vK0}, 4, v{T3}
    v_add_u32 v{vK1}, 0x10000, v{vK0}
    ; vDMA = g*256 + ((i) ^ (g<<2))*16
    v_lshlrev_b32 v{T3}, 2, v{T2}
    v_xor_b32 v{T3}, v{T3}, v{T1}
    v_lshlrev_b32 v{T3}, 4, v{T3}
    v_lshl_add_u32 v{vDMA}, v{T2}, 8, v{T3}
    ; vQL: i' = lane>>2, x = lane&3 : i'*256 + ((x ^ f(i'>>2))<<4)
    v_lshrrev_b32 v{T1}, 4, v{T0}               ; i'>>2 = lane>>4
""" + fswz(T1, T1, TMP) + f"""
    v_and_b32 v{T3}, 3, v{T0}
    v_xor_b32 v{T1}, v{T1}, v{T3}
    v_lshlrev_b32 v{T1}, 4, v{T1}
    v_lshrrev_b32 v{T3}, 2, v{T0}
    v_lshl_add_u32 v{vQL}, v{T3}, 8, v{T1}
    ; V tr-read addresses: g=lane>>4, r=(lane>>2)&3, c=lane&3 : LDS_V + (4g+r)*256 + ((u^r)<<6) + 16c
    v_bfe_u32 v{T1}, v{T0}, 2, 2                ; r
    v_and_b32 v{T3}, 3, v{T0}                   ; c
    v_lshl_add_u32 v{T2}, v{T2}, 2, v{T1}       ; 4g+r
    v_lshlrev_b32 v{T2}, 8, v{T2}
    v_lshl_add_u32 v{T2}, v{T3}, 4, v{T2}
    v_add_u32 v{T2}, {LDS_V}, v{T2}
"""
    for u in range(4):
        s += f"    v_xor_b32 v{T3}, {u}, v{T1}\n    v_lshl_add_u32 v{vV[u]}, v{T3}, 6, v{T2}\n"
    s += f"""
    v_lshlrev_b32 v{vTCH}, 7, v{T0}             ; lane*128
    v_lshlrev_b32 v{T0}, 4, v{T0}               ; lane*16
    ; workgroup -> (group, half)
    s_and_b32 s{sT0}, s2, 7
    s_lshr_b32 s{sT1}, s2, 3
    s_lshl_b32 s{sT0}, s{sT0}, 4
    s_lshr_b32 s52, s{sT1}, 1
    s_add_u32 s{sT0}, s{sT0}, s52              ; group
    s_and_b32 s{sT1}, s{sT1}, 1                ; half
    s_lshl_b32 s{sKB}, s{sT0}, 17              ; group * 131072
    s_mul_i32 s{sQB}, s{sT0}, {1984 * 256}
    s_mul_i32 s52, s{sT1}, {992 * 256}
    s_add_u32 s{sQB}, s{sQB}, s52
    s_mul_i32 s53, s{sT1}, {Cfg.rot * 8192}      ; rotation
    s_mul_i32 s83, s{sT1}, {131072 - Cfg.rot * 8192}
    s_mov_b32 s84, s{sT1}                       ; half
    s_lshl_b32 s{sT0}, s{sW}, 11               ; w*2048
    s_add_u32 s{sVB}, s{sKB}, s{sT0}
    s_sub_u32 s{sVBH}, s{sVB}, s83
    s_add_u32 s{sVB}, s{sVB}, s53
    s_add_u32 s{sM0B}, s{sT0}, {LDS_V}
    s_mov_b32 s{sC}, {c:#x}
    s_mov_b32 s{sOOB}, 0x80000000
    s_mov_b64 s[{sFLAG}:{sFLAG+1}], 0
    s_mov_b32 s{sPASS}, 0
    s_lshl_b32 s{sROW}, s{sW}, 6
"""
    for j in range(4):
        s += f"    s_add_u32 s{sT0}, s{sROW}, {16*j}\n    s_lshl_b32 s{sT0}, s{sT0}, 8\n    s_add_u32 s{sQ[j]}, s{sT0}, s{sQB}\n    s_mov_b32 s{sO[j]}, s{sOOB}\n"
    s += f"""    s_lshr_b32 s{sT0}, s{sW}, 1
    s_lshl_b32 s{sT0}, s{sT0}, 13
    s_and_b32 s{sT1}, s{sW}, 1
    s_lshl_b32 s{sT1}, s{sT1}, 6
    s_add_u32 s{sT0}, s{sT0}, s{sT1}
    s_add_u32 s{sTL}, s{sT0}, s{sKB}
    s_sub_u32 s{sTH}, s{sTL}, s83
    s_add_u32 s{sTL}, s{sTL}, s53
"""
    s += f"""
    s_lshr_b32 s{sT0}, s{sW}, 1
    s_lshl_b32 s{sT0}, s{sT0}, 12
    s_and_b32 s{sT1}, s{sW}, 1
    s_lshl_b32 s52, s{sT1}, 7
    s_add_u32 s{sKL}, s{sKB}, s{sT0}
    s_add_u32 s{sKL}, s{sKL}, s52
    s_sub_u32 s{sKH}, s{sKL}, s83
    s_add_u32 s{sKL}, s{sKL}, s53
    s_lshl_b32 s{sT1}, s{sT1}, 11
    s_add_u32 s{sKM}, s{sT0}, s{sT1}
    v_add_u32 v{vKW[0]}, s{sKM}, v{T0}
    v_add_u32 v{vKW[1]}, 0x10000, v{vKW[0]}
    v_mov_b32 v{vTHR}, 0x3f803f80
    v_accvgpr_write_b32 a{ONES}, v{vTHR}
    v_accvgpr_write_b32 a{ONES+1}, v{vTHR}
    v_accvgpr_write_b32 a{ONES+2}, v{vTHR}
    v_accvgpr_write_b32 a{ONES+3}, v{vTHR}
    v_mov_b32 v{vTHR}, {f32bits(Cfg.thr):#x}
    s_waitcnt lgkmcnt(0)
"""
    for (srd, lo, size) in ((sSRD_Q, 4, Q_BYTES), (sSRD_K, 6, KV_BYTES), (sSRD_V, 8, KV_BYTES), (sSRD_O, 10, Q_BYTES)):
        s += f"    s_mov_b32 s{srd}, s{lo}\n    s_and_b32 s{srd+1}, s{lo+1}, 0xffff\n    s_mov_b32 s{srd+2}, {size}\n    s_mov_b32 s{srd+3}, 0x00020000\n"
    return s

LET = dict(valu="a", trans="E", perm="p", lds="L", vld="G", vst="Z", dma="D", salu="s", waitl="w", waitv="W", bar="B", nop="n", ldsw="l")
def show(ops):
    gaps = []; cur = None
    for o in ops:
        if o.kind == "mfma":
            cur = []; gaps.append(cur)
        elif o.kind != "phantom" and cur is not None:
            cur.append(LET[o.kind])
    tot = 0
    W = 64 + XS[0]
    for i in range(0, len(gaps), W):
        row = gaps[i:i + W]
        c = 0
        for g in row:
            v = sum(8 if x == "E" else 4 for x in g if x in "aEp")
            nm = [x for x in g if x not in "aEp"]
            mem = [x for x in nm if x in "LGZDl"]
            cost = 4 + max(4, 4 * len(nm) + (4 if mem else 0) - (4 if (mem and v == 0) else 0)) + v
            c += max(16.5, cost)
        tot += c
        print(f"it{i//W:2d} est {c:6.0f}: " + " ".join("".join(g) if g else "-" for g in row))
    print("est total", tot)

vST0, vST1 = 250, 251
def stamp_setup():
    return f"""    s_load_dwordx2 s[54:55], s[0:1], 40
    s_waitcnt lgkmcnt(0)
    s_mov_b32 s56, s54
    s_and_b32 s57, s55, 0xffff
    s_mov_b32 s58, 0x10000000
    s_mov_b32 s59, 0x00020000
    s_lshl_b32 s60, s2, 2
    s_add_u32 s60, s60, s{sW}
    s_lshl_b32 s60, s60, 8
"""
def stamp(i, dyn=False):
    t = f"""    s_memrealtime s[62:63]
    s_memtime s[64:65]
    s_waitcnt lgkmcnt(0)
    v_mov_b32 v251, s62
"""
    so = "s60"
    if dyn:
        t += f"    s_lshl_b32 s61, s{sPASS}, 2\n    s_add_u32 s61, s61, s60\n"; so = "s61"
    t += f"    buffer_store_dword v251, off, s[56:59], {so} offset:{4*i}\n    s_nop 3\n    v_mov_b32 v251, s64\n    buffer_store_dword v251, off, s[56:59], {so} offset:{4*i+128}\n"
    return t

def slow_path_text():
    t = []
    A_ = t.append
    vKa, vVa, vMx = TMP, TMP + 1, TMP + 2
    vL = TMP + 6
    vU = TMP + 10
    sT, sP, sSo, sVs = 78, 79, 85, 86
    A_("L_slow:")
    A_("    s_waitcnt vmcnt(0) lgkmcnt(0)")
    A_(f"    v_mbcnt_lo_u32_b32 v{vU}, -1, 0")
    A_(f"    v_mbcnt_hi_u32_b32 v{vU}, -1, v{vU}")
    A_(f"    v_lshrrev_b32 v{vVa}, 4, v{vU}")
    A_(f"    v_lshlrev_b32 v{vVa}, 10, v{vVa}")
    A_(f"    v_bfe_u32 v{vU+1}, v{vU}, 2, 2")
    A_(f"    v_lshl_add_u32 v{vVa}, v{vU+1}, 4, v{vVa}")
    A_(f"    v_and_b32 v{vU+1}, 3, v{vU}")
    A_(f"    v_lshl_add_u32 v{vVa}, v{vU+1}, 1, v{vVa}")
    A_(f"    s_lshl_b32 s{sROW}, s{sW}, 6")
    A_(f"    s_mov_b32 s{sP}, 0")
    A_("L_slow_pass:")
    for j in range(4):
        A_(f"    s_add_u32 s{sT0}, s{sROW}, {16*j}")
        A_(f"    s_lshl_b32 s{sT1}, s{sT0}, 8")
        A_(f"    s_add_u32 s{sT1}, s{sT1}, s{sQB}")
        A_(f"    s_cmp_lt_u32 s{sT0}, 992")
        A_(f"    s_cselect_b32 s{sQ[j]}, s{sT1}, s{sOOB}")
    for j in range(4):
        for ss in range(4):
            A_(f"    buffer_load_dwordx4 a[{Q_(j,ss)}:{Q_(j,ss)+3}], v{vQO}, s[{sSRD_Q}:{sSRD_Q+3}], s{sQ[j]} offen offset:{64*ss}")
    for j in range(4): A_(f"    v_mov_b32 v{vMx+j}, 0xff800000")
    A_("    s_waitcnt vmcnt(0)")
    def kload():
        for kvt in range(2):
            for ss in range(4):
                A_(f"    ds_read_b128 a[{KF_(kvt,ss)}:{KF_(kvt,ss)+3}], v{vKa} offset:{kvt*4096+ss*1024}")
        A_("    s_waitcnt lgkmcnt(0)")
    def qk(usenm):
        for kvt in range(2):
            for j in range(4):
                for ss in range(4):
                    d = S_(kvt, j)
                    c = (f"v[{NM_(j)}:{NM_(j)+3}]" if usenm else "0") if ss == 0 else f"v[{d}:{d+3}]"
                    A_(f"    v_mfma_f32_16x16x32_bf16 v[{d}:{d+3}], a[{KF_(kvt,ss)}:{KF_(kvt,ss)+3}], a[{Q_(j,ss)}:{Q_(j,ss)+3}], {c}")
        A_("    s_nop 15")
    A_(f"    v_mov_b32 v{vKa}, v{vK0}")
    A_(f"    s_mov_b32 s{sT}, 0")
    A_("L_slow_max:")
    kload(); qk(False)
    for j in range(4):
        for kvt in range(2):
            d = S_(kvt, j)
            A_(f"    v_max3_f32 v{vMx+j}, v{vMx+j}, v{d}, v{d+1}")
            A_(f"    v_max3_f32 v{vMx+j}, v{vMx+j}, v{d+2}, v{d+3}")
    A_(f"    v_add_u32 v{vKa}, 8192, v{vKa}")
    A_(f"    s_add_u32 s{sT}, s{sT}, 1")
    A_(f"    s_cmp_lt_u32 s{sT}, 16")
    A_("    s_nop 7")
    A_("    s_cbranch_scc1 L_slow_max")
    def xlane(reg, op):
        for sw in ("v_permlane16_swap_b32", "v_permlane32_swap_b32"):
            A_(f"    v_mov_b32 v{vU}, v{reg}")
            A_("    s_nop 1")
            A_(f"    {sw} v{reg}, v{vU}")
            A_("    s_nop 1")
            A_(f"    {op} v{reg}, v{reg}, v{vU}")
    for j in range(4):
        xlane(vMx + j, "v_max_f32")
        for i in range(4): A_(f"    v_sub_f32 v{NM_(j)+i}, 0, v{vMx+j}")
        A_(f"    v_mov_b32 v{vL+j}, 0")
    for r in range(128): A_(f"    v_mov_b32 v{r}, 0")
    A_(f"    v_mov_b32 v{vKa}, v{vK0}")
    A_(f"    s_mov_b32 s{sT}, 0")
    A_("L_slow_pv:")
    A_(f"    s_mul_i32 s{sVs}, s84, {Cfg.rot}")
    A_(f"    s_add_u32 s{sVs}, s{sVs}, s{sT}")
    A_(f"    s_and_b32 s{sVs}, s{sVs}, 15")
    A_(f"    s_lshl_b32 s{sVs}, s{sVs}, 13")
    A_(f"    s_add_u32 s{sVs}, s{sVs}, s{sKB}")
    A_(f"    s_add_u32 s{sSo}, s{sVs}, 4096")
    kload(); qk(True)
    for j in range(4):
        for kvt in range(2):
            d = S_(kvt, j)
            for i in range(4): A_(f"    v_exp_f32 v{d+i}, v{d+i}")
            A_("    s_nop 0")
            for h in range(2): A_(f"    v_cvt_pk_bf16_f32 v{P_(0,j)+2*kvt+h}, v{d+2*h}, v{d+2*h+1}")
            for i in range(4): A_(f"    v_add_f32 v{vL+j}, v{vL+j}, v{d+i}")
    raw = P_(1, 0); pk = P_(1, 2)
    for dt in range(8):
        u, b = dt // 2, dt % 2
        for kvt in range(2):
            so = sVs if kvt == 0 else sSo
            for r in range(4):
                A_(f"    buffer_load_ushort v{raw + 4*kvt + r}, v{vVa}, s[{sSRD_V}:{sSRD_V+3}], s{so} offen offset:{r*256 + (32*u + 4*b)*2}")
        A_("    s_waitcnt vmcnt(0)")
        for h in range(4):
            A_(f"    v_lshl_or_b32 v{pk + h}, v{raw + 2*h + 1}, 16, v{raw + 2*h}")
        A_("    s_nop 1")
        for j in range(4):
            o = O_(dt, j)
            A_(f"    v_mfma_f32_16x16x32_bf16 v[{o}:{o+3}], v[{pk}:{pk+3}], v[{P_(0,j)}:{P_(0,j)+3}], v[{o}:{o+3}]")
        A_("    s_nop 7")
    A_(f"    v_add_u32 v{vKa}, 8192, v{vKa}")
    A_(f"    s_add_u32 s{sT}, s{sT}, 1")
    A_(f"    s_cmp_lt_u32 s{sT}, 16")
    A_("    s_nop 15")
    A_("    s_cbranch_scc1 L_slow_pv")
    for j in range(4):
        xlane(vL + j, "v_add_f32")
        A_(f"    v_rcp_f32 v{vL+j}, v{vL+j}")
    A_("    s_nop 1")
    for u in range(4):
        for j in range(4):
            tb = S_(0, 0) + 4 * ((u * 4 + j) % 8)
            for b in range(2):
                o = O_(2 * u + b, j)
                for i in range(4): A_(f"    v_mul_f32 v{o+i}, v{o+i}, v{vL+j}")
                for h in range(2): A_(f"    v_cvt_pk_bf16_f32 v{tb+2*b+h}, v{o+2*h}, v{o+2*h+1}")
            A_(f"    buffer_store_dwordx4 v[{tb}:{tb+3}], v{vQO}, s[{sSRD_O}:{sSRD_O+3}], s{sQ[j]} offen offset:{64*u}")
            A_("    s_nop 1")
    A_("    s_waitcnt vmcnt(0)")
    A_(f"    s_add_u32 s{sROW}, s{sROW}, 256")
    A_(f"    s_add_u32 s{sP}, s{sP}, 1")
    A_(f"    s_cmp_lt_u32 s{sP}, 4")
    A_("    s_cbranch_scc1 L_slow_pass")
    A_("    s_endpgm")
    txt = "\n".join(t) + "\n"
    return txt

def SLOWV(dt): return VF_(dt)

def main():
    ap = argparse.ArgumentParser()
    ap.add_argument("-o", default="standalone__gqa_softmax__near_ridge.s")
    ap.add_argument("--backlog", type=int, default=3)
    ap.add_argument("--lead", type=int, default=7)
    ap.add_argument("--show", action="store_true")
    ap.add_argument("--stamp", action="store_true")
    ap.add_argument("--stflags", default="")
    ap.add_argument("--qflags", default="")
    ap.add_argument("--kflags", default="")
    ap.add_argument("--vflags", default="")
    ap.add_argument("--abl", default="")
    ap.add_argument("--rot", type=int, default=0)
    ap.add_argument("--tflags", default="")
    ap.add_argument("--stj", action="store_true")
    ap.add_argument("--kall", action="store_true")
    ap.add_argument("--simple", action="store_true")
    ap.add_argument("--kahead", type=int, default=6)
    ap.add_argument("--kissue", type=int, default=2)
    ap.add_argument("--winspace", type=int, default=9)
    ap.add_argument("--nointer", action="store_true")
    ap.add_argument("--touchall", action="store_true")
    ap.add_argument("--qstart0", type=int, default=3)
    ap.add_argument("--qspace0", type=int, default=40)
    ap.add_argument("--initx", type=int, default=1)
    ap.add_argument("--x", type=int, default=0)
    ap.add_argument("--x0", type=int, default=0)
    ap.add_argument("--kfirst", type=int, default=4)
    ap.add_argument("--kbnovalu", action="store_true")
    ap.add_argument("--stampbar", action="store_true")
    ap.add_argument("--pf", type=int, default=6)
    ap.add_argument("--nopk", action="store_true")
    ap.add_argument("--stspace", type=int, default=14)
    ap.add_argument("--qstart", type=int, default=5)
    ap.add_argument("--qspace", type=int, default=24)
    ap.add_argument("--bargap", type=int, default=11)
    args = ap.parse_args()
    for x in args.abl.split(","):
        if x: ABL.add(x)
    Cfg.backlog = args.backlog; Cfg.lds_lead = args.lead
    Cfg.pf = args.pf
    Cfg.t_flags = (' ' + args.tflags) if args.tflags else ''
    Cfg.kb_novalu = args.kbnovalu
    Cfg.k_first = args.kfirst
    Cfg.q_start0 = args.qstart0; Cfg.q_space0 = args.qspace0
    if args.kall:
        Cfg.kall = True
        Cfg.init_extra = [("k", t) for t in range(4, 16)] + [("t", 2)]
        Cfg.early_list = [("t", 4), ("t", 6)]
    elif args.initx == 0:
        Cfg.early_list = Cfg.init_extra + Cfg.early_list; Cfg.init_extra = []
    elif args.initx == 2:
        Cfg.init_extra = Cfg.init_extra + Cfg.early_list; Cfg.early_list = []
    Cfg.touch_all = args.touchall
    if args.nointer: Cfg.interleave = 0
    Cfg.win_space = args.winspace
    Cfg.simple = args.simple; Cfg.k_ahead = args.kahead; Cfg.k_issue = args.kissue
    Cfg.st_jmajor = args.stj
    Cfg.rot = args.rot; Cfg.pkmul = not args.nopk
    Cfg.st_space = args.stspace; Cfg.q_start = args.qstart; Cfg.q_space = args.qspace; Cfg.bar_gap = args.bargap
    Cfg.st_flags = (" " + args.stflags) if args.stflags else ""
    Cfg.q_flags = (" " + args.qflags) if args.qflags else ""
    Cfg.k_flags = (" " + args.kflags) if args.kflags else ""
    Cfg.v_flags = (" " + args.vflags) if args.vflags else ""

    def pol(k, remaining, ready, emit_, state):
        state["backlog"] = Cfg.backlog
        default_policy(k, remaining, ready, emit_, state)
    noff0 = next_offsets_ops()
    tail = parked_stores(15)
    if Cfg.simple:
        XS[0] = args.x
        init_ops = []
        body0, vd0 = build_simple_prologue()
        body, late = build_body(False, None)
        for o in body:
            if o.kind == "waitv" and o.name == "vw0": o.covers = vd0 + late
        body0_sched = schedule(body0, pol, verbose=True)
        body_sched = schedule(body, pol, verbose=True)
        setx = Op("", "valu", [], regs("a", X_(0), 64), None, {r: ("OX", -1, None, u, j) for u in range(4) for j in range(4) for r in regs("a", X_(u * 4 + j), 4)})
        trace = [(body0_sched, 0), ([setx], 0), (noff0, 0)] + [(body_sched, p) for p in range(0, 4)] + [(tail, 3)]
    else:
        init_ops, info = init_issue_ops()
        XS[0] = args.x0
        body0, late0 = build_body(True, info)
        XS[0] = args.x
        body, late = build_body(False, None)
        for o in body:
            if o.kind == "waitv" and o.name == "vw0": o.covers = late0 + late
        body0_sched = schedule(body0, pol, verbose=True)
        body_sched = schedule(body, pol, verbose=True)
        trace = [(init_ops, 0), (noff0, 0), (body0_sched, 0)] + [(body_sched, p) for p in range(1, 4)] + [(tail, 3)]
    resolve_waits(trace)
    errs = check_trace(trace)
    for e in errs[:40]: print("ERR", e)
    print("errors:", len(errs))
    nm = sum(1 for o in body_sched if o.kind == "mfma")
    print("body instrs:", sum(1 for o in body_sched if o.kind != "phantom"), "mfma:", nm, " body0 instrs:", sum(1 for o in body0_sched if o.kind != "phantom"))
    if args.show:
        XS[0] = args.x0; show(body0_sched); XS[0] = args.x; show(body_sched)

    s = f"""; GQA attention forward, bf16, B=16 Hq=32 Hkv=8 Sq=496 Sk=512 D=128  (generated by gen/gen.py)
; @launch grid=(256,1,1) block=(256,1,1) lds=163840
.amdgcn_target "amdgcn-amd-amdhsa--gfx950"
.text
.globl {KNAME}
.p2align 8
.type {KNAME},@function
{KNAME}:
"""
    pt = prologue_text()
    pf = ""
    if Cfg.pf:
        pf = f"""    s_getpc_b64 s[80:81]
L_pc:
    v_lshlrev_b32 v{TMP+12}, {Cfg.pf}, v0
    s_mov_b32 s82, L_code_end-L_pc-4
"""
        step = 256 << Cfg.pf
        for i in range((Cfg.code_bytes + step - 1) // step):
            pf += f"    v_min_u32 v{TMP+13}, s82, v{TMP+12}\n    global_load_dword v{TMP+14+i%4}, v{TMP+13}, s[80:81]\n    v_add_u32 v{TMP+12}, {step}, v{TMP+12}\n"
    pt = pt.replace("PREFETCH\n", pf)
    if args.stamp:
        a, b = pt.split("    ; workgroup -> (group, half)")
        pt = a + stamp_setup() + stamp(0) + "    ; workgroup -> (group, half)" + b
    s += pt
    s += emit_fix(init_ops)
    if not Cfg.simple: s += emit(noff0)
    if args.stamp: s += stamp(1)
    b0 = emit(body0_sched)
    if args.stamp and args.stampbar:
        parts = b0.split("    s_barrier\n")
        b0 = parts[0]
        for k, p_ in enumerate(parts[1:]):
            b0 += "    s_barrier\n" + stamp(8 + k) + p_
    s += b0
    if Cfg.simple: s += emit(noff0)
    if args.stamp: s += stamp(2)
    s += f"    s_mov_b32 s{sPASS}, {0 if Cfg.simple else 1}\n"
    s += ".p2align 6\nL_pass:\n"
    b1 = emit(body_sched)
    if args.stamp and args.stampbar:
        parts = b1.split("    s_barrier\n")
        b1 = stamp(18) + parts[0]
        for k, p_ in enumerate(parts[1:]):
            b1 += "    s_barrier\n" + stamp(19 + k) + p_
        idx = b1.rindex("    v_mfma")
        idx = b1.index("\n", idx) + 1
        b1 = b1[:idx] + stamp(27) + b1[idx:] + stamp(28)
    s += b1
    if args.stamp: s += stamp(3 if Cfg.simple else 2, dyn=True)
    s += f"""    s_add_u32 s{sPASS}, s{sPASS}, 1
    s_cmp_lt_u32 s{sPASS}, 4
    s_cbranch_scc1 L_pass
"""
    s += emit(tail)
    if args.stamp: s += "    s_waitcnt vmcnt(0)\n" + stamp(7 if Cfg.simple else 6)
    s += f"""    s_cmp_lg_u64 s[{sFLAG}:{sFLAG+1}], 0
    s_cbranch_scc1 L_slow
L_end:
    s_endpgm
L_code_end:
"""
    s += slow_path_text()
    s += f"""
.section .rodata,"a"
.p2align 6
.amdhsa_kernel {KNAME}
  .amdhsa_next_free_vgpr 512
  .amdhsa_next_free_sgpr 88
  .amdhsa_accum_offset 256
  .amdhsa_group_segment_fixed_size 0
  .amdhsa_kernarg_size 48
  .amdhsa_user_sgpr_count 2
  .amdhsa_user_sgpr_kernarg_segment_ptr 1
  .amdhsa_system_sgpr_workgroup_id_x 1
.end_amdhsa_kernel
"""
    open(args.o, "w").write(s)

if __name__ == "__main__":
    main()
```

```python
import sys, os, struct, argparse
sys.path.insert(0, os.path.dirname(os.path.abspath(__file__)))
from sched import *

KNAME = "standalone__gqa_softmax__near_ridge_kernel"

def O_(dt, j): return (dt * 4 + j) * 4
def S_(kvt, j): return 128 + (kvt * 4 + j) * 4
def P_(buf, j): return 160 + buf * 16 + j * 4
def NM_(j): return 192 + 4 * j
def LS0_(j): return 208 + j
def LS1_(j): return 212 + j
TMP = 216
vK0, vK1 = 240, 241
vV = [242, 243, 244, 245]
vQO = 246
vDMA = 247
vRC = [248, 249, 250, 251]
def vRCP(j): return 248 + j
vQL = 252
vSTW = 253
vSTR = 254
vTHR = 255
vPF = 254
def Q_(j, s): return (j * 4 + s) * 4
def X_(n): return 64 + n * 4
def KF_(kvt, s, par=0): return 128 + par * 32 + (kvt * 4 + s) * 4
def VF_(dt): return 192 + dt * 4
def L_(j): return 224 + 4 * j
ONES = 240
XS = [0]
def msum(j): return j >= 4 - XS[0]
def KR_(s): return 224 + 4 * s

sSRD_Q, sSRD_K, sSRD_V, sSRD_O = 12, 16, 20, 24
sW = 28; sPASS = 29
sQ = [30, 31, 32, 33]
sO = [34, 35, 36, 37]
sVB = 38; sVO = 39; sM0B = 40; sQB = 41
sFLAG = 42
sROW = 44
sT0, sT1 = 45, 46
sC = 47
sKB = 49; sOOB = 50; sVO2 = 51
sOP = [66, 67, 68, 69]
sVBH = 70
sKL, sKH = 71, 72
sKM = 73
sKO = 74
sVT, sVTH = 75, 76
vKW = [248, 249]
vTCH = 253

LDS_V = 131072
LDS_STG = 31 * 4096
Q_BYTES = 16 * 32 * 496 * 128 * 2
KV_BYTES = 16 * 8 * 512 * 128 * 2
CSCALE = (128 ** -0.5) * 1.4426950408889634
def f32bits(x): return struct.unpack("<I", struct.pack("<f", x))[0]

class Cfg:
    backlog = 3
    lds_lead = 7
    thr = 2.0 ** 30
    pkmul = True
    rot = 0
    pf2 = 10
    st_jmajor = False
    kall = False
    k_ahead = 6
    k_issue = 2
    simple = False
    interleave = 2
    win_space = 9
    st_plan = [(n // 4, n % 4) for n in range(16)]
    q_plan = [(1, 4), (1, 5), (1, 6), (2, 4), (2, 5), (2, 6), (3, 4), (3, 5), (3, 6), (4, 0), (4, 2), (4, 4), (4, 6), (5, 0), (5, 2), (5, 4)]
    kb_off = 12
    touch_all = False
    touch_ahead = 8
    k_first = 4
    early0 = 2
    qcopy_span = 70
    kb_novalu = False
    t_flags = ''
    init_extra = [("t", 2), ("k", 4), ("k", 5)]
    early_list = [("t", 4), ("k", 6), ("k", 7), ("t", 6)]
    pf = 6
    code_bytes = 60000
    st_space = 14
    q_start = 5
    q_start0 = 3
    q_space0 = 40
    q_space = 24
    bar_gap = 11
    st_flags = ""
    q_flags = ""
    k_flags = ""
    v_flags = ""

def V(i): return f"v{i}"
def A(i): return f"a{i}"

def mfma(d, dpre, a, apre, b, bpre, c=None, rtag=None, wtag=None):
    dr = regs(dpre, d, 4)
    reads = regs(apre, a, 4) + regs(bpre, b, 4)
    if c is None:
        ctext = "0"; srcc = []
    else:
        ctext = rng(dpre, c, 4); srcc = regs(dpre, c, 4); reads += srcc
    return Op(f"v_mfma_f32_16x16x32_bf16 {rng(dpre, d, 4)}, {rng(apre, a, 4)}, {rng(bpre, b, 4)}, {ctext}", "mfma",
              reads, dr, rtag, wtag, srcc=srcc)

def valu(text, reads, writes, rtag=None, wtag=None, kind="valu"):
    return Op(text, kind, reads, writes, rtag, wtag)

def salu(text, reads=(), writes=()):
    return Op(text, "salu", reads, writes)

def ds_read(dst, n, vaddr, off, tagf, tr=False, extra_reads=(), lead=None):
    d = regs("a", dst, n)
    ins = "ds_read_b64_tr_b16" if tr else "ds_read_b128"
    return Op(f"{ins} {rng('a', dst, n)}, v{vaddr} offset:{off}", "lds", [V(vaddr)] + list(extra_reads),
              d + ["pend:" + r for r in d], None, {r: tagf for r in d}, lead=Cfg.lds_lead if lead is None else lead)

def wait(kind, loads, extra_covers=()):
    rs = []; ws = []
    for l in loads:
        for w in l.writes:
            if w.startswith("pend:"):
                rs.append(w); ws.append(w[5:])
    return Op("", kind, rs, ws, covers=list(loads) + list(extra_covers))

def k_reads(t, kvt):
    ops = []
    for s in range(4):
        off = t * 8192 + kvt * 4096 + s * 1024
        va = vK0
        if off >= 65536: off -= 65536; va = vK1
        ops.append(ds_read(KF_(kvt, s, t % 2), 4, va, off, ("K", None, None, t, kvt, s)))
    return ops

def kreg(t, kvt, s):
    return KF_(kvt, s, t % 2)

def v_reads(t, dt):
    slot = t % 4
    u, b = dt // 2, dt % 2
    ops = []
    for kvt in range(2):
        off = slot * 8192 + kvt * 4096 + 8 * b
        ops.append(ds_read(VF_(dt) + 2 * kvt, 2, vV[u], off, ("V", None, None, t, dt, kvt), tr=True,
                           extra_reads=[f"ps:vready{t // 2 % 2}"]))
    return ops

def qk_chain(n, kvt, j, first):
    t = n % 16; rp = n // 16
    l = []
    for s in range(4):
        q = X_(j * 4 + s) if n == 16 else Q_(j, s); kr = kreg(t, kvt, s)
        rt = {r: ("K", None, None, t, kvt, s) for r in regs("a", kr, 4)}
        rt.update({r: ("Q", None, rp, j, s) for r in regs("a", q, 4)})
        if s == 0:
            if first and kvt == 0: c = None
            else:
                c = NM_(j); rt.update({r: ("NM", None, rp, j) for r in regs("v", c, 4)})
        else:
            c = S_(kvt, j); rt.update({r: ("Sp", n, None, kvt, j, s - 1) for r in regs("v", c, 4)})
        wt = {r: (("Sp", n, None, kvt, j, s) if s < 3 else ("S", n, None, kvt, j, i))
              for i, r in enumerate(regs("v", S_(kvt, j), 4))}
        if s == 3 and first and kvt == 0:
            wt = {r: ("Sraw", n, None, kvt, j, i) for i, r in enumerate(regs("v", S_(kvt, j), 4))}
        l.append(mfma(S_(kvt, j), "v", kr, "a", q, "a", c, rt, wt))
    return l

def max_ops(n, j):
    rp = n // 16
    ops = []
    s = S_(0, j); t = TMP + 2 * j; u = TMP + 2 * j + 1
    raw = lambda i: {V(s + i): ("Sraw", n, None, 0, j, i)}
    rt = {}; [rt.update(raw(i)) for i in range(3)]
    ops.append(valu(f"v_max3_f32 v{t}, v{s}, v{s+1}, v{s+2}", [V(s), V(s+1), V(s+2)], [V(t)], rt))
    ops.append(valu(f"v_max_f32 v{t}, v{t}, v{s+3}", [V(t), V(s+3)], [V(t)], raw(3)))
    for sw in ("v_permlane16_swap_b32", "v_permlane32_swap_b32"):
        ops.append(valu(f"v_mov_b32 v{u}, v{t}", [V(t)], [V(u)]))
        ops.append(valu(f"{sw} v{t}, v{u}", [V(t), V(u)], [V(t), V(u)], kind="perm"))
        ops.append(valu(f"v_max_f32 v{t}, v{t}, v{u}", [V(t), V(u)], [V(t)]))
    for i in range(4):
        ops.append(valu(f"v_sub_f32 v{NM_(j)+i}, 0, v{t}", [V(t)], [V(NM_(j)+i)], None, {V(NM_(j)+i): ("NM", None, rp, j)}))
    for i in range(4):
        ops.append(valu(f"v_sub_f32 v{s+i}, v{s+i}, v{t}", [V(s+i), V(t)], [V(s+i)], raw(i), {V(s+i): ("S", n, None, 0, j, i)}))
    return ops

def sm_ops(n, kvt, j):
    ops = []
    s = S_(kvt, j); buf = n % 2
    t = n % 16
    for i in range(4):
        ops.append(valu(f"v_exp_f32 v{s+i}, v{s+i}", [V(s+i)], [V(s+i)], {V(s+i): ("S", n, None, kvt, j, i)},
                        {V(s+i): ("E", n, None, kvt, j, i)}, kind="trans"))
        et = {V(s+i): ("E", n, None, kvt, j, i)}
        if msum(j): pass
        elif t == 0:
            if kvt == 0 and i == 0: pass
            elif kvt == 0 and i == 1:
                ops.append(valu(f"v_add_f32 v{LS0_(j)}, v{s}, v{s+1}", [V(s), V(s+1)], [V(LS0_(j))], et))
            else:
                ops.append(valu(f"v_add_f32 v{LS0_(j)}, v{LS0_(j)}, v{s+i}", [V(LS0_(j)), V(s+i)], [V(LS0_(j))], et))
        elif t == 1 and kvt == 0 and i == 0:
            ops.append(valu(f"v_add_f32 v{LS1_(j)}, v{LS0_(j)}, v{s+i}", [V(LS0_(j)), V(s+i)], [V(LS1_(j))], et))
        else:
            ops.append(valu(f"v_add_f32 v{LS1_(j)}, v{LS1_(j)}, v{s+i}", [V(LS1_(j)), V(s+i)], [V(LS1_(j))], et))
        if i % 2 == 1:
            pr = P_(buf, j) + 2 * kvt + i // 2
            rt = {V(s+i-1): ("E", n, None, kvt, j, i-1), V(s+i): ("E", n, None, kvt, j, i)}
            ops.append(valu(f"v_cvt_pk_bf16_f32 v{pr}, v{s+i-1}, v{s+i}", [V(s+i-1), V(s+i)], [V(pr)], rt,
                            {V(pr): ("P", n, None, j, 2 * kvt + i // 2)}))
    return ops

def pv_ops(n, dt):
    t = n % 16; buf = n % 2
    l = []
    for j in range(4):
        rt = {}
        for kvt in range(2):
            rt.update({r: ("V", None, None, t, dt, kvt) for r in regs("a", VF_(dt) + 2 * kvt, 2)})
        rt.update({r: ("P", n, None, j, i) for i, r in enumerate(regs("v", P_(buf, j), 4))})
        if t == 0: c = None
        else:
            c = O_(dt, j); rt.update({r: ("O", n - 1, None, dt, j) for r in regs("v", c, 4)})
        wt = {r: ("O", n, None, dt, j) for r in regs("v", O_(dt, j), 4)}
        l.append(mfma(O_(dt, j), "v", VF_(dt), "a", P_(buf, j), "v", c, rt, wt))
    return l

def sum_ops(n):
    t = n % 16; buf = n % 2
    l = []
    for j in range(4):
        if not msum(j): continue
        rt = {r: ("P", n, None, j, i) for i, r in enumerate(regs("v", P_(buf, j), 4))}
        c = None if t == 0 else L_(j)
        l.append(mfma(L_(j), "a", ONES, "a", P_(buf, j), "v", c, rt, None))
    return l

def q_raw_loads(rp, direct=False):
    ops = []
    for j in range(4):
        for s in range(4):
            d = Q_(j, s) if direct else X_(j * 4 + s)
            dr = regs("a", d, 4)
            ops.append(Op(f"buffer_load_dwordx4 {rng('a', d, 4)}, v{vQO}, s[{sSRD_Q}:{sSRD_Q+3}], s{sQ[j]} offen offset:{64*s}{Cfg.q_flags}",
                          "vld", [V(vQO), f"s{sQ[j]}"], dr + ["pend:" + r for r in dr], None,
                          {r: ("Q", None, rp, j, s) for r in dr}))
    return ops

def q_copy(rp, j, s):
    ops = []
    for i in range(4):
        x = X_(j * 4 + s) + i; q = Q_(j, s) + i
        ops.append(valu(f"v_accvgpr_mov_b32 a{q}, a{x}", [A(x)], [A(q)], {A(x): ("Q", None, rp, j, s)}, {A(q): ("Q", None, rp, j, s)}))
    return ops

def dma_ops(t):
    slot = t % 4
    so = sVO if t % 2 == 0 else sVO2
    ops = [salu(f"s_add_u32 m0, s{sM0B}, {slot * 8192}", [f"s{sM0B}"], ["m0"]),
           salu(f"s_add_u32 s{so}, s{sVB if t < 16 - Cfg.rot else sVBH}, {t * 8192}", [f"s{sVB}"], [f"s{so}"])]
    for h in range(2):
        ops.append(Op(f"buffer_load_dwordx4 v{vDMA}, s[{sSRD_V}:{sSRD_V+3}], s{so} offen offset:{1024*h}{Cfg.v_flags} lds", "dma",
                      [V(vDMA), f"s{so}", "m0", f"ps:vfree{t // 2 % 2}"], [f"ps:vdst{t%4}_{h}"]))
    return ops

def epilogue_ops(n):
    ops = []
    for j in range(4):
        t = TMP + 8 + 2 * j; u = TMP + 8 + 2 * j + 1
        if msum(j):
            ops.append(valu(f"v_accvgpr_read_b32 v{t}, a{L_(j)}", [A(L_(j))], [V(t)]))
        else:
            ops.append(valu(f"v_mov_b32 v{t}, v{LS1_(j)}", [V(LS1_(j))], [V(t)]))
        for sw in ("v_permlane16_swap_b32", "v_permlane32_swap_b32"):
            if msum(j): break
            ops.append(valu(f"v_mov_b32 v{u}, v{t}", [V(t)], [V(u)]))
            ops.append(valu(f"{sw} v{t}, v{u}", [V(t), V(u)], [V(t), V(u)], kind="perm"))
            ops.append(valu(f"v_add_f32 v{t}, v{t}, v{u}", [V(t), V(u)], [V(t)]))
        ops.append(valu(f"v_rcp_f32 v{vRC[j]}, v{t}", [V(t)], [V(vRC[j])], kind="trans"))
        ops.append(valu(f"v_cmp_nle_f32 vcc, v{t}, v{vTHR}", [V(t), V(vTHR)], ["vcc"]))
        ops.append(salu(f"s_or_b64 s[{sFLAG}:{sFLAG+1}], s[{sFLAG}:{sFLAG+1}], vcc", ["vcc", f"s{sFLAG}"], [f"s{sFLAG}"]))
    cnt = 0
    for u in range(4):
        for j in range(4):
            tb = TMP + 16 + 4 * (cnt % 2); cnt += 1
            for b in range(2):
                o = O_(2 * u + b, j)
                if Cfg.pkmul:
                    for i in (0, 2):
                        pb = 248 + (j & ~1); sel = j & 1
                        op = valu(f"v_pk_mul_f32 v[{o+i}:{o+i+1}], v[{o+i}:{o+i+1}], v[{pb}:{pb+1}] op_sel:[0,{sel}] op_sel_hi:[1,{sel}]",
                                  [V(o+i), V(o+i+1), V(vRC[j])], [V(o+i), V(o+i+1)],
                                  {V(o+i): ("O", n, None, 2 * u + b, j), V(o+i+1): ("O", n, None, 2 * u + b, j)})
                        op.reads.append("ps:nomfma")
                        ops.append(op)
                else:
                    for i in range(4):
                        ops.append(valu(f"v_mul_f32 v{o+i}, v{o+i}, v{vRC[j]}", [V(o+i), V(vRC[j])], [V(o+i)],
                                        {V(o+i): ("O", n, None, 2 * u + b, j)}))
                for h in range(2):
                    ops.append(valu(f"v_cvt_pk_bf16_f32 v{tb+2*b+h}, v{o+2*h}, v{o+2*h+1}", [V(o+2*h), V(o+2*h+1)], [V(tb+2*b+h)]))
            x = X_(u * 4 + j)
            for i in range(4):
                ops.append(valu(f"v_accvgpr_write_b32 a{x+i}, v{tb+i}", [V(tb+i)], [A(x+i)], None, {A(x+i): ("OX", n, None, u, j)}))
    return ops

def parked_stores(n):
    ops = []
    order = [(u, j) for u in range(4) for j in range(4)] if not Cfg.st_jmajor else [(u, j) for j in range(4) for u in range(4)]
    for (u, j) in order:
        if True:
            x = X_(u * 4 + j); xr = regs("a", x, 4)
            ops.append(Op(f"buffer_store_dwordx4 {rng('a', x, 4)}, v{vQO}, s[{sSRD_O}:{sSRD_O+3}], s{sOP[j]} offen offset:{64*u}{Cfg.st_flags}",
                          "vst", xr + [V(vQO), f"s{sOP[j]}"], [], {r: ("OX", n, None, u, j) for r in xr}))
    return ops

def k_dma_ops(t):
    ops = []
    for h in range(2):
        ops.append(salu(f"s_add_u32 m0, s{sKM}, {t * 8192 + h * 1024}", [f"s{sKM}"], ["m0"]))
        ops.append(salu(f"s_add_u32 s{sKO}, s{sKL if t < 16 - Cfg.rot else sKH}, {t * 8192 + h * 64}", [], [f"s{sKO}"]))
        ops.append(Op(f"buffer_load_dwordx4 v{vQL}, s[{sSRD_K}:{sSRD_K+3}], s{sKO} offen{Cfg.k_flags} lds", "dma",
                      [V(vQL), f"s{sKO}", "m0"], [f"pend:ps:kraw{t}_{h}"]))
    return ops

def k_build_ops(t, idx):
    ops = []
    for h in range(2):
        base = TMP + 12 * ((2 * idx + h) % 2)
        off = t * 8192 + h * 1024
        va = vKW[0]
        if off >= 65536: off -= 65536; va = vKW[1]
        d = regs("v", base, 4)
        rd = Op(f"ds_read_b128 {rng('v', base, 4)}, v{va} offset:{off}", "lds", [V(va), f"ps:kraw{t}_{h}"],
                d + ["pend:" + r for r in d], lead=Cfg.lds_lead)
        ops.append(rd); ops.append(wait("waitl", [rd]))
        for i in range(4):
            if Cfg.kb_novalu and t >= 4: break
            r = base + i; a, b = base + 4 + 2 * i, base + 5 + 2 * i
            ops.append(valu(f"v_lshlrev_b32 v{a}, 16, v{r}", [V(r)], [V(a)]))
            ops.append(valu(f"v_and_b32 v{b}, 0xffff0000, v{r}", [V(r)], [V(b)]))
            ops.append(valu(f"v_mul_f32 v{a}, s{sC}, v{a}", [V(a)], [V(a)]))
            ops.append(valu(f"v_mul_f32 v{b}, s{sC}, v{b}", [V(b)], [V(b)]))
            ops.append(valu(f"v_cvt_pk_bf16_f32 v{r}, v{a}, v{b}", [V(a), V(b)], [V(r)]))
        ops.append(Op(f"ds_write_b128 v{va}, {rng('v', base, 4)} offset:{off}", "ldsw", [V(va)] + d, [f"ps:kw{t}_{h}", f"pend:ps:kws{t}_{h}"]))
    return ops

sTL, sTH, sTO = 75, 76, 77
def touch_ops(t):
    return [salu(f"s_add_u32 s{sTO}, s{sTL if t < 16 - Cfg.rot else sTH}, {t * 8192}", [], [f"s{sTO}"]),
            Op(f"buffer_load_dword a255, v{vTCH}, s[{sSRD_V}:{sSRD_V+3}], s{sTO} offen{Cfg.t_flags}", "vld",
               [V(vTCH), f"s{sTO}"], [A(255)])]

def next_offsets_ops():
    ops = []
    for j in range(4):
        ops.append(salu(f"s_mov_b32 s{sOP[j]}, s{sO[j]}", [f"s{sO[j]}"], [f"s{sOP[j]}"]))
        ops.append(salu(f"s_mov_b32 s{sO[j]}, s{sQ[j]}", [f"s{sQ[j]}"], [f"s{sO[j]}"]))
    ops.append(salu(f"s_add_u32 s{sROW}, s{sROW}, 256", [f"s{sROW}"], [f"s{sROW}", "scc"]))
    for j in range(4):
        o = Op(f"s_add_u32 s{sT0}, s{sROW}, {16*j}\n    s_lshl_b32 s{sT1}, s{sT0}, 8\n    s_add_u32 s{sT1}, s{sT1}, s{sQB}\n"
               f"    s_cmp_lt_u32 s{sT0}, 992\n    s_cselect_b32 s{sQ[j]}, s{sT1}, s{sOOB}", "salu",
               [f"s{sROW}", f"s{sQB}"], [f"s{sQ[j]}", f"s{sT0}", f"s{sT1}", "scc"])
        ops.append(o)
    return ops

def qk_seq(n, first):
    ops = []
    if first:
        for j in range(4): ops += qk_chain(n, 0, j, True)
        for j in range(4): ops += max_ops(n, j)
        for j in range(4): ops += qk_chain(n, 1, j, True)
    else:
        for j in range(4):
            for kvt in range(2): ops += qk_chain(n, kvt, j, False)
    return ops

G = lambda i, k: (64 + XS[0]) * i + k + GOFF[0]
GOFF = [0]

def init_issue_ops():
    ops = []; info = {"kd": {}, "vd": {}}
    def kd(t):
        d = k_dma_ops(t); ops.extend(d); info["kd"][t] = [o for o in d if o.kind == "dma"]
    for t in range(Cfg.k_first): kd(t)
    q = q_raw_loads(0, direct=True); ops.extend(q); info["q"] = q
    for t in range(Cfg.k_first, 4): kd(t)
    for t in (0, 1):
        d = dma_ops(t); ops.extend(d); info["vd"][t] = [o for o in d if o.kind == "dma"]
    for grp in Cfg.init_extra:
        if grp[0] == "t": ops.extend(touch_ops(grp[1]))
        else: kd(grp[1])
    return ops, info

def build_simple_prologue():
    ops = []; kd = {}
    prev = [None]
    def chain(d):
        for o in d:
            if prev[0] is not None: o.deps.append((prev[0], 0, 0))
            prev[0] = o
        ops.extend(d)
    def issue_k(t):
        d = k_dma_ops(t); chain(d); kd[t] = [o for o in d if o.kind == "dma"]
    AHEAD = Cfg.k_ahead
    for t in range(min(AHEAD, 16)): issue_k(t)
    later = []
    for t in range(AHEAD, 16): later.append(("k", t))
    q = q_raw_loads(0, direct=True)
    for n in range(0, 16, 2): later.append(("q", q[n:n + 2]))
    vd = []
    for t in (0, 1): later.append(("v", t))
    def issue_next(n):
        for _ in range(n):
            if not later: return
            k, a = later.pop(0)
            if k == "k": issue_k(a)
            elif k == "q": chain(a)
            elif k == "v":
                d = dma_ops(a); chain(d); vd.extend([o for o in d if o.kind == "dma"])
            else: chain(touch_ops(a))
    wr_all = []
    for t in range(16):
        w = wait("waitv", kd[t]); chain([w])
        kb = k_build_ops(t, t); chain(kb)
        wr_all += [o for o in kb if o.kind == "ldsw"]
        issue_next(Cfg.k_issue)
    issue_next(100)
    chain([wait("waitl", wr_all)])
    chain([Op("s_barrier", "bar", [f"ps:kws{t}_{h}" for t in range(16) for h in (0, 1)], ["ps:kready0"])])
    kr = k_reads(0, 0) + k_reads(0, 1)
    for o in kr: o.reads.append("ps:kready0")
    ops += kr
    ops.append(wait("waitl", kr[:4])); ops.append(wait("waitl", kr[4:]))
    for j in range(4): ops.append(wait("waitv", q[4 * j:4 * j + 4]))
    ops += qk_seq(0, True)
    x = 0
    for t in range(2, 16, 2):
        for o in touch_ops(t):
            o.minGap = 1 + 2 * x; o.cap = o.minGap; x += 1
            ops.append(o)
    kr = k_reads(1, 0) + k_reads(1, 1)
    for o in kr: o.reads.append("ps:kready0")
    ops += kr
    for j in range(4):
        for kvt in range(2): ops += sm_ops(0, kvt, j)
    ops.append(wait("waitl", kr[:4])); ops.append(wait("waitl", kr[4:]))
    return ops, vd

def build_body(pass0, info):
    ops = []
    dmas = {}
    kd = {}
    GOFF[0] = 0
    if pass0:
        kd = dict(info["kd"])
        GOFF[0] = 32
        pre = list(range(Cfg.k_first))
        wr_all = []
        for t in pre:
            w = wait("waitv", kd[t]); ops.append(w)
            kb = k_build_ops(t, t); ops += kb
            wr_all += [o for o in kb if o.kind == "ldsw"]
        ops.append(wait("waitl", wr_all))
        barA = Op("s_barrier", "bar", [f"ps:kws{t}_{h}" for t in pre for h in (0, 1)], ["ps:kready0"] + (["ps:kready1"] if 1 in pre else []))
        ops.append(barA)
        kr = k_reads(0, 0) + k_reads(0, 1)
        for o in kr: o.reads.append("ps:kready0")
        ops += kr
        ops.append(wait("waitl", kr[:4])); ops.append(wait("waitl", kr[4:]))
        for j in range(4):
            ops.append(wait("waitv", info["q"][4 * j:4 * j + 4]))
        ops += qk_seq(0, True)
        x = 0
        for grp in Cfg.early_list:
            d = touch_ops(grp[1]) if grp[0] == "t" else k_dma_ops(grp[1])
            for o in d:
                o.minGap = Cfg.early0 + x; o.cap = o.minGap; x += 1
            ops += d
            if grp[0] == "k": kd[grp[1]] = [o for o in d if o.kind == "dma"]
        if 1 not in pre:
            w = wait("waitv", kd[1]); w.cap = 0; ops.append(w)
            kb = k_build_ops(1, 1)
            for x, o in enumerate(kb): o.cap = 1 + x // 3
            ops += kb
            ops.append(wait("waitl", [o for o in kb if o.kind == "ldsw"]))
            barB = Op("s_barrier", "bar", [f"ps:kws1_{h}" for h in (0, 1)], ["ps:kready1"])
            barB.cap = 20
            ops.append(barB)
        kr = k_reads(1, 0) + k_reads(1, 1)
        for o in kr: o.reads.append("ps:kready1")
        ops += kr
        for j in range(4):
            for kvt in range(2): ops += sm_ops(0, kvt, j)
        ops.append(wait("waitl", kr[:4])); ops.append(wait("waitl", kr[4:]))
        dmas[0] = info["vd"][0]; dmas[1] = info["vd"][1]
    else:
        ps = parked_stores(-1)
        for x, o in enumerate(ps):
            if Cfg.interleave == 2:
                e, k = Cfg.st_plan[x]
                o.minGap = G(2 * e, Cfg.bar_gap + 12) + k * Cfg.win_space
            else:
                o.minGap = 2 + Cfg.st_space * x
            o.cap = o.minGap + 4
        ops += ps
    qraw = None
    for i in range(16):
        n = i + 1
        first = (n == 16)
        if first:
            for j in range(4):
                wq = wait("waitv", qraw[4 * j:4 * j + 4]); wq.cap = G(14, 4 + 8 * j); ops.append(wq)
        ops += qk_seq(n, first)
        if first:
            x = 0
            for j in range(4):
                for s_ in range(4):
                    for o in q_copy(1, j, s_):
                        o.cap = G(14, 10 + 8 * j) + ((x % 16) * Cfg.qcopy_span) // 16; x += 1
                        ops.append(o)
        extra_bar_reads = []
        if pass0 and i % 2 == 0 and i <= 12 and not (i == 0 and Cfg.k_first == 4):
            w = wait("waitv", kd[i + 2] + kd[i + 3]); ops.append(w)
            W_ = 64 + XS[0]
            if i > 2 or (i == 2):
                w.cap = G(i - 2, Cfg.bar_gap + Cfg.kb_off); w.minGap = w.cap
                span = 2 * W_ - Cfg.kb_off - 8
            else:
                w.cap = 0; span = 30
            kb = k_build_ops(i + 2, 0) + k_build_ops(i + 3, 1)
            for x, o in enumerate(kb):
                o.cap = w.cap + 2 + (x * span) // len(kb)
                o.minGap = o.cap - 2
            ops += kb
            wr = [o for o in kb if o.kind == "ldsw"]
            ops.append(wait("waitl", wr))
            extra_bar_reads = [f"ps:kws{t}_{h}" for t in (i + 2, i + 3) for h in (0, 1)]
        if i % 2 == 0:
            cov = []
            for t in (i, i + 1):
                if t in dmas: cov += dmas[t]
            wv = Op("", "waitv", [], [f"ps:vw{i}"], covers=cov)
            wv.name = f"vw{i}"
            if i > 0:
                for c in cov: wv.deps.append((c, 0, 0))
            wv.cap = G(i, Cfg.bar_gap - 1)
            ops.append(wv)
            wr = [f"ps:vready{i // 2 % 2}", f"ps:vfree{(i // 2 + 1) % 2}", f"ps:kbar{i}"]
            bar = Op("s_barrier", "bar", [f"ps:vw{i}", "ps:vused"] + extra_bar_reads, wr)
            bar.cap = G(i, Cfg.bar_gap); bar.minGap = G(i, Cfg.bar_gap - 2)
            ops.append(bar)
            x = 0
            for t in (i + 2, i + 3):
                d = dma_ops(t % 16)
                for o in d:
                    o.cap = G(i, Cfg.bar_gap + 2 + 2 * x); x += 1
                ops += d
                dmas[t] = [o for o in d if o.kind == "dma"]
            if i == 14: late = dmas[16] + dmas[17]
            if not pass0 and Cfg.touch_all:
                d = touch_ops((i + Cfg.touch_ahead) % 16)
                for o in d:
                    o.cap = G(i, Cfg.bar_gap + 2 + 2 * x); x += 1
                    o.reads.append(f"ps:kbar{i}")
                ops += d
            if pass0:
                if i + 8 < 16 and not Cfg.kall:
                    for t in (i + 8, i + 9):
                        d = k_dma_ops(t)
                        for o in d:
                            o.cap = G(i, Cfg.bar_gap + 2 + 2 * x); x += 1
                            if o.kind == "dma": o.reads.append(f"ps:kbar{i}")
                        ops += d; kd[t] = [o for o in d if o.kind == "dma"]
                if i + 8 < 16 or Cfg.touch_all:
                    d = touch_ops((i + 8) % 16)
                    for o in d:
                        o.cap = G(i, Cfg.bar_gap + 2 + 2 * x); x += 1
                        o.reads.append(f"ps:kbar{i}")
                    ops += d
        if pass0 and Cfg.pf and Cfg.pf2 and i == Cfg.pf2:
            for h in range(2):
                o = Op(f"global_load_dword a254, v{vPF}, s[80:81] offset:{64*h}", "vld", [V(vPF)], [A(254)])
                o.minGap = G(i, Cfg.bar_gap + 24 + 4 * h); o.cap = o.minGap + 2
                ops.append(o)
        kr = k_reads((n + 1) % 16, 0) + k_reads((n + 1) % 16, 1)
        if pass0 and n + 1 < 16:
            tb = n + 1
            bi = (tb - 2) // 2 * 2
            for o in kr: o.reads.append(f"ps:kbar{bi}")
        ops += kr
        for j in range(4):
            for kvt in range(2):
                ops += sm_ops(n, kvt, j)
        ops += sum_ops(i)
        for dt in range(8):
            vr = v_reads(i, dt)
            ops += vr
            w = wait("waitl", vr)
            if dt == 7: w.writes.append("ps:vused")
            ops.append(w)
            pv = pv_ops(i, dt)
            if i == 15 and dt == 7: pv[-1].writes.append("ps:nomfma")
            ops += pv
        if kr:
            ops.append(wait("waitl", kr[:4]))
            if len(kr) > 4: ops.append(wait("waitl", kr[4:]))
        if i == 4:
            qraw = q_raw_loads(1)
            for x, o in enumerate(qraw):
                if Cfg.interleave == 2:
                    e, k = Cfg.q_plan[x]
                    o.minGap = G(2 * e, Cfg.bar_gap + 12) + k * Cfg.win_space
                elif pass0: o.minGap = G(Cfg.q_start0, 0) + Cfg.q_space0 * x
                elif Cfg.interleave: o.minGap = 2 + Cfg.st_space * x + Cfg.st_space // 2
                else: o.minGap = G(Cfg.q_start, 0) + Cfg.q_space * x
                o.cap = o.minGap + 4
            ops += qraw
    ops += epilogue_ops(15)
    ops += next_offsets_ops()
    return ops, late

ABL = set()
def emit(ops):
    lines = []
    for o in ops:
        t = optext(o)
        if t is None: continue
        if o.kind in ABL: continue
        lines.append("    " + t)
    return "\n".join(lines) + "\n"

T0, T1, T2, T3 = TMP + 8, TMP + 9, TMP + 10, TMP + 11
def fswz(dst, src, tmp):
    return f"    v_lshlrev_b32 v{tmp}, 1, v{src}\n    v_lshrrev_b32 v{dst}, v{tmp}, v{vTHR}\n    v_and_b32 v{dst}, 3, v{dst}\n"

def emit_fix(ops):
    lines = []
    for i, o in enumerate(ops):
        if o.kind == "dma" and i > 0 and "m0" in ops[i - 1].writes: lines.append("    s_nop 0")
        lines.append("    " + o.text)
    return "\n".join(lines) + "\n" if lines else ""

def prologue_text():
    c = f32bits(CSCALE)
    s = f"""
    s_cmp_ge_u32 s2, 256
    s_cbranch_scc1 L_end
    s_load_dwordx4 s[4:7], s[0:1], 0
    s_load_dwordx4 s[8:11], s[0:1], 16
PREFETCH
    v_and_b32 v{T0}, 63, v0                     ; lane
    v_lshrrev_b32 v{T1}, 6, v0                  ; wave
    v_mov_b32 v{vTHR}, 0x78                     ; lookup for f = (0,2,3,1)
    v_readfirstlane_b32 s{sW}, v{T1}
    ; i = lane%16, g = lane/16
    v_and_b32 v{T1}, 15, v{T0}
    v_lshrrev_b32 v{T2}, 4, v{T0}
    v_lshlrev_b32 v{vQO}, 8, v{T1}
    v_lshl_add_u32 v{vQO}, v{T2}, 4, v{vQO}     ; vQO = i*256 + g*16
    ; vK0 = (4i + (g ^ f(i>>2)))*16
    v_lshrrev_b32 v{T3}, 2, v{T1}
""" + fswz(T3, T3, TMP) + f"""
    v_xor_b32 v{T3}, v{T3}, v{T2}
    v_lshl_add_u32 v{T3}, v{T1}, 2, v{T3}
    v_lshlrev_b32 v{vK0}, 4, v{T3}
    v_add_u32 v{vK1}, 0x10000, v{vK0}
    ; vDMA = g*256 + ((i) ^ (g<<2))*16
    v_lshlrev_b32 v{T3}, 2, v{T2}
    v_xor_b32 v{T3}, v{T3}, v{T1}
    v_lshlrev_b32 v{T3}, 4, v{T3}
    v_lshl_add_u32 v{vDMA}, v{T2}, 8, v{T3}
    ; vQL: i' = lane>>2, x = lane&3 : i'*256 + ((x ^ f(i'>>2))<<4)
    v_lshrrev_b32 v{T1}, 4, v{T0}               ; i'>>2 = lane>>4
""" + fswz(T1, T1, TMP) + f"""
    v_and_b32 v{T3}, 3, v{T0}
    v_xor_b32 v{T1}, v{T1}, v{T3}
    v_lshlrev_b32 v{T1}, 4, v{T1}
    v_lshrrev_b32 v{T3}, 2, v{T0}
    v_lshl_add_u32 v{vQL}, v{T3}, 8, v{T1}
    ; V tr-read addresses: g=lane>>4, r=(lane>>2)&3, c=lane&3 : LDS_V + (4g+r)*256 + ((u^r)<<6) + 16c
    v_bfe_u32 v{T1}, v{T0}, 2, 2                ; r
    v_and_b32 v{T3}, 3, v{T0}                   ; c
    v_lshl_add_u32 v{T2}, v{T2}, 2, v{T1}       ; 4g+r
    v_lshlrev_b32 v{T2}, 8, v{T2}
    v_lshl_add_u32 v{T2}, v{T3}, 4, v{T2}
    v_add_u32 v{T2}, {LDS_V}, v{T2}
"""
    for u in range(4):
        s += f"    v_xor_b32 v{T3}, {u}, v{T1}\n    v_lshl_add_u32 v{vV[u]}, v{T3}, 6, v{T2}\n"
    s += f"""
    v_lshlrev_b32 v{vTCH}, 7, v{T0}             ; lane*128
    v_lshlrev_b32 v{T0}, 4, v{T0}               ; lane*16
    ; workgroup -> (group, half)
    s_and_b32 s{sT0}, s2, 7
    s_lshr_b32 s{sT1}, s2, 3
    s_lshl_b32 s{sT0}, s{sT0}, 4
    s_lshr_b32 s52, s{sT1}, 1
    s_add_u32 s{sT0}, s{sT0}, s52              ; group
    s_and_b32 s{sT1}, s{sT1}, 1                ; half
    s_lshl_b32 s{sKB}, s{sT0}, 17              ; group * 131072
    s_mul_i32 s{sQB}, s{sT0}, {1984 * 256}
    s_mul_i32 s52, s{sT1}, {992 * 256}
    s_add_u32 s{sQB}, s{sQB}, s52
    s_mul_i32 s53, s{sT1}, {Cfg.rot * 8192}      ; rotation
    s_mul_i32 s83, s{sT1}, {131072 - Cfg.rot * 8192}
    s_mov_b32 s84, s{sT1}                       ; half
    s_lshl_b32 s{sT0}, s{sW}, 11               ; w*2048
    s_add_u32 s{sVB}, s{sKB}, s{sT0}
    s_sub_u32 s{sVBH}, s{sVB}, s83
    s_add_u32 s{sVB}, s{sVB}, s53
    s_add_u32 s{sM0B}, s{sT0}, {LDS_V}
    s_mov_b32 s{sC}, {c:#x}
    s_mov_b32 s{sOOB}, 0x80000000
    s_mov_b64 s[{sFLAG}:{sFLAG+1}], 0
    s_mov_b32 s{sPASS}, 0
    s_lshl_b32 s{sROW}, s{sW}, 6
"""
    for j in range(4):
        s += f"    s_add_u32 s{sT0}, s{sROW}, {16*j}\n    s_lshl_b32 s{sT0}, s{sT0}, 8\n    s_add_u32 s{sQ[j]}, s{sT0}, s{sQB}\n    s_mov_b32 s{sO[j]}, s{sOOB}\n"
    s += f"""    s_lshr_b32 s{sT0}, s{sW}, 1
    s_lshl_b32 s{sT0}, s{sT0}, 13
    s_and_b32 s{sT1}, s{sW}, 1
    s_lshl_b32 s{sT1}, s{sT1}, 6
    s_add_u32 s{sT0}, s{sT0}, s{sT1}
    s_add_u32 s{sTL}, s{sT0}, s{sKB}
    s_sub_u32 s{sTH}, s{sTL}, s83
    s_add_u32 s{sTL}, s{sTL}, s53
"""
    s += f"""
    s_lshr_b32 s{sT0}, s{sW}, 1
    s_lshl_b32 s{sT0}, s{sT0}, 12
    s_and_b32 s{sT1}, s{sW}, 1
    s_lshl_b32 s52, s{sT1}, 7
    s_add_u32 s{sKL}, s{sKB}, s{sT0}
    s_add_u32 s{sKL}, s{sKL}, s52
    s_sub_u32 s{sKH}, s{sKL}, s83
    s_add_u32 s{sKL}, s{sKL}, s53
    s_lshl_b32 s{sT1}, s{sT1}, 11
    s_add_u32 s{sKM}, s{sT0}, s{sT1}
    v_add_u32 v{vKW[0]}, s{sKM}, v{T0}
    v_add_u32 v{vKW[1]}, 0x10000, v{vKW[0]}
    v_mov_b32 v{vTHR}, 0x3f803f80
    v_accvgpr_write_b32 a{ONES}, v{vTHR}
    v_accvgpr_write_b32 a{ONES+1}, v{vTHR}
    v_accvgpr_write_b32 a{ONES+2}, v{vTHR}
    v_accvgpr_write_b32 a{ONES+3}, v{vTHR}
    v_mov_b32 v{vTHR}, {f32bits(Cfg.thr):#x}
    s_waitcnt lgkmcnt(0)
"""
    for (srd, lo, size) in ((sSRD_Q, 4, Q_BYTES), (sSRD_K, 6, KV_BYTES), (sSRD_V, 8, KV_BYTES), (sSRD_O, 10, Q_BYTES)):
        s += f"    s_mov_b32 s{srd}, s{lo}\n    s_and_b32 s{srd+1}, s{lo+1}, 0xffff\n    s_mov_b32 s{srd+2}, {size}\n    s_mov_b32 s{srd+3}, 0x00020000\n"
    return s

LET = dict(valu="a", trans="E", perm="p", lds="L", vld="G", vst="Z", dma="D", salu="s", waitl="w", waitv="W", bar="B", nop="n", ldsw="l")
def show(ops):
    gaps = []; cur = None
    for o in ops:
        if o.kind == "mfma":
            cur = []; gaps.append(cur)
        elif o.kind != "phantom" and cur is not None:
            cur.append(LET[o.kind])
    tot = 0
    W = 64 + XS[0]
    for i in range(0, len(gaps), W):
        row = gaps[i:i + W]
        c = 0
        for g in row:
            v = sum(8 if x == "E" else 4 for x in g if x in "aEp")
            nm = [x for x in g if x not in "aEp"]
            mem = [x for x in nm if x in "LGZDl"]
            cost = 4 + max(4, 4 * len(nm) + (4 if mem else 0) - (4 if (mem and v == 0) else 0)) + v
            c += max(16.5, cost)
        tot += c
        print(f"it{i//W:2d} est {c:6.0f}: " + " ".join("".join(g) if g else "-" for g in row))
    print("est total", tot)

vST0, vST1 = 250, 251
def stamp_setup():
    return f"""    s_load_dwordx2 s[54:55], s[0:1], 40
    s_waitcnt lgkmcnt(0)
    s_mov_b32 s56, s54
    s_and_b32 s57, s55, 0xffff
    s_mov_b32 s58, 0x10000000
    s_mov_b32 s59, 0x00020000
    s_lshl_b32 s60, s2, 2
    s_add_u32 s60, s60, s{sW}
    s_lshl_b32 s60, s60, 8
"""
def stamp(i, dyn=False):
    t = f"""    s_memrealtime s[62:63]
    s_memtime s[64:65]
    s_waitcnt lgkmcnt(0)
    v_mov_b32 v251, s62
"""
    so = "s60"
    if dyn:
        t += f"    s_lshl_b32 s61, s{sPASS}, 2\n    s_add_u32 s61, s61, s60\n"; so = "s61"
    t += f"    buffer_store_dword v251, off, s[56:59], {so} offset:{4*i}\n    s_nop 3\n    v_mov_b32 v251, s64\n    buffer_store_dword v251, off, s[56:59], {so} offset:{4*i+128}\n"
    return t

def slow_path_text():
    t = []
    A_ = t.append
    vKa, vVa, vMx = TMP, TMP + 1, TMP + 2
    vL = TMP + 6
    vU = TMP + 10
    sT, sP, sSo, sVs = 78, 79, 85, 86
    A_("L_slow:")
    A_("    s_waitcnt vmcnt(0) lgkmcnt(0)")
    A_(f"    v_mbcnt_lo_u32_b32 v{vU}, -1, 0")
    A_(f"    v_mbcnt_hi_u32_b32 v{vU}, -1, v{vU}")
    A_(f"    v_lshrrev_b32 v{vVa}, 4, v{vU}")
    A_(f"    v_lshlrev_b32 v{vVa}, 10, v{vVa}")
    A_(f"    v_bfe_u32 v{vU+1}, v{vU}, 2, 2")
    A_(f"    v_lshl_add_u32 v{vVa}, v{vU+1}, 4, v{vVa}")
    A_(f"    v_and_b32 v{vU+1}, 3, v{vU}")
    A_(f"    v_lshl_add_u32 v{vVa}, v{vU+1}, 1, v{vVa}")
    A_(f"    s_lshl_b32 s{sROW}, s{sW}, 6")
    A_(f"    s_mov_b32 s{sP}, 0")
    A_("L_slow_pass:")
    for j in range(4):
        A_(f"    s_add_u32 s{sT0}, s{sROW}, {16*j}")
        A_(f"    s_lshl_b32 s{sT1}, s{sT0}, 8")
        A_(f"    s_add_u32 s{sT1}, s{sT1}, s{sQB}")
        A_(f"    s_cmp_lt_u32 s{sT0}, 992")
        A_(f"    s_cselect_b32 s{sQ[j]}, s{sT1}, s{sOOB}")
    for j in range(4):
        for ss in range(4):
            A_(f"    buffer_load_dwordx4 a[{Q_(j,ss)}:{Q_(j,ss)+3}], v{vQO}, s[{sSRD_Q}:{sSRD_Q+3}], s{sQ[j]} offen offset:{64*ss}")
    for j in range(4): A_(f"    v_mov_b32 v{vMx+j}, 0xff800000")
    A_("    s_waitcnt vmcnt(0)")
    def kload():
        for kvt in range(2):
            for ss in range(4):
                A_(f"    ds_read_b128 a[{KF_(kvt,ss)}:{KF_(kvt,ss)+3}], v{vKa} offset:{kvt*4096+ss*1024}")
        A_("    s_waitcnt lgkmcnt(0)")
    def qk(usenm):
        for kvt in range(2):
            for j in range(4):
                for ss in range(4):
                    d = S_(kvt, j)
                    c = (f"v[{NM_(j)}:{NM_(j)+3}]" if usenm else "0") if ss == 0 else f"v[{d}:{d+3}]"
                    A_(f"    v_mfma_f32_16x16x32_bf16 v[{d}:{d+3}], a[{KF_(kvt,ss)}:{KF_(kvt,ss)+3}], a[{Q_(j,ss)}:{Q_(j,ss)+3}], {c}")
        A_("    s_nop 15")
    A_(f"    v_mov_b32 v{vKa}, v{vK0}")
    A_(f"    s_mov_b32 s{sT}, 0")
    A_("L_slow_max:")
    kload(); qk(False)
    for j in range(4):
        for kvt in range(2):
            d = S_(kvt, j)
            A_(f"    v_max3_f32 v{vMx+j}, v{vMx+j}, v{d}, v{d+1}")
            A_(f"    v_max3_f32 v{vMx+j}, v{vMx+j}, v{d+2}, v{d+3}")
    A_(f"    v_add_u32 v{vKa}, 8192, v{vKa}")
    A_(f"    s_add_u32 s{sT}, s{sT}, 1")
    A_(f"    s_cmp_lt_u32 s{sT}, 16")
    A_("    s_nop 7")
    A_("    s_cbranch_scc1 L_slow_max")
    def xlane(reg, op):
        for sw in ("v_permlane16_swap_b32", "v_permlane32_swap_b32"):
            A_(f"    v_mov_b32 v{vU}, v{reg}")
            A_("    s_nop 1")
            A_(f"    {sw} v{reg}, v{vU}")
            A_("    s_nop 1")
            A_(f"    {op} v{reg}, v{reg}, v{vU}")
    for j in range(4):
        xlane(vMx + j, "v_max_f32")
        for i in range(4): A_(f"    v_sub_f32 v{NM_(j)+i}, 0, v{vMx+j}")
        A_(f"    v_mov_b32 v{vL+j}, 0")
    for r in range(128): A_(f"    v_mov_b32 v{r}, 0")
    A_(f"    v_mov_b32 v{vKa}, v{vK0}")
    A_(f"    s_mov_b32 s{sT}, 0")
    A_("L_slow_pv:")
    A_(f"    s_mul_i32 s{sVs}, s84, {Cfg.rot}")
    A_(f"    s_add_u32 s{sVs}, s{sVs}, s{sT}")
    A_(f"    s_and_b32 s{sVs}, s{sVs}, 15")
    A_(f"    s_lshl_b32 s{sVs}, s{sVs}, 13")
    A_(f"    s_add_u32 s{sVs}, s{sVs}, s{sKB}")
    A_(f"    s_add_u32 s{sSo}, s{sVs}, 4096")
    kload(); qk(True)
    for j in range(4):
        for kvt in range(2):
            d = S_(kvt, j)
            for i in range(4): A_(f"    v_exp_f32 v{d+i}, v{d+i}")
            A_("    s_nop 0")
            for h in range(2): A_(f"    v_cvt_pk_bf16_f32 v{P_(0,j)+2*kvt+h}, v{d+2*h}, v{d+2*h+1}")
            for i in range(4): A_(f"    v_add_f32 v{vL+j}, v{vL+j}, v{d+i}")
    raw = P_(1, 0); pk = P_(1, 2)
    for dt in range(8):
        u, b = dt // 2, dt % 2
        for kvt in range(2):
            so = sVs if kvt == 0 else sSo
            for r in range(4):
                A_(f"    buffer_load_ushort v{raw + 4*kvt + r}, v{vVa}, s[{sSRD_V}:{sSRD_V+3}], s{so} offen offset:{r*256 + (32*u + 4*b)*2}")
        A_("    s_waitcnt vmcnt(0)")
        for h in range(4):
            A_(f"    v_lshl_or_b32 v{pk + h}, v{raw + 2*h + 1}, 16, v{raw + 2*h}")
        A_("    s_nop 1")
        for j in range(4):
            o = O_(dt, j)
            A_(f"    v_mfma_f32_16x16x32_bf16 v[{o}:{o+3}], v[{pk}:{pk+3}], v[{P_(0,j)}:{P_(0,j)+3}], v[{o}:{o+3}]")
        A_("    s_nop 7")
    A_(f"    v_add_u32 v{vKa}, 8192, v{vKa}")
    A_(f"    s_add_u32 s{sT}, s{sT}, 1")
    A_(f"    s_cmp_lt_u32 s{sT}, 16")
    A_("    s_nop 15")
    A_("    s_cbranch_scc1 L_slow_pv")
    for j in range(4):
        xlane(vL + j, "v_add_f32")
        A_(f"    v_rcp_f32 v{vL+j}, v{vL+j}")
    A_("    s_nop 1")
    for u in range(4):
        for j in range(4):
            tb = S_(0, 0) + 4 * ((u * 4 + j) % 8)
            for b in range(2):
                o = O_(2 * u + b, j)
                for i in range(4): A_(f"    v_mul_f32 v{o+i}, v{o+i}, v{vL+j}")
                for h in range(2): A_(f"    v_cvt_pk_bf16_f32 v{tb+2*b+h}, v{o+2*h}, v{o+2*h+1}")
            A_(f"    buffer_store_dwordx4 v[{tb}:{tb+3}], v{vQO}, s[{sSRD_O}:{sSRD_O+3}], s{sQ[j]} offen offset:{64*u}")
            A_("    s_nop 1")
    A_("    s_waitcnt vmcnt(0)")
    A_(f"    s_add_u32 s{sROW}, s{sROW}, 256")
    A_(f"    s_add_u32 s{sP}, s{sP}, 1")
    A_(f"    s_cmp_lt_u32 s{sP}, 4")
    A_("    s_cbranch_scc1 L_slow_pass")
    A_("    s_endpgm")
    txt = "\n".join(t) + "\n"
    return txt

def SLOWV(dt): return VF_(dt)

def main():
    ap = argparse.ArgumentParser()
    ap.add_argument("-o", default="standalone__gqa_softmax__near_ridge.s")
    ap.add_argument("--backlog", type=int, default=3)
    ap.add_argument("--lead", type=int, default=7)
    ap.add_argument("--show", action="store_true")
    ap.add_argument("--stamp", action="store_true")
    ap.add_argument("--stflags", default="")
    ap.add_argument("--qflags", default="")
    ap.add_argument("--kflags", default="")
    ap.add_argument("--vflags", default="")
    ap.add_argument("--abl", default="")
    ap.add_argument("--rot", type=int, default=0)
    ap.add_argument("--tflags", default="")
    ap.add_argument("--pf2", type=int, default=10)
    ap.add_argument("--stj", action="store_true")
    ap.add_argument("--kall", action="store_true")
    ap.add_argument("--simple", action="store_true")
    ap.add_argument("--kahead", type=int, default=6)
    ap.add_argument("--kissue", type=int, default=2)
    ap.add_argument("--winspace", type=int, default=9)
    ap.add_argument("--nointer", action="store_true")
    ap.add_argument("--touchall", action="store_true")
    ap.add_argument("--qstart0", type=int, default=3)
    ap.add_argument("--qspace0", type=int, default=40)
    ap.add_argument("--initx", type=int, default=1)
    ap.add_argument("--x", type=int, default=0)
    ap.add_argument("--x0", type=int, default=0)
    ap.add_argument("--kfirst", type=int, default=4)
    ap.add_argument("--kbnovalu", action="store_true")
    ap.add_argument("--stampbar", action="store_true")
    ap.add_argument("--pf", type=int, default=6)
    ap.add_argument("--nopk", action="store_true")
    ap.add_argument("--stspace", type=int, default=14)
    ap.add_argument("--qstart", type=int, default=5)
    ap.add_argument("--qspace", type=int, default=24)
    ap.add_argument("--bargap", type=int, default=11)
    args = ap.parse_args()
    for x in args.abl.split(","):
        if x: ABL.add(x)
    Cfg.backlog = args.backlog; Cfg.lds_lead = args.lead
    Cfg.pf = args.pf
    Cfg.t_flags = (' ' + args.tflags) if args.tflags else ''
    Cfg.kb_novalu = args.kbnovalu
    Cfg.k_first = args.kfirst
    Cfg.q_start0 = args.qstart0; Cfg.q_space0 = args.qspace0
    if args.kall:
        Cfg.kall = True
        Cfg.init_extra = [("k", t) for t in range(4, 16)] + [("t", 2)]
        Cfg.early_list = [("t", 4), ("t", 6)]
    elif args.initx == 0:
        Cfg.early_list = Cfg.init_extra + Cfg.early_list; Cfg.init_extra = []
    elif args.initx == 2:
        Cfg.init_extra = Cfg.init_extra + Cfg.early_list; Cfg.early_list = []
    Cfg.touch_all = args.touchall
    if args.nointer: Cfg.interleave = 0
    Cfg.win_space = args.winspace
    Cfg.simple = args.simple; Cfg.k_ahead = args.kahead; Cfg.k_issue = args.kissue
    Cfg.st_jmajor = args.stj
    Cfg.pf2 = args.pf2
    Cfg.rot = args.rot; Cfg.pkmul = not args.nopk
    Cfg.st_space = args.stspace; Cfg.q_start = args.qstart; Cfg.q_space = args.qspace; Cfg.bar_gap = args.bargap
    Cfg.st_flags = (" " + args.stflags) if args.stflags else ""
    Cfg.q_flags = (" " + args.qflags) if args.qflags else ""
    Cfg.k_flags = (" " + args.kflags) if args.kflags else ""
    Cfg.v_flags = (" " + args.vflags) if args.vflags else ""

    def pol(k, remaining, ready, emit_, state):
        state["backlog"] = Cfg.backlog
        default_policy(k, remaining, ready, emit_, state)
    noff0 = next_offsets_ops()
    tail = parked_stores(15)
    if Cfg.simple:
        XS[0] = args.x
        init_ops = []
        body0, vd0 = build_simple_prologue()
        body, late = build_body(False, None)
        for o in body:
            if o.kind == "waitv" and o.name == "vw0": o.covers = vd0 + late
        body0_sched = schedule(body0, pol, verbose=True)
        body_sched = schedule(body, pol, verbose=True)
        setx = Op("", "valu", [], regs("a", X_(0), 64), None, {r: ("OX", -1, None, u, j) for u in range(4) for j in range(4) for r in regs("a", X_(u * 4 + j), 4)})
        trace = [(body0_sched, 0), ([setx], 0), (noff0, 0)] + [(body_sched, p) for p in range(0, 4)] + [(tail, 3)]
    else:
        init_ops, info = init_issue_ops()
        XS[0] = args.x0
        body0, late0 = build_body(True, info)
        XS[0] = args.x
        body, late = build_body(False, None)
        for o in body:
            if o.kind == "waitv" and o.name == "vw0": o.covers = late0 + late
        body0_sched = schedule(body0, pol, verbose=True)
        body_sched = schedule(body, pol, verbose=True)
        trace = [(init_ops, 0), (noff0, 0), (body0_sched, 0)] + [(body_sched, p) for p in range(1, 4)] + [(tail, 3)]
    resolve_waits(trace)
    errs = check_trace(trace)
    for e in errs[:40]: print("ERR", e)
    print("errors:", len(errs))
    nm = sum(1 for o in body_sched if o.kind == "mfma")
    print("body instrs:", sum(1 for o in body_sched if o.kind != "phantom"), "mfma:", nm, " body0 instrs:", sum(1 for o in body0_sched if o.kind != "phantom"))
    if args.show:
        XS[0] = args.x0; show(body0_sched); XS[0] = args.x; show(body_sched)

    s = f"""; GQA attention forward, bf16, B=16 Hq=32 Hkv=8 Sq=496 Sk=512 D=128  (generated by gen/gen.py)
; @launch grid=(256,1,1) block=(256,1,1) lds=163840
.amdgcn_target "amdgcn-amd-amdhsa--gfx950"
.text
.globl {KNAME}
.p2align 8
.type {KNAME},@function
{KNAME}:
"""
    pt = prologue_text()
    pf = ""
    if Cfg.pf:
        first_end = "L_code_end" if (Cfg.simple or not Cfg.pf2) else "L_pass"
        pf = f"""    s_getpc_b64 s[80:81]
L_pc:
    v_lshlrev_b32 v{TMP+12}, {Cfg.pf}, v0
    s_mov_b32 s82, {first_end}-L_pc-4
"""
        step = 256 << Cfg.pf
        nbytes = Cfg.code_bytes if first_end == "L_code_end" else 36000
        for i in range((nbytes + step - 1) // step):
            pf += f"    v_min_u32 v{TMP+13}, s82, v{TMP+12}\n    global_load_dword v{TMP+14+i%4}, v{TMP+13}, s[80:81]\n    v_add_u32 v{TMP+12}, {step}, v{TMP+12}\n"
        if Cfg.pf2:
            pf += f"""    v_lshlrev_b32 v{vPF}, 7, v0
    v_add_u32 v{vPF}, L_pass-L_pc, v{vPF}
    s_mov_b32 s82, L_code_end-L_pc-68
    v_min_u32 v{vPF}, s82, v{vPF}
"""
    pt = pt.replace("PREFETCH\n", pf)
    if args.stamp:
        a, b = pt.split("    ; workgroup -> (group, half)")
        pt = a + stamp_setup() + stamp(0) + "    ; workgroup -> (group, half)" + b
    s += pt
    s += emit_fix(init_ops)
    if not Cfg.simple: s += emit(noff0)
    if args.stamp: s += stamp(1)
    b0 = emit(body0_sched)
    if args.stamp and args.stampbar:
        parts = b0.split("    s_barrier\n")
        b0 = parts[0]
        for k, p_ in enumerate(parts[1:]):
            b0 += "    s_barrier\n" + stamp(8 + k) + p_
    s += b0
    if Cfg.simple: s += emit(noff0)
    if args.stamp: s += stamp(2)
    s += f"    s_mov_b32 s{sPASS}, {0 if Cfg.simple else 1}\n"
    s += ".p2align 6\nL_pass:\n"
    b1 = emit(body_sched)
    if args.stamp and args.stampbar:
        parts = b1.split("    s_barrier\n")
        b1 = stamp(18) + parts[0]
        for k, p_ in enumerate(parts[1:]):
            b1 += "    s_barrier\n" + stamp(19 + k) + p_
        idx = b1.rindex("    v_mfma")
        idx = b1.index("\n", idx) + 1
        b1 = b1[:idx] + stamp(27) + b1[idx:] + stamp(28)
    s += b1
    if args.stamp: s += stamp(3 if Cfg.simple else 2, dyn=True)
    s += f"""    s_add_u32 s{sPASS}, s{sPASS}, 1
    s_cmp_lt_u32 s{sPASS}, 4
    s_cbranch_scc1 L_pass
"""
    s += emit(tail)
    if args.stamp: s += "    s_waitcnt vmcnt(0)\n" + stamp(7 if Cfg.simple else 6)
    s += f"""    s_cmp_lg_u64 s[{sFLAG}:{sFLAG+1}], 0
    s_cbranch_scc1 L_slow
L_end:
    s_endpgm
L_code_end:
"""
    s += slow_path_text()
    s += f"""
.section .rodata,"a"
.p2align 6
.amdhsa_kernel {KNAME}
  .amdhsa_next_free_vgpr 512
  .amdhsa_next_free_sgpr 88
  .amdhsa_accum_offset 256
  .amdhsa_group_segment_fixed_size 0
  .amdhsa_kernarg_size 48
  .amdhsa_user_sgpr_count 2
  .amdhsa_user_sgpr_kernarg_segment_ptr 1
  .amdhsa_system_sgpr_workgroup_id_x 1
.end_amdhsa_kernel
"""
    open(args.o, "w").write(s)

if __name__ == "__main__":
    main()
```

```python
import sys, os, struct, argparse
sys.path.insert(0, os.path.dirname(os.path.abspath(__file__)))
from sched import *

KNAME = "standalone__gqa_softmax__near_ridge_kernel"

def O_(dt, j): return (dt * 4 + j) * 4
def S_(kvt, j): return 128 + (kvt * 4 + j) * 4
def P_(buf, j): return 160 + buf * 16 + j * 4
def NM_(j): return 192 + 4 * j
def LS0_(j): return 208 + j
def LS1_(j): return 212 + j
TMP = 216
vK0, vK1 = 240, 241
vV = [242, 243, 244, 245]
vQO = 246
vDMA = 247
vRC = [248, 249, 250, 251]
def vRCP(j): return 248 + j
vQL = 252
vSTW = 253
vSTR = 254
vTHR = 255
vPF = 254
vPF2 = 251
def Q_(j, s): return (j * 4 + s) * 4
def X_(n): return 64 + n * 4
def KF_(kvt, s, par=0): return 128 + par * 32 + (kvt * 4 + s) * 4
def VF_(dt): return 192 + dt * 4
def L_(j): return 224 + 4 * j
ONES = 240
XS = [0]
def msum(j): return j >= 4 - XS[0]
def KR_(s): return 224 + 4 * s

sSRD_Q, sSRD_K, sSRD_V, sSRD_O = 12, 16, 20, 24
sW = 28; sPASS = 29
sQ = [30, 31, 32, 33]
sO = [34, 35, 36, 37]
sVB = 38; sVO = 39; sM0B = 40; sQB = 41
sFLAG = 42
sROW = 44
sT0, sT1 = 45, 46
sC = 47
sKB = 49; sOOB = 50; sVO2 = 51
sOP = [66, 67, 68, 69]
sVBH = 70
sKL, sKH = 71, 72
sKM = 73
sKO = 74
sVT, sVTH = 75, 76
vKW = [248, 249]
vTCH = 253

LDS_V = 131072
LDS_STG = 31 * 4096
Q_BYTES = 16 * 32 * 496 * 128 * 2
KV_BYTES = 16 * 8 * 512 * 128 * 2
CSCALE = (128 ** -0.5) * 1.4426950408889634
def f32bits(x): return struct.unpack("<I", struct.pack("<f", x))[0]

class Cfg:
    backlog = 3
    lds_lead = 7
    thr = 2.0 ** 30
    pkmul = True
    rot = 0
    q0_flags = ''
    q0dma = True
    horizon = 10 ** 9
    kb_lazy = False
    kb_slack = 40
    pf2 = 10
    st_jmajor = False
    kall = False
    k_ahead = 6
    k_issue = 2
    simple = False
    interleave = 2
    win_space = 9
    st_plan = [(n // 4, n % 4) for n in range(16)]
    q_plan = [(1, 4), (1, 5), (1, 6), (2, 4), (2, 5), (2, 6), (3, 4), (3, 5), (3, 6), (4, 0), (4, 2), (4, 4), (4, 6), (5, 0), (5, 2), (5, 4)]
    kb_off = 12
    touch_all = False
    touch_ahead = 8
    k_first = 4
    early0 = 2
    qcopy_span = 70
    kb_novalu = False
    t_flags = ''
    init_extra = [("t", 2), ("k", 4), ("k", 5)]
    early_list = [("t", 4), ("k", 6), ("k", 7), ("t", 6)]
    pf = 6
    code_bytes = 60000
    st_space = 14
    q_start = 5
    q_start0 = 3
    q_space0 = 40
    q_space = 24
    bar_gap = 11
    st_flags = ""
    q_flags = ""
    k_flags = ""
    v_flags = ""

def V(i): return f"v{i}"
def A(i): return f"a{i}"

def mfma(d, dpre, a, apre, b, bpre, c=None, rtag=None, wtag=None):
    dr = regs(dpre, d, 4)
    reads = regs(apre, a, 4) + regs(bpre, b, 4)
    if c is None:
        ctext = "0"; srcc = []
    else:
        ctext = rng(dpre, c, 4); srcc = regs(dpre, c, 4); reads += srcc
    return Op(f"v_mfma_f32_16x16x32_bf16 {rng(dpre, d, 4)}, {rng(apre, a, 4)}, {rng(bpre, b, 4)}, {ctext}", "mfma",
              reads, dr, rtag, wtag, srcc=srcc)

def valu(text, reads, writes, rtag=None, wtag=None, kind="valu"):
    return Op(text, kind, reads, writes, rtag, wtag)

def salu(text, reads=(), writes=()):
    return Op(text, "salu", reads, writes)

def ds_read(dst, n, vaddr, off, tagf, tr=False, extra_reads=(), lead=None):
    d = regs("a", dst, n)
    ins = "ds_read_b64_tr_b16" if tr else "ds_read_b128"
    return Op(f"{ins} {rng('a', dst, n)}, v{vaddr} offset:{off}", "lds", [V(vaddr)] + list(extra_reads),
              d + ["pend:" + r for r in d], None, {r: tagf for r in d}, lead=Cfg.lds_lead if lead is None else lead)

def wait(kind, loads, extra_covers=()):
    rs = []; ws = []
    for l in loads:
        for w in l.writes:
            if w.startswith("pend:"):
                rs.append(w); ws.append(w[5:])
    return Op("", kind, rs, ws, covers=list(loads) + list(extra_covers))

def k_reads(t, kvt):
    ops = []
    for s in range(4):
        off = t * 8192 + kvt * 4096 + s * 1024
        va = vK0
        if off >= 65536: off -= 65536; va = vK1
        ops.append(ds_read(KF_(kvt, s, t % 2), 4, va, off, ("K", None, None, t, kvt, s)))
    return ops

def kreg(t, kvt, s):
    return KF_(kvt, s, t % 2)

def v_reads(t, dt):
    slot = t % 4
    u, b = dt // 2, dt % 2
    ops = []
    for kvt in range(2):
        off = slot * 8192 + kvt * 4096 + 8 * b
        ops.append(ds_read(VF_(dt) + 2 * kvt, 2, vV[u], off, ("V", None, None, t, dt, kvt), tr=True,
                           extra_reads=[f"ps:vready{t // 2 % 2}"]))
    return ops

def qk_chain(n, kvt, j, first):
    t = n % 16; rp = n // 16
    l = []
    for s in range(4):
        q = X_(j * 4 + s) if n == 16 else Q_(j, s); kr = kreg(t, kvt, s)
        rt = {r: ("K", None, None, t, kvt, s) for r in regs("a", kr, 4)}
        rt.update({r: ("Q", None, rp, j, s) for r in regs("a", q, 4)})
        if s == 0:
            if first and kvt == 0: c = None
            else:
                c = NM_(j); rt.update({r: ("NM", None, rp, j) for r in regs("v", c, 4)})
        else:
            c = S_(kvt, j); rt.update({r: ("Sp", n, None, kvt, j, s - 1) for r in regs("v", c, 4)})
        wt = {r: (("Sp", n, None, kvt, j, s) if s < 3 else ("S", n, None, kvt, j, i))
              for i, r in enumerate(regs("v", S_(kvt, j), 4))}
        if s == 3 and first and kvt == 0:
            wt = {r: ("Sraw", n, None, kvt, j, i) for i, r in enumerate(regs("v", S_(kvt, j), 4))}
        l.append(mfma(S_(kvt, j), "v", kr, "a", q, "a", c, rt, wt))
    return l

def max_ops(n, j):
    rp = n // 16
    ops = []
    s = S_(0, j); t = TMP + 2 * j; u = TMP + 2 * j + 1
    raw = lambda i: {V(s + i): ("Sraw", n, None, 0, j, i)}
    rt = {}; [rt.update(raw(i)) for i in range(3)]
    ops.append(valu(f"v_max3_f32 v{t}, v{s}, v{s+1}, v{s+2}", [V(s), V(s+1), V(s+2)], [V(t)], rt))
    ops.append(valu(f"v_max_f32 v{t}, v{t}, v{s+3}", [V(t), V(s+3)], [V(t)], raw(3)))
    for sw in ("v_permlane16_swap_b32", "v_permlane32_swap_b32"):
        ops.append(valu(f"v_mov_b32 v{u}, v{t}", [V(t)], [V(u)]))
        ops.append(valu(f"{sw} v{t}, v{u}", [V(t), V(u)], [V(t), V(u)], kind="perm"))
        ops.append(valu(f"v_max_f32 v{t}, v{t}, v{u}", [V(t), V(u)], [V(t)]))
    for i in range(4):
        ops.append(valu(f"v_sub_f32 v{NM_(j)+i}, 0, v{t}", [V(t)], [V(NM_(j)+i)], None, {V(NM_(j)+i): ("NM", None, rp, j)}))
    for i in range(4):
        ops.append(valu(f"v_sub_f32 v{s+i}, v{s+i}, v{t}", [V(s+i), V(t)], [V(s+i)], raw(i), {V(s+i): ("S", n, None, 0, j, i)}))
    return ops

def sm_ops(n, kvt, j):
    ops = []
    s = S_(kvt, j); buf = n % 2
    t = n % 16
    for i in range(4):
        ops.append(valu(f"v_exp_f32 v{s+i}, v{s+i}", [V(s+i)], [V(s+i)], {V(s+i): ("S", n, None, kvt, j, i)},
                        {V(s+i): ("E", n, None, kvt, j, i)}, kind="trans"))
        et = {V(s+i): ("E", n, None, kvt, j, i)}
        if msum(j): pass
        elif t == 0:
            if kvt == 0 and i == 0: pass
            elif kvt == 0 and i == 1:
                ops.append(valu(f"v_add_f32 v{LS0_(j)}, v{s}, v{s+1}", [V(s), V(s+1)], [V(LS0_(j))], et))
            else:
                ops.append(valu(f"v_add_f32 v{LS0_(j)}, v{LS0_(j)}, v{s+i}", [V(LS0_(j)), V(s+i)], [V(LS0_(j))], et))
        elif t == 1 and kvt == 0 and i == 0:
            ops.append(valu(f"v_add_f32 v{LS1_(j)}, v{LS0_(j)}, v{s+i}", [V(LS0_(j)), V(s+i)], [V(LS1_(j))], et))
        else:
            ops.append(valu(f"v_add_f32 v{LS1_(j)}, v{LS1_(j)}, v{s+i}", [V(LS1_(j)), V(s+i)], [V(LS1_(j))], et))
        if i % 2 == 1:
            pr = P_(buf, j) + 2 * kvt + i // 2
            rt = {V(s+i-1): ("E", n, None, kvt, j, i-1), V(s+i): ("E", n, None, kvt, j, i)}
            ops.append(valu(f"v_cvt_pk_bf16_f32 v{pr}, v{s+i-1}, v{s+i}", [V(s+i-1), V(s+i)], [V(pr)], rt,
                            {V(pr): ("P", n, None, j, 2 * kvt + i // 2)}))
    return ops

def pv_ops(n, dt):
    t = n % 16; buf = n % 2
    l = []
    for j in range(4):
        rt = {}
        for kvt in range(2):
            rt.update({r: ("V", None, None, t, dt, kvt) for r in regs("a", VF_(dt) + 2 * kvt, 2)})
        rt.update({r: ("P", n, None, j, i) for i, r in enumerate(regs("v", P_(buf, j), 4))})
        if t == 0: c = None
        else:
            c = O_(dt, j); rt.update({r: ("O", n - 1, None, dt, j) for r in regs("v", c, 4)})
        wt = {r: ("O", n, None, dt, j) for r in regs("v", O_(dt, j), 4)}
        l.append(mfma(O_(dt, j), "v", VF_(dt), "a", P_(buf, j), "v", c, rt, wt))
    return l

def sum_ops(n):
    t = n % 16; buf = n % 2
    l = []
    for j in range(4):
        if not msum(j): continue
        rt = {r: ("P", n, None, j, i) for i, r in enumerate(regs("v", P_(buf, j), 4))}
        c = None if t == 0 else L_(j)
        l.append(mfma(L_(j), "a", ONES, "a", P_(buf, j), "v", c, rt, None))
    return l

def q_raw_loads(rp, direct=False):
    ops = []
    for j in range(4):
        for s in range(4):
            d = Q_(j, s) if direct else X_(j * 4 + s)
            dr = regs("a", d, 4)
            ops.append(Op(f"buffer_load_dwordx4 {rng('a', d, 4)}, v{vQO}, s[{sSRD_Q}:{sSRD_Q+3}], s{sQ[j]} offen offset:{64*s}{Cfg.q_flags}",
                          "vld", [V(vQO), f"s{sQ[j]}"], dr + ["pend:" + r for r in dr], None,
                          {r: ("Q", None, rp, j, s) for r in dr}))
    return ops

sQM = 87
def q0_dma_ops():
    ops = []; d = []
    for j in range(4):
        for s in range(4):
            n = j * 4 + s
            ops.append(salu(f"s_add_u32 m0, s{sQM}, {n * 1024}", [], ["m0"]))
            ops.append(salu(f"s_add_u32 s{sKO}, s{sQ[j]}, {64 * s}", [f"s{sQ[j]}"], [f"s{sKO}"]))
            o = Op(f"buffer_load_dwordx4 v{vQL}, s[{sSRD_Q}:{sSRD_Q+3}], s{sKO} offen{Cfg.q0_flags} lds", "dma",
                   [V(vQL), f"s{sKO}", "m0"], [f"pend:ps:q0raw{n}"])
            ops.append(o); d.append(o)
    return ops, d

def q0_reads():
    ops = []
    for j in range(4):
        for s in range(4):
            n = j * 4 + s
            ops.append(ds_read(Q_(j, s), 4, vPF2, n * 1024, ("Q", None, 0, j, s), extra_reads=[f"ps:q0raw{n}"], lead=2))
    return ops

def q_copy(rp, j, s):
    ops = []
    for i in range(4):
        x = X_(j * 4 + s) + i; q = Q_(j, s) + i
        ops.append(valu(f"v_accvgpr_mov_b32 a{q}, a{x}", [A(x)], [A(q)], {A(x): ("Q", None, rp, j, s)}, {A(q): ("Q", None, rp, j, s)}))
    return ops

def dma_ops(t):
    slot = t % 4
    so = sVO if t % 2 == 0 else sVO2
    ops = [salu(f"s_add_u32 m0, s{sM0B}, {slot * 8192}", [f"s{sM0B}"], ["m0"]),
           salu(f"s_add_u32 s{so}, s{sVB if t < 16 - Cfg.rot else sVBH}, {t * 8192}", [f"s{sVB}"], [f"s{so}"])]
    for h in range(2):
        ops.append(Op(f"buffer_load_dwordx4 v{vDMA}, s[{sSRD_V}:{sSRD_V+3}], s{so} offen offset:{1024*h}{Cfg.v_flags} lds", "dma",
                      [V(vDMA), f"s{so}", "m0", f"ps:vfree{t // 2 % 2}"], [f"ps:vdst{t%4}_{h}"]))
    return ops

def epilogue_ops(n):
    ops = []
    for j in range(4):
        t = TMP + 8 + 2 * j; u = TMP + 8 + 2 * j + 1
        if msum(j):
            ops.append(valu(f"v_accvgpr_read_b32 v{t}, a{L_(j)}", [A(L_(j))], [V(t)]))
        else:
            ops.append(valu(f"v_mov_b32 v{t}, v{LS1_(j)}", [V(LS1_(j))], [V(t)]))
        for sw in ("v_permlane16_swap_b32", "v_permlane32_swap_b32"):
            if msum(j): break
            ops.append(valu(f"v_mov_b32 v{u}, v{t}", [V(t)], [V(u)]))
            ops.append(valu(f"{sw} v{t}, v{u}", [V(t), V(u)], [V(t), V(u)], kind="perm"))
            ops.append(valu(f"v_add_f32 v{t}, v{t}, v{u}", [V(t), V(u)], [V(t)]))
        ops.append(valu(f"v_rcp_f32 v{vRC[j]}, v{t}", [V(t)], [V(vRC[j])], kind="trans"))
        ops.append(valu(f"v_cmp_nle_f32 vcc, v{t}, v{vTHR}", [V(t), V(vTHR)], ["vcc"]))
        ops.append(salu(f"s_or_b64 s[{sFLAG}:{sFLAG+1}], s[{sFLAG}:{sFLAG+1}], vcc", ["vcc", f"s{sFLAG}"], [f"s{sFLAG}"]))
    cnt = 0
    for u in range(4):
        for j in range(4):
            tb = TMP + 16 + 4 * (cnt % 2); cnt += 1
            for b in range(2):
                o = O_(2 * u + b, j)
                if Cfg.pkmul:
                    for i in (0, 2):
                        pb = 248 + (j & ~1); sel = j & 1
                        op = valu(f"v_pk_mul_f32 v[{o+i}:{o+i+1}], v[{o+i}:{o+i+1}], v[{pb}:{pb+1}] op_sel:[0,{sel}] op_sel_hi:[1,{sel}]",
                                  [V(o+i), V(o+i+1), V(vRC[j])], [V(o+i), V(o+i+1)],
                                  {V(o+i): ("O", n, None, 2 * u + b, j), V(o+i+1): ("O", n, None, 2 * u + b, j)})
                        op.reads.append("ps:nomfma")
                        ops.append(op)
                else:
                    for i in range(4):
                        ops.append(valu(f"v_mul_f32 v{o+i}, v{o+i}, v{vRC[j]}", [V(o+i), V(vRC[j])], [V(o+i)],
                                        {V(o+i): ("O", n, None, 2 * u + b, j)}))
                for h in range(2):
                    ops.append(valu(f"v_cvt_pk_bf16_f32 v{tb+2*b+h}, v{o+2*h}, v{o+2*h+1}", [V(o+2*h), V(o+2*h+1)], [V(tb+2*b+h)]))
            x = X_(u * 4 + j)
            for i in range(4):
                ops.append(valu(f"v_accvgpr_write_b32 a{x+i}, v{tb+i}", [V(tb+i)], [A(x+i)], None, {A(x+i): ("OX", n, None, u, j)}))
    return ops

def parked_stores(n):
    ops = []
    order = [(u, j) for u in range(4) for j in range(4)] if not Cfg.st_jmajor else [(u, j) for j in range(4) for u in range(4)]
    for (u, j) in order:
        if True:
            x = X_(u * 4 + j); xr = regs("a", x, 4)
            ops.append(Op(f"buffer_store_dwordx4 {rng('a', x, 4)}, v{vQO}, s[{sSRD_O}:{sSRD_O+3}], s{sOP[j]} offen offset:{64*u}{Cfg.st_flags}",
                          "vst", xr + [V(vQO), f"s{sOP[j]}"], [], {r: ("OX", n, None, u, j) for r in xr}))
    return ops

def k_dma_ops(t):
    ops = []
    for h in range(2):
        ops.append(salu(f"s_add_u32 m0, s{sKM}, {t * 8192 + h * 1024}", [f"s{sKM}"], ["m0"]))
        ops.append(salu(f"s_add_u32 s{sKO}, s{sKL if t < 16 - Cfg.rot else sKH}, {t * 8192 + h * 64}", [], [f"s{sKO}"]))
        ops.append(Op(f"buffer_load_dwordx4 v{vQL}, s[{sSRD_K}:{sSRD_K+3}], s{sKO} offen{Cfg.k_flags} lds", "dma",
                      [V(vQL), f"s{sKO}", "m0"], [f"pend:ps:kraw{t}_{h}"]))
    return ops

def k_build_ops(t, idx):
    ops = []
    for h in range(2):
        base = TMP + 12 * ((2 * idx + h) % 2)
        off = t * 8192 + h * 1024
        va = vKW[0]
        if off >= 65536: off -= 65536; va = vKW[1]
        d = regs("v", base, 4)
        rd = Op(f"ds_read_b128 {rng('v', base, 4)}, v{va} offset:{off}", "lds", [V(va), f"ps:kraw{t}_{h}"],
                d + ["pend:" + r for r in d], lead=Cfg.lds_lead)
        ops.append(rd); ops.append(wait("waitl", [rd]))
        for i in range(4):
            if Cfg.kb_novalu and t >= 4: break
            r = base + i; a, b = base + 4 + 2 * i, base + 5 + 2 * i
            ops.append(valu(f"v_lshlrev_b32 v{a}, 16, v{r}", [V(r)], [V(a)]))
            ops.append(valu(f"v_and_b32 v{b}, 0xffff0000, v{r}", [V(r)], [V(b)]))
            ops.append(valu(f"v_mul_f32 v{a}, s{sC}, v{a}", [V(a)], [V(a)]))
            ops.append(valu(f"v_mul_f32 v{b}, s{sC}, v{b}", [V(b)], [V(b)]))
            ops.append(valu(f"v_cvt_pk_bf16_f32 v{r}, v{a}, v{b}", [V(a), V(b)], [V(r)]))
        ops.append(Op(f"ds_write_b128 v{va}, {rng('v', base, 4)} offset:{off}", "ldsw", [V(va)] + d, [f"ps:kw{t}_{h}", f"pend:ps:kws{t}_{h}"]))
    return ops

sTL, sTH, sTO = 75, 76, 77
def touch_ops(t):
    return [salu(f"s_add_u32 s{sTO}, s{sTL if t < 16 - Cfg.rot else sTH}, {t * 8192}", [], [f"s{sTO}"]),
            Op(f"buffer_load_dword a255, v{vTCH}, s[{sSRD_V}:{sSRD_V+3}], s{sTO} offen{Cfg.t_flags}", "vld",
               [V(vTCH), f"s{sTO}"], [A(255)])]

def next_offsets_ops():
    ops = []
    for j in range(4):
        ops.append(salu(f"s_mov_b32 s{sOP[j]}, s{sO[j]}", [f"s{sO[j]}"], [f"s{sOP[j]}"]))
        ops.append(salu(f"s_mov_b32 s{sO[j]}, s{sQ[j]}", [f"s{sQ[j]}"], [f"s{sO[j]}"]))
    ops.append(salu(f"s_add_u32 s{sROW}, s{sROW}, 256", [f"s{sROW}"], [f"s{sROW}", "scc"]))
    for j in range(4):
        o = Op(f"s_add_u32 s{sT0}, s{sROW}, {16*j}\n    s_lshl_b32 s{sT1}, s{sT0}, 8\n    s_add_u32 s{sT1}, s{sT1}, s{sQB}\n"
               f"    s_cmp_lt_u32 s{sT0}, 992\n    s_cselect_b32 s{sQ[j]}, s{sT1}, s{sOOB}", "salu",
               [f"s{sROW}", f"s{sQB}"], [f"s{sQ[j]}", f"s{sT0}", f"s{sT1}", "scc"])
        ops.append(o)
    return ops

def qk_seq(n, first):
    ops = []
    if first:
        for j in range(4): ops += qk_chain(n, 0, j, True)
        for j in range(4): ops += max_ops(n, j)
        for j in range(4): ops += qk_chain(n, 1, j, True)
    else:
        for j in range(4):
            for kvt in range(2): ops += qk_chain(n, kvt, j, False)
    return ops

G = lambda i, k: (64 + XS[0]) * i + k + GOFF[0]
GOFF = [0]

def init_issue_ops():
    ops = []; info = {"kd": {}, "vd": {}}
    def kd(t):
        d = k_dma_ops(t); ops.extend(d); info["kd"][t] = [o for o in d if o.kind == "dma"]
    for t in range(Cfg.k_first): kd(t)
    if Cfg.q0dma:
        qo, q = q0_dma_ops(); ops.extend(qo); info["q"] = q
    else:
        q = q_raw_loads(0, direct=True); ops.extend(q); info["q"] = q
    for t in range(Cfg.k_first, 4): kd(t)
    for t in (0, 1):
        d = dma_ops(t); ops.extend(d); info["vd"][t] = [o for o in d if o.kind == "dma"]
    for grp in Cfg.init_extra:
        if grp[0] == "t": ops.extend(touch_ops(grp[1]))
        else: kd(grp[1])
    return ops, info

def build_simple_prologue():
    ops = []; kd = {}
    prev = [None]
    def chain(d):
        for o in d:
            if prev[0] is not None: o.deps.append((prev[0], 0, 0))
            prev[0] = o
        ops.extend(d)
    def issue_k(t):
        d = k_dma_ops(t); chain(d); kd[t] = [o for o in d if o.kind == "dma"]
    AHEAD = Cfg.k_ahead
    for t in range(min(AHEAD, 16)): issue_k(t)
    later = []
    for t in range(AHEAD, 16): later.append(("k", t))
    q = q_raw_loads(0, direct=True)
    for n in range(0, 16, 2): later.append(("q", q[n:n + 2]))
    vd = []
    for t in (0, 1): later.append(("v", t))
    def issue_next(n):
        for _ in range(n):
            if not later: return
            k, a = later.pop(0)
            if k == "k": issue_k(a)
            elif k == "q": chain(a)
            elif k == "v":
                d = dma_ops(a); chain(d); vd.extend([o for o in d if o.kind == "dma"])
            else: chain(touch_ops(a))
    wr_all = []
    for t in range(16):
        w = wait("waitv", kd[t]); chain([w])
        kb = k_build_ops(t, t); chain(kb)
        wr_all += [o for o in kb if o.kind == "ldsw"]
        issue_next(Cfg.k_issue)
    issue_next(100)
    chain([wait("waitl", wr_all)])
    chain([Op("s_barrier", "bar", [f"ps:kws{t}_{h}" for t in range(16) for h in (0, 1)], ["ps:kready0"])])
    kr = k_reads(0, 0) + k_reads(0, 1)
    for o in kr: o.reads.append("ps:kready0")
    ops += kr
    ops.append(wait("waitl", kr[:4])); ops.append(wait("waitl", kr[4:]))
    for j in range(4): ops.append(wait("waitv", q[4 * j:4 * j + 4]))
    ops += qk_seq(0, True)
    x = 0
    for t in range(2, 16, 2):
        for o in touch_ops(t):
            o.minGap = 1 + 2 * x; o.cap = o.minGap; x += 1
            ops.append(o)
    kr = k_reads(1, 0) + k_reads(1, 1)
    for o in kr: o.reads.append("ps:kready0")
    ops += kr
    for j in range(4):
        for kvt in range(2): ops += sm_ops(0, kvt, j)
    ops.append(wait("waitl", kr[:4])); ops.append(wait("waitl", kr[4:]))
    return ops, vd

def build_body(pass0, info):
    ops = []
    dmas = {}
    kd = {}
    GOFF[0] = 0
    if pass0:
        kd = dict(info["kd"])
        GOFF[0] = 32
        pre = list(range(Cfg.k_first))
        wr_all = []
        for t in pre:
            w = wait("waitv", kd[t]); ops.append(w)
            kb = k_build_ops(t, t); ops += kb
            wr_all += [o for o in kb if o.kind == "ldsw"]
        ops.append(wait("waitl", wr_all))
        barA = Op("s_barrier", "bar", [f"ps:kws{t}_{h}" for t in pre for h in (0, 1)], ["ps:kready0"] + (["ps:kready1"] if 1 in pre else []))
        ops.append(barA)
        kr = k_reads(0, 0) + k_reads(0, 1)
        for o in kr: o.reads.append("ps:kready0")
        ops += kr
        ops.append(wait("waitl", kr[:4])); ops.append(wait("waitl", kr[4:]))
        q0r = q0_reads() if Cfg.q0dma else None
        for j in range(4):
            ops.append(wait("waitv", info["q"][4 * j:4 * j + 4]))
            if Cfg.q0dma:
                ops += q0r[4 * j:4 * j + 4]
                wl = wait("waitl", q0r[4 * j:4 * j + 4])
                if j == 3: wl.writes.append("ps:q0done")
                ops.append(wl)
        ops += qk_seq(0, True)
        x = 0
        for grp in Cfg.early_list:
            d = touch_ops(grp[1]) if grp[0] == "t" else k_dma_ops(grp[1])
            for o in d:
                o.minGap = Cfg.early0 + x; o.cap = o.minGap; x += 1
            ops += d
            if grp[0] == "k": kd[grp[1]] = [o for o in d if o.kind == "dma"]
        if 1 not in pre:
            w = wait("waitv", kd[1]); w.cap = 0; ops.append(w)
            kb = k_build_ops(1, 1)
            for x, o in enumerate(kb): o.cap = 1 + x // 3
            ops += kb
            ops.append(wait("waitl", [o for o in kb if o.kind == "ldsw"]))
            barB = Op("s_barrier", "bar", [f"ps:kws1_{h}" for h in (0, 1)], ["ps:kready1"])
            barB.cap = 20
            ops.append(barB)
        kr = k_reads(1, 0) + k_reads(1, 1)
        for o in kr: o.reads.append("ps:kready1")
        ops += kr
        for j in range(4):
            for kvt in range(2): ops += sm_ops(0, kvt, j)
        ops.append(wait("waitl", kr[:4])); ops.append(wait("waitl", kr[4:]))
        dmas[0] = info["vd"][0]; dmas[1] = info["vd"][1]
    else:
        ps = parked_stores(-1)
        for x, o in enumerate(ps):
            if Cfg.interleave == 2:
                e, k = Cfg.st_plan[x]
                o.minGap = G(2 * e, Cfg.bar_gap + 12) + k * Cfg.win_space
            else:
                o.minGap = 2 + Cfg.st_space * x
            o.cap = o.minGap + 4
        ops += ps
    qraw = None
    for i in range(16):
        n = i + 1
        first = (n == 16)
        if first:
            for j in range(4):
                wq = wait("waitv", qraw[4 * j:4 * j + 4]); wq.cap = G(14, 4 + 8 * j); ops.append(wq)
        ops += qk_seq(n, first)
        if first:
            x = 0
            for j in range(4):
                for s_ in range(4):
                    for o in q_copy(1, j, s_):
                        o.cap = G(14, 10 + 8 * j) + ((x % 16) * Cfg.qcopy_span) // 16; x += 1
                        ops.append(o)
        extra_bar_reads = []
        if pass0 and i % 2 == 0 and i <= 12 and not (i == 0 and Cfg.k_first == 4):
            w = wait("waitv", kd[i + 2] + kd[i + 3]); ops.append(w)
            W_ = 64 + XS[0]
            if i > 2 or (i == 2):
                w.cap = G(i - 2, Cfg.bar_gap + Cfg.kb_off); w.minGap = w.cap
                span = 2 * W_ - Cfg.kb_off - 8
            else:
                w.cap = 0; span = 30
            kb = k_build_ops(i + 2, 0) + k_build_ops(i + 3, 1)
            for x, o in enumerate(kb):
                if Cfg.kb_lazy and i >= 2:
                    o.cap = w.cap + 2 + Cfg.kb_slack + (x * (span - Cfg.kb_slack)) // len(kb)
                else:
                    o.cap = w.cap + 2 + (x * span) // len(kb)
                    o.minGap = o.cap - 2
            ops += kb
            wr = [o for o in kb if o.kind == "ldsw"]
            ops.append(wait("waitl", wr))
            extra_bar_reads = [f"ps:kws{t}_{h}" for t in (i + 2, i + 3) for h in (0, 1)]
        if i % 2 == 0:
            cov = []
            for t in (i, i + 1):
                if t in dmas: cov += dmas[t]
            wv = Op("", "waitv", [], [f"ps:vw{i}"], covers=cov)
            wv.name = f"vw{i}"
            if i > 0:
                for c in cov: wv.deps.append((c, 0, 0))
            wv.cap = G(i, Cfg.bar_gap - 1)
            ops.append(wv)
            wr = [f"ps:vready{i // 2 % 2}", f"ps:vfree{(i // 2 + 1) % 2}", f"ps:kbar{i}"]
            bar = Op("s_barrier", "bar", [f"ps:vw{i}", "ps:vused"] + extra_bar_reads + (["ps:q0done"] if (pass0 and i == 0 and Cfg.q0dma) else []), wr)
            bar.cap = G(i, Cfg.bar_gap); bar.minGap = G(i, Cfg.bar_gap - 2)
            ops.append(bar)
            x = 0
            for t in (i + 2, i + 3):
                d = dma_ops(t % 16)
                for o in d:
                    o.cap = G(i, Cfg.bar_gap + 2 + 2 * x); x += 1
                ops += d
                dmas[t] = [o for o in d if o.kind == "dma"]
            if i == 14: late = dmas[16] + dmas[17]
            if not pass0 and Cfg.touch_all:
                d = touch_ops((i + Cfg.touch_ahead) % 16)
                for o in d:
                    o.cap = G(i, Cfg.bar_gap + 2 + 2 * x); x += 1
                    o.reads.append(f"ps:kbar{i}")
                ops += d
            if pass0:
                if i + 8 < 16 and not Cfg.kall:
                    for t in (i + 8, i + 9):
                        d = k_dma_ops(t)
                        for o in d:
                            o.cap = G(i, Cfg.bar_gap + 2 + 2 * x); x += 1
                            if o.kind == "dma": o.reads.append(f"ps:kbar{i}")
                        ops += d; kd[t] = [o for o in d if o.kind == "dma"]
                if i + 8 < 16 or Cfg.touch_all:
                    d = touch_ops((i + 8) % 16)
                    for o in d:
                        o.cap = G(i, Cfg.bar_gap + 2 + 2 * x); x += 1
                        o.reads.append(f"ps:kbar{i}")
                    ops += d
        if pass0 and Cfg.pf and Cfg.pf2 and i == Cfg.pf2:
            for h in range(2):
                o = Op(f"global_load_dword a254, v{vPF}, s[80:81] offset:{64*h}", "vld", [V(vPF)], [A(254)])
                o.minGap = G(i, Cfg.bar_gap + 24 + 4 * h); o.cap = o.minGap + 2
                ops.append(o)
        kr = k_reads((n + 1) % 16, 0) + k_reads((n + 1) % 16, 1)
        if pass0 and n + 1 < 16:
            tb = n + 1
            bi = (tb - 2) // 2 * 2
            for o in kr: o.reads.append(f"ps:kbar{bi}")
        ops += kr
        for j in range(4):
            for kvt in range(2):
                ops += sm_ops(n, kvt, j)
        ops += sum_ops(i)
        for dt in range(8):
            vr = v_reads(i, dt)
            ops += vr
            w = wait("waitl", vr)
            if dt == 7: w.writes.append("ps:vused")
            ops.append(w)
            pv = pv_ops(i, dt)
            if i == 15 and dt == 7: pv[-1].writes.append("ps:nomfma")
            ops += pv
        if kr:
            ops.append(wait("waitl", kr[:4]))
            if len(kr) > 4: ops.append(wait("waitl", kr[4:]))
        if i == 4:
            qraw = q_raw_loads(1)
            for x, o in enumerate(qraw):
                if Cfg.interleave == 2:
                    e, k = Cfg.q_plan[x]
                    o.minGap = G(2 * e, Cfg.bar_gap + 12) + k * Cfg.win_space
                elif pass0: o.minGap = G(Cfg.q_start0, 0) + Cfg.q_space0 * x
                elif Cfg.interleave: o.minGap = 2 + Cfg.st_space * x + Cfg.st_space // 2
                else: o.minGap = G(Cfg.q_start, 0) + Cfg.q_space * x
                o.cap = o.minGap + 4
            ops += qraw
    ops += epilogue_ops(15)
    ops += next_offsets_ops()
    return ops, late

ABL = set()
def emit(ops):
    lines = []
    for o in ops:
        t = optext(o)
        if t is None: continue
        if o.kind in ABL: continue
        lines.append("    " + t)
    return "\n".join(lines) + "\n"

T0, T1, T2, T3 = TMP + 8, TMP + 9, TMP + 10, TMP + 11
def fswz(dst, src, tmp):
    return f"    v_lshlrev_b32 v{tmp}, 1, v{src}\n    v_lshrrev_b32 v{dst}, v{tmp}, v{vTHR}\n    v_and_b32 v{dst}, 3, v{dst}\n"

def emit_fix(ops):
    lines = []
    for i, o in enumerate(ops):
        if o.kind == "dma" and i > 0 and "m0" in ops[i - 1].writes: lines.append("    s_nop 0")
        lines.append("    " + o.text)
    return "\n".join(lines) + "\n" if lines else ""

def prologue_text():
    c = f32bits(CSCALE)
    s = f"""
    s_cmp_ge_u32 s2, 256
    s_cbranch_scc1 L_end
    s_load_dwordx4 s[4:7], s[0:1], 0
    s_load_dwordx4 s[8:11], s[0:1], 16
PREFETCH
    v_and_b32 v{T0}, 63, v0                     ; lane
    v_lshrrev_b32 v{T1}, 6, v0                  ; wave
    v_mov_b32 v{vTHR}, 0x78                     ; lookup for f = (0,2,3,1)
    v_readfirstlane_b32 s{sW}, v{T1}
    ; i = lane%16, g = lane/16
    v_and_b32 v{T1}, 15, v{T0}
    v_lshrrev_b32 v{T2}, 4, v{T0}
    v_lshlrev_b32 v{vQO}, 8, v{T1}
    v_lshl_add_u32 v{vQO}, v{T2}, 4, v{vQO}     ; vQO = i*256 + g*16
    ; vK0 = (4i + (g ^ f(i>>2)))*16
    v_lshrrev_b32 v{T3}, 2, v{T1}
""" + fswz(T3, T3, TMP) + f"""
    v_xor_b32 v{T3}, v{T3}, v{T2}
    v_lshl_add_u32 v{T3}, v{T1}, 2, v{T3}
    v_lshlrev_b32 v{vK0}, 4, v{T3}
    v_add_u32 v{vK1}, 0x10000, v{vK0}
    ; vDMA = g*256 + ((i) ^ (g<<2))*16
    v_lshlrev_b32 v{T3}, 2, v{T2}
    v_xor_b32 v{T3}, v{T3}, v{T1}
    v_lshlrev_b32 v{T3}, 4, v{T3}
    v_lshl_add_u32 v{vDMA}, v{T2}, 8, v{T3}
    ; vQL: i' = lane>>2, x = lane&3 : i'*256 + ((x ^ f(i'>>2))<<4)
    v_lshrrev_b32 v{T1}, 4, v{T0}               ; i'>>2 = lane>>4
""" + fswz(T1, T1, TMP) + f"""
    v_and_b32 v{T3}, 3, v{T0}
    v_xor_b32 v{T1}, v{T1}, v{T3}
    v_lshlrev_b32 v{T1}, 4, v{T1}
    v_lshrrev_b32 v{T3}, 2, v{T0}
    v_lshl_add_u32 v{vQL}, v{T3}, 8, v{T1}
    ; V tr-read addresses: g=lane>>4, r=(lane>>2)&3, c=lane&3 : LDS_V + (4g+r)*256 + ((u^r)<<6) + 16c
    v_bfe_u32 v{T1}, v{T0}, 2, 2                ; r
    v_and_b32 v{T3}, 3, v{T0}                   ; c
    v_lshl_add_u32 v{T2}, v{T2}, 2, v{T1}       ; 4g+r
    v_lshlrev_b32 v{T2}, 8, v{T2}
    v_lshl_add_u32 v{T2}, v{T3}, 4, v{T2}
    v_add_u32 v{T2}, {LDS_V}, v{T2}
"""
    for u in range(4):
        s += f"    v_xor_b32 v{T3}, {u}, v{T1}\n    v_lshl_add_u32 v{vV[u]}, v{T3}, 6, v{T2}\n"
    s += f"""
    v_lshlrev_b32 v{vTCH}, 7, v{T0}             ; lane*128
    v_lshlrev_b32 v{T0}, 4, v{T0}               ; lane*16
    ; workgroup -> (group, half)
    s_and_b32 s{sT0}, s2, 7
    s_lshr_b32 s{sT1}, s2, 3
    s_lshl_b32 s{sT0}, s{sT0}, 4
    s_lshr_b32 s52, s{sT1}, 1
    s_add_u32 s{sT0}, s{sT0}, s52              ; group
    s_and_b32 s{sT1}, s{sT1}, 1                ; half
    s_lshl_b32 s{sKB}, s{sT0}, 17              ; group * 131072
    s_mul_i32 s{sQB}, s{sT0}, {1984 * 256}
    s_mul_i32 s52, s{sT1}, {992 * 256}
    s_add_u32 s{sQB}, s{sQB}, s52
    s_mul_i32 s53, s{sT1}, {Cfg.rot * 8192}      ; rotation
    s_mul_i32 s83, s{sT1}, {131072 - Cfg.rot * 8192}
    s_mov_b32 s84, s{sT1}                       ; half
    s_lshl_b32 s{sT0}, s{sW}, 11               ; w*2048
    s_add_u32 s{sVB}, s{sKB}, s{sT0}
    s_sub_u32 s{sVBH}, s{sVB}, s83
    s_add_u32 s{sVB}, s{sVB}, s53
    s_add_u32 s{sM0B}, s{sT0}, {LDS_V}
    s_mov_b32 s{sC}, {c:#x}
    s_mov_b32 s{sOOB}, 0x80000000
    s_mov_b64 s[{sFLAG}:{sFLAG+1}], 0
    s_mov_b32 s{sPASS}, 0
    s_lshl_b32 s{sROW}, s{sW}, 6
"""
    for j in range(4):
        s += f"    s_add_u32 s{sT0}, s{sROW}, {16*j}\n    s_lshl_b32 s{sT0}, s{sT0}, 8\n    s_add_u32 s{sQ[j]}, s{sT0}, s{sQB}\n    s_mov_b32 s{sO[j]}, s{sOOB}\n"
    s += f"""    s_lshr_b32 s{sT0}, s{sW}, 1
    s_lshl_b32 s{sT0}, s{sT0}, 13
    s_and_b32 s{sT1}, s{sW}, 1
    s_lshl_b32 s{sT1}, s{sT1}, 6
    s_add_u32 s{sT0}, s{sT0}, s{sT1}
    s_add_u32 s{sTL}, s{sT0}, s{sKB}
    s_sub_u32 s{sTH}, s{sTL}, s83
    s_add_u32 s{sTL}, s{sTL}, s53
"""
    s += f"""
    s_lshr_b32 s{sT0}, s{sW}, 1
    s_lshl_b32 s{sT0}, s{sT0}, 12
    s_and_b32 s{sT1}, s{sW}, 1
    s_lshl_b32 s52, s{sT1}, 7
    s_add_u32 s{sKL}, s{sKB}, s{sT0}
    s_add_u32 s{sKL}, s{sKL}, s52
    s_sub_u32 s{sKH}, s{sKL}, s83
    s_add_u32 s{sKL}, s{sKL}, s53
    s_lshl_b32 s{sT1}, s{sT1}, 11
    s_add_u32 s{sKM}, s{sT0}, s{sT1}
    v_add_u32 v{vKW[0]}, s{sKM}, v{T0}
    v_add_u32 v{vKW[1]}, 0x10000, v{vKW[0]}
    s_lshl_b32 s{sQM}, s{sW}, 14
    s_add_u32 s{sQM}, s{sQM}, 0x10000
    v_add_u32 v{vPF2}, s{sQM}, v{vK0}
    v_mov_b32 v{vTHR}, 0x3f803f80
    v_accvgpr_write_b32 a{ONES}, v{vTHR}
    v_accvgpr_write_b32 a{ONES+1}, v{vTHR}
    v_accvgpr_write_b32 a{ONES+2}, v{vTHR}
    v_accvgpr_write_b32 a{ONES+3}, v{vTHR}
    v_mov_b32 v{vTHR}, {f32bits(Cfg.thr):#x}
    s_waitcnt lgkmcnt(0)
"""
    for (srd, lo, size) in ((sSRD_Q, 4, Q_BYTES), (sSRD_K, 6, KV_BYTES), (sSRD_V, 8, KV_BYTES), (sSRD_O, 10, Q_BYTES)):
        s += f"    s_mov_b32 s{srd}, s{lo}\n    s_and_b32 s{srd+1}, s{lo+1}, 0xffff\n    s_mov_b32 s{srd+2}, {size}\n    s_mov_b32 s{srd+3}, 0x00020000\n"
    return s

LET = dict(valu="a", trans="E", perm="p", lds="L", vld="G", vst="Z", dma="D", salu="s", waitl="w", waitv="W", bar="B", nop="n", ldsw="l")
def show(ops):
    gaps = []; cur = None
    for o in ops:
        if o.kind == "mfma":
            cur = []; gaps.append(cur)
        elif o.kind != "phantom" and cur is not None:
            cur.append(LET[o.kind])
    tot = 0
    W = 64 + XS[0]
    for i in range(0, len(gaps), W):
        row = gaps[i:i + W]
        c = 0
        for g in row:
            v = sum(8 if x == "E" else 4 for x in g if x in "aEp")
            nm = [x for x in g if x not in "aEp"]
            mem = [x for x in nm if x in "LGZDl"]
            cost = 4 + max(4, 4 * len(nm) + (4 if mem else 0) - (4 if (mem and v == 0) else 0)) + v
            c += max(16.5, cost)
        tot += c
        print(f"it{i//W:2d} est {c:6.0f}: " + " ".join("".join(g) if g else "-" for g in row))
    print("est total", tot)

vST0, vST1 = 250, 251
def stamp_setup():
    return f"""    s_load_dwordx2 s[54:55], s[0:1], 40
    s_waitcnt lgkmcnt(0)
    s_mov_b32 s56, s54
    s_and_b32 s57, s55, 0xffff
    s_mov_b32 s58, 0x10000000
    s_mov_b32 s59, 0x00020000
    s_lshl_b32 s60, s2, 2
    s_add_u32 s60, s60, s{sW}
    s_lshl_b32 s60, s60, 8
"""
def stamp(i, dyn=False):
    t = f"""    s_memrealtime s[62:63]
    s_memtime s[64:65]
    s_waitcnt lgkmcnt(0)
    v_mov_b32 v250, s62
"""
    so = "s60"
    if dyn:
        t += f"    s_lshl_b32 s61, s{sPASS}, 2\n    s_add_u32 s61, s61, s60\n"; so = "s61"
    t += f"    buffer_store_dword v250, off, s[56:59], {so} offset:{4*i}\n    s_nop 3\n    v_mov_b32 v250, s64\n    buffer_store_dword v250, off, s[56:59], {so} offset:{4*i+128}\n"
    return t

def slow_path_text():
    t = []
    A_ = t.append
    vKa, vVa, vMx = TMP, TMP + 1, TMP + 2
    vL = TMP + 6
    vU = TMP + 10
    sT, sP, sSo, sVs = 78, 79, 85, 86
    A_("L_slow:")
    A_("    s_waitcnt vmcnt(0) lgkmcnt(0)")
    A_(f"    v_mbcnt_lo_u32_b32 v{vU}, -1, 0")
    A_(f"    v_mbcnt_hi_u32_b32 v{vU}, -1, v{vU}")
    A_(f"    v_lshrrev_b32 v{vVa}, 4, v{vU}")
    A_(f"    v_lshlrev_b32 v{vVa}, 10, v{vVa}")
    A_(f"    v_bfe_u32 v{vU+1}, v{vU}, 2, 2")
    A_(f"    v_lshl_add_u32 v{vVa}, v{vU+1}, 4, v{vVa}")
    A_(f"    v_and_b32 v{vU+1}, 3, v{vU}")
    A_(f"    v_lshl_add_u32 v{vVa}, v{vU+1}, 1, v{vVa}")
    A_(f"    s_lshl_b32 s{sROW}, s{sW}, 6")
    A_(f"    s_mov_b32 s{sP}, 0")
    A_("L_slow_pass:")
    for j in range(4):
        A_(f"    s_add_u32 s{sT0}, s{sROW}, {16*j}")
        A_(f"    s_lshl_b32 s{sT1}, s{sT0}, 8")
        A_(f"    s_add_u32 s{sT1}, s{sT1}, s{sQB}")
        A_(f"    s_cmp_lt_u32 s{sT0}, 992")
        A_(f"    s_cselect_b32 s{sQ[j]}, s{sT1}, s{sOOB}")
    for j in range(4):
        for ss in range(4):
            A_(f"    buffer_load_dwordx4 a[{Q_(j,ss)}:{Q_(j,ss)+3}], v{vQO}, s[{sSRD_Q}:{sSRD_Q+3}], s{sQ[j]} offen offset:{64*ss}")
    for j in range(4): A_(f"    v_mov_b32 v{vMx+j}, 0xff800000")
    A_("    s_waitcnt vmcnt(0)")
    def kload():
        for kvt in range(2):
            for ss in range(4):
                A_(f"    ds_read_b128 a[{KF_(kvt,ss)}:{KF_(kvt,ss)+3}], v{vKa} offset:{kvt*4096+ss*1024}")
        A_("    s_waitcnt lgkmcnt(0)")
    def qk(usenm):
        for kvt in range(2):
            for j in range(4):
                for ss in range(4):
                    d = S_(kvt, j)
                    c = (f"v[{NM_(j)}:{NM_(j)+3}]" if usenm else "0") if ss == 0 else f"v[{d}:{d+3}]"
                    A_(f"    v_mfma_f32_16x16x32_bf16 v[{d}:{d+3}], a[{KF_(kvt,ss)}:{KF_(kvt,ss)+3}], a[{Q_(j,ss)}:{Q_(j,ss)+3}], {c}")
        A_("    s_nop 15")
    A_(f"    v_mov_b32 v{vKa}, v{vK0}")
    A_(f"    s_mov_b32 s{sT}, 0")
    A_("L_slow_max:")
    kload(); qk(False)
    for j in range(4):
        for kvt in range(2):
            d = S_(kvt, j)
            A_(f"    v_max3_f32 v{vMx+j}, v{vMx+j}, v{d}, v{d+1}")
            A_(f"    v_max3_f32 v{vMx+j}, v{vMx+j}, v{d+2}, v{d+3}")
    A_(f"    v_add_u32 v{vKa}, 8192, v{vKa}")
    A_(f"    s_add_u32 s{sT}, s{sT}, 1")
    A_(f"    s_cmp_lt_u32 s{sT}, 16")
    A_("    s_nop 7")
    A_("    s_cbranch_scc1 L_slow_max")
    def xlane(reg, op):
        for sw in ("v_permlane16_swap_b32", "v_permlane32_swap_b32"):
            A_(f"    v_mov_b32 v{vU}, v{reg}")
            A_("    s_nop 1")
            A_(f"    {sw} v{reg}, v{vU}")
            A_("    s_nop 1")
            A_(f"    {op} v{reg}, v{reg}, v{vU}")
    for j in range(4):
        xlane(vMx + j, "v_max_f32")
        for i in range(4): A_(f"    v_sub_f32 v{NM_(j)+i}, 0, v{vMx+j}")
        A_(f"    v_mov_b32 v{vL+j}, 0")
    for r in range(128): A_(f"    v_mov_b32 v{r}, 0")
    A_(f"    v_mov_b32 v{vKa}, v{vK0}")
    A_(f"    s_mov_b32 s{sT}, 0")
    A_("L_slow_pv:")
    A_(f"    s_mul_i32 s{sVs}, s84, {Cfg.rot}")
    A_(f"    s_add_u32 s{sVs}, s{sVs}, s{sT}")
    A_(f"    s_and_b32 s{sVs}, s{sVs}, 15")
    A_(f"    s_lshl_b32 s{sVs}, s{sVs}, 13")
    A_(f"    s_add_u32 s{sVs}, s{sVs}, s{sKB}")
    A_(f"    s_add_u32 s{sSo}, s{sVs}, 4096")
    kload(); qk(True)
    for j in range(4):
        for kvt in range(2):
            d = S_(kvt, j)
            for i in range(4): A_(f"    v_exp_f32 v{d+i}, v{d+i}")
            A_("    s_nop 0")
            for h in range(2): A_(f"    v_cvt_pk_bf16_f32 v{P_(0,j)+2*kvt+h}, v{d+2*h}, v{d+2*h+1}")
            for i in range(4): A_(f"    v_add_f32 v{vL+j}, v{vL+j}, v{d+i}")
    raw = P_(1, 0); pk = P_(1, 2)
    for dt in range(8):
        u, b = dt // 2, dt % 2
        for kvt in range(2):
            so = sVs if kvt == 0 else sSo
            for r in range(4):
                A_(f"    buffer_load_ushort v{raw + 4*kvt + r}, v{vVa}, s[{sSRD_V}:{sSRD_V+3}], s{so} offen offset:{r*256 + (32*u + 4*b)*2}")
        A_("    s_waitcnt vmcnt(0)")
        for h in range(4):
            A_(f"    v_lshl_or_b32 v{pk + h}, v{raw + 2*h + 1}, 16, v{raw + 2*h}")
        A_("    s_nop 1")
        for j in range(4):
            o = O_(dt, j)
            A_(f"    v_mfma_f32_16x16x32_bf16 v[{o}:{o+3}], v[{pk}:{pk+3}], v[{P_(0,j)}:{P_(0,j)+3}], v[{o}:{o+3}]")
        A_("    s_nop 7")
    A_(f"    v_add_u32 v{vKa}, 8192, v{vKa}")
    A_(f"    s_add_u32 s{sT}, s{sT}, 1")
    A_(f"    s_cmp_lt_u32 s{sT}, 16")
    A_("    s_nop 15")
    A_("    s_cbranch_scc1 L_slow_pv")
    for j in range(4):
        xlane(vL + j, "v_add_f32")
        A_(f"    v_rcp_f32 v{vL+j}, v{vL+j}")
    A_("    s_nop 1")
    for u in range(4):
        for j in range(4):
            tb = S_(0, 0) + 4 * ((u * 4 + j) % 8)
            for b in range(2):
                o = O_(2 * u + b, j)
                for i in range(4): A_(f"    v_mul_f32 v{o+i}, v{o+i}, v{vL+j}")
                for h in range(2): A_(f"    v_cvt_pk_bf16_f32 v{tb+2*b+h}, v{o+2*h}, v{o+2*h+1}")
            A_(f"    buffer_store_dwordx4 v[{tb}:{tb+3}], v{vQO}, s[{sSRD_O}:{sSRD_O+3}], s{sQ[j]} offen offset:{64*u}")
            A_("    s_nop 1")
    A_("    s_waitcnt vmcnt(0)")
    A_(f"    s_add_u32 s{sROW}, s{sROW}, 256")
    A_(f"    s_add_u32 s{sP}, s{sP}, 1")
    A_(f"    s_cmp_lt_u32 s{sP}, 4")
    A_("    s_cbranch_scc1 L_slow_pass")
    A_("    s_endpgm")
    txt = "\n".join(t) + "\n"
    return txt

def SLOWV(dt): return VF_(dt)

def main():
    ap = argparse.ArgumentParser()
    ap.add_argument("-o", default="standalone__gqa_softmax__near_ridge.s")
    ap.add_argument("--backlog", type=int, default=3)
    ap.add_argument("--lead", type=int, default=7)
    ap.add_argument("--show", action="store_true")
    ap.add_argument("--stamp", action="store_true")
    ap.add_argument("--stflags", default="")
    ap.add_argument("--qflags", default="")
    ap.add_argument("--kflags", default="")
    ap.add_argument("--vflags", default="")
    ap.add_argument("--abl", default="")
    ap.add_argument("--rot", type=int, default=0)
    ap.add_argument("--tflags", default="")
    ap.add_argument("--noq0dma", action="store_true")
    ap.add_argument("--kboff", type=int, default=12)
    ap.add_argument("--horizon", type=int, default=10 ** 9)
    ap.add_argument("--kblazy", type=int, default=-1)
    ap.add_argument("--pf2", type=int, default=10)
    ap.add_argument("--stj", action="store_true")
    ap.add_argument("--kall", action="store_true")
    ap.add_argument("--simple", action="store_true")
    ap.add_argument("--kahead", type=int, default=6)
    ap.add_argument("--kissue", type=int, default=2)
    ap.add_argument("--winspace", type=int, default=9)
    ap.add_argument("--nointer", action="store_true")
    ap.add_argument("--touchall", action="store_true")
    ap.add_argument("--qstart0", type=int, default=3)
    ap.add_argument("--qspace0", type=int, default=40)
    ap.add_argument("--initx", type=int, default=1)
    ap.add_argument("--x", type=int, default=0)
    ap.add_argument("--x0", type=int, default=0)
    ap.add_argument("--kfirst", type=int, default=4)
    ap.add_argument("--kbnovalu", action="store_true")
    ap.add_argument("--stampbar", action="store_true")
    ap.add_argument("--pf", type=int, default=6)
    ap.add_argument("--nopk", action="store_true")
    ap.add_argument("--stspace", type=int, default=14)
    ap.add_argument("--qstart", type=int, default=5)
    ap.add_argument("--qspace", type=int, default=24)
    ap.add_argument("--bargap", type=int, default=11)
    args = ap.parse_args()
    for x in args.abl.split(","):
        if x: ABL.add(x)
    Cfg.backlog = args.backlog; Cfg.lds_lead = args.lead
    Cfg.pf = args.pf
    Cfg.t_flags = (' ' + args.tflags) if args.tflags else ''
    Cfg.kb_novalu = args.kbnovalu
    Cfg.k_first = args.kfirst
    Cfg.q_start0 = args.qstart0; Cfg.q_space0 = args.qspace0
    if args.kall:
        Cfg.kall = True
        Cfg.init_extra = [("k", t) for t in range(4, 16)] + [("t", 2)]
        Cfg.early_list = [("t", 4), ("t", 6)]
    elif args.initx == 0:
        Cfg.early_list = Cfg.init_extra + Cfg.early_list; Cfg.init_extra = []
    elif args.initx == 2:
        Cfg.init_extra = Cfg.init_extra + Cfg.early_list; Cfg.early_list = []
    Cfg.touch_all = args.touchall
    if args.nointer: Cfg.interleave = 0
    Cfg.win_space = args.winspace
    Cfg.simple = args.simple; Cfg.k_ahead = args.kahead; Cfg.k_issue = args.kissue
    Cfg.st_jmajor = args.stj
    Cfg.pf2 = args.pf2
    Cfg.horizon = args.horizon
    if args.kblazy >= 0: Cfg.kb_lazy = True; Cfg.kb_slack = args.kblazy
    Cfg.kb_off = args.kboff
    Cfg.q0dma = not (args.noq0dma or args.simple or args.kall or args.initx == 2)
    Cfg.rot = args.rot; Cfg.pkmul = not args.nopk
    Cfg.st_space = args.stspace; Cfg.q_start = args.qstart; Cfg.q_space = args.qspace; Cfg.bar_gap = args.bargap
    Cfg.st_flags = (" " + args.stflags) if args.stflags else ""
    Cfg.q_flags = (" " + args.qflags) if args.qflags else ""
    Cfg.k_flags = (" " + args.kflags) if args.kflags else ""
    Cfg.v_flags = (" " + args.vflags) if args.vflags else ""

    def pol(k, remaining, ready, emit_, state):
        state["backlog"] = Cfg.backlog
        state["horizon"] = Cfg.horizon
        default_policy(k, remaining, ready, emit_, state)
    noff0 = next_offsets_ops()
    tail = parked_stores(15)
    if Cfg.simple:
        XS[0] = args.x
        init_ops = []
        body0, vd0 = build_simple_prologue()
        body, late = build_body(False, None)
        for o in body:
            if o.kind == "waitv" and o.name == "vw0": o.covers = vd0 + late
        body0_sched = schedule(body0, pol, verbose=True)
        body_sched = schedule(body, pol, verbose=True)
        setx = Op("", "valu", [], regs("a", X_(0), 64), None, {r: ("OX", -1, None, u, j) for u in range(4) for j in range(4) for r in regs("a", X_(u * 4 + j), 4)})
        trace = [(body0_sched, 0), ([setx], 0), (noff0, 0)] + [(body_sched, p) for p in range(0, 4)] + [(tail, 3)]
    else:
        init_ops, info = init_issue_ops()
        XS[0] = args.x0
        body0, late0 = build_body(True, info)
        XS[0] = args.x
        body, late = build_body(False, None)
        for o in body:
            if o.kind == "waitv" and o.name == "vw0": o.covers = late0 + late
        body0_sched = schedule(body0, pol, verbose=True)
        body_sched = schedule(body, pol, verbose=True)
        trace = [(init_ops, 0), (noff0, 0), (body0_sched, 0)] + [(body_sched, p) for p in range(1, 4)] + [(tail, 3)]
    resolve_waits(trace)
    errs = check_trace(trace)
    for e in errs[:40]: print("ERR", e)
    print("errors:", len(errs))
    nm = sum(1 for o in body_sched if o.kind == "mfma")
    print("body instrs:", sum(1 for o in body_sched if o.kind != "phantom"), "mfma:", nm, " body0 instrs:", sum(1 for o in body0_sched if o.kind != "phantom"))
    if args.show:
        XS[0] = args.x0; show(body0_sched); XS[0] = args.x; show(body_sched)

    s = f"""; GQA attention forward, bf16, B=16 Hq=32 Hkv=8 Sq=496 Sk=512 D=128  (generated by gen/gen.py)
; @launch grid=(256,1,1) block=(256,1,1) lds=163840
.amdgcn_target "amdgcn-amd-amdhsa--gfx950"
.text
.globl {KNAME}
.p2align 8
.type {KNAME},@function
{KNAME}:
"""
    pt = prologue_text()
    pf = ""
    if Cfg.pf:
        first_end = "L_code_end" if (Cfg.simple or not Cfg.pf2) else "L_pass"
        pf = f"""    s_getpc_b64 s[80:81]
L_pc:
    v_lshlrev_b32 v{TMP+12}, {Cfg.pf}, v0
    s_mov_b32 s82, {first_end}-L_pc-4
"""
        step = 256 << Cfg.pf
        nbytes = Cfg.code_bytes if first_end == "L_code_end" else 36000
        for i in range((nbytes + step - 1) // step):
            pf += f"    v_min_u32 v{TMP+13}, s82, v{TMP+12}\n    global_load_dword v{TMP+14+i%4}, v{TMP+13}, s[80:81]\n    v_add_u32 v{TMP+12}, {step}, v{TMP+12}\n"
        if Cfg.pf2:
            pf += f"""    v_lshlrev_b32 v{vPF}, 7, v0
    v_add_u32 v{vPF}, L_pass-L_pc, v{vPF}
    s_mov_b32 s82, L_code_end-L_pc-68
    v_min_u32 v{vPF}, s82, v{vPF}
"""
    pt = pt.replace("PREFETCH\n", pf)
    if args.stamp:
        a, b = pt.split("    ; workgroup -> (group, half)")
        pt = a + stamp_setup() + stamp(0) + "    ; workgroup -> (group, half)" + b
    s += pt
    s += emit_fix(init_ops)
    if not Cfg.simple: s += emit(noff0)
    if args.stamp: s += stamp(1)
    b0 = emit(body0_sched)
    if args.stamp and args.stampbar:
        parts = b0.split("    s_barrier\n")
        b0 = parts[0]
        for k, p_ in enumerate(parts[1:]):
            b0 += "    s_barrier\n" + stamp(8 + k) + p_
    s += b0
    if Cfg.simple: s += emit(noff0)
    if args.stamp: s += stamp(2)
    s += f"    s_mov_b32 s{sPASS}, {0 if Cfg.simple else 1}\n"
    s += ".p2align 6\nL_pass:\n"
    b1 = emit(body_sched)
    if args.stamp and args.stampbar:
        parts = b1.split("    s_barrier\n")
        b1 = stamp(18) + parts[0]
        for k, p_ in enumerate(parts[1:]):
            b1 += "    s_barrier\n" + stamp(19 + k) + p_
        idx = b1.rindex("    v_mfma")
        idx = b1.index("\n", idx) + 1
        b1 = b1[:idx] + stamp(27) + b1[idx:] + stamp(28)
    s += b1
    if args.stamp: s += stamp(3 if Cfg.simple else 2, dyn=True)
    s += f"""    s_add_u32 s{sPASS}, s{sPASS}, 1
    s_cmp_lt_u32 s{sPASS}, 4
    s_cbranch_scc1 L_pass
"""
    s += emit(tail)
    if args.stamp: s += "    s_waitcnt vmcnt(0)\n" + stamp(7 if Cfg.simple else 6)
    s += f"""    s_cmp_lg_u64 s[{sFLAG}:{sFLAG+1}], 0
    s_cbranch_scc1 L_slow
L_end:
    s_endpgm
L_code_end:
"""
    s += slow_path_text()
    s += f"""
.section .rodata,"a"
.p2align 6
.amdhsa_kernel {KNAME}
  .amdhsa_next_free_vgpr 512
  .amdhsa_next_free_sgpr 88
  .amdhsa_accum_offset 256
  .amdhsa_group_segment_fixed_size 0
  .amdhsa_kernarg_size 48
  .amdhsa_user_sgpr_count 2
  .amdhsa_user_sgpr_kernarg_segment_ptr 1
  .amdhsa_system_sgpr_workgroup_id_x 1
.end_amdhsa_kernel
"""
    open(args.o, "w").write(s)

if __name__ == "__main__":
    main()
```

```python
import sys, os, struct, argparse
sys.path.insert(0, os.path.dirname(os.path.abspath(__file__)))
from sched import *

KNAME = "standalone__gqa_softmax__near_ridge_kernel"

def O_(dt, j): return (dt * 4 + j) * 4
def S_(kvt, j): return 128 + (kvt * 4 + j) * 4
def P_(buf, j): return 160 + buf * 16 + j * 4
def NM_(j): return 192 + 4 * j
def LS0_(j): return 208 + j
def LS1_(j): return 212 + j
TMP = 216
vK0, vK1 = 240, 241
vV = [242, 243, 244, 245]
vQO = 246
vDMA = 247
vRC = [248, 249, 250, 251]
def vRCP(j): return 248 + j
vQL = 252
vSTW = 253
vSTR = 254
vTHR = 255
vPF = 254
vPF2 = 251
def Q_(j, s): return (j * 4 + s) * 4
def X_(n): return 64 + n * 4
def KF_(kvt, s, par=0): return 128 + par * 32 + (kvt * 4 + s) * 4
def VF_(dt): return 192 + dt * 4
def L_(j): return 224 + 4 * j
ONES = 240
XS = [0]
def msum(j): return j >= 4 - XS[0]
def KR_(s): return 224 + 4 * s

sSRD_Q, sSRD_K, sSRD_V, sSRD_O = 12, 16, 20, 24
sW = 28; sPASS = 29
sQ = [30, 31, 32, 33]
sO = [34, 35, 36, 37]
sVB = 38; sVO = 39; sM0B = 40; sQB = 41
sFLAG = 42
sROW = 44
sT0, sT1 = 45, 46
sC = 47
sKB = 49; sOOB = 50; sVO2 = 51
sOP = [66, 67, 68, 69]
sVBH = 70
sKL, sKH = 71, 72
sKM = 73
sKO = 74
sVT, sVTH = 75, 76
vKW = [248, 249]
vTCH = 253

LDS_V = 131072
LDS_STG = 31 * 4096
Q_BYTES = 16 * 32 * 496 * 128 * 2
KV_BYTES = 16 * 8 * 512 * 128 * 2
CSCALE = (128 ** -0.5) * 1.4426950408889634
def f32bits(x): return struct.unpack("<I", struct.pack("<f", x))[0]

class Cfg:
    backlog = 3
    lds_lead = 7
    thr = 2.0 ** 30
    pkmul = True
    rot = 0
    init_min = 0
    pad_body = 0
    pad_b0 = 0
    q0_flags = ''
    q0dma = True
    horizon = 10 ** 9
    kb_lazy = False
    kb_slack = 40
    pf2 = 10
    st_jmajor = False
    kall = False
    k_ahead = 6
    k_issue = 2
    simple = False
    interleave = 2
    win_space = 9
    st_plan = [(n // 4, n % 4) for n in range(16)]
    q_plan = [(1, 4), (1, 5), (1, 6), (2, 4), (2, 5), (2, 6), (3, 4), (3, 5), (3, 6), (4, 0), (4, 2), (4, 4), (4, 6), (5, 0), (5, 2), (5, 4)]
    kb_off = 12
    touch_all = False
    touch_ahead = 8
    k_first = 4
    early0 = 2
    qcopy_span = 70
    kb_novalu = False
    t_flags = ''
    init_extra = [("t", 2), ("k", 4), ("k", 5)]
    early_list = [("t", 4), ("k", 6), ("k", 7), ("t", 6)]
    pf = 6
    code_bytes = 60000
    st_space = 14
    q_start = 5
    q_start0 = 3
    q_space0 = 40
    q_space = 24
    bar_gap = 11
    st_flags = ""
    q_flags = ""
    k_flags = ""
    v_flags = ""

def V(i): return f"v{i}"
def A(i): return f"a{i}"

def mfma(d, dpre, a, apre, b, bpre, c=None, rtag=None, wtag=None):
    dr = regs(dpre, d, 4)
    reads = regs(apre, a, 4) + regs(bpre, b, 4)
    if c is None:
        ctext = "0"; srcc = []
    else:
        ctext = rng(dpre, c, 4); srcc = regs(dpre, c, 4); reads += srcc
    return Op(f"v_mfma_f32_16x16x32_bf16 {rng(dpre, d, 4)}, {rng(apre, a, 4)}, {rng(bpre, b, 4)}, {ctext}", "mfma",
              reads, dr, rtag, wtag, srcc=srcc)

def valu(text, reads, writes, rtag=None, wtag=None, kind="valu"):
    return Op(text, kind, reads, writes, rtag, wtag)

def salu(text, reads=(), writes=()):
    return Op(text, "salu", reads, writes)

def ds_read(dst, n, vaddr, off, tagf, tr=False, extra_reads=(), lead=None):
    d = regs("a", dst, n)
    ins = "ds_read_b64_tr_b16" if tr else "ds_read_b128"
    return Op(f"{ins} {rng('a', dst, n)}, v{vaddr} offset:{off}", "lds", [V(vaddr)] + list(extra_reads),
              d + ["pend:" + r for r in d], None, {r: tagf for r in d}, lead=Cfg.lds_lead if lead is None else lead)

def wait(kind, loads, extra_covers=()):
    rs = []; ws = []
    for l in loads:
        for w in l.writes:
            if w.startswith("pend:"):
                rs.append(w); ws.append(w[5:])
    return Op("", kind, rs, ws, covers=list(loads) + list(extra_covers))

def k_reads(t, kvt):
    ops = []
    for s in range(4):
        off = t * 8192 + kvt * 4096 + s * 1024
        va = vK0
        if off >= 65536: off -= 65536; va = vK1
        ops.append(ds_read(KF_(kvt, s, t % 2), 4, va, off, ("K", None, None, t, kvt, s)))
    return ops

def kreg(t, kvt, s):
    return KF_(kvt, s, t % 2)

def v_reads(t, dt):
    slot = t % 4
    u, b = dt // 2, dt % 2
    ops = []
    for kvt in range(2):
        off = slot * 8192 + kvt * 4096 + 8 * b
        ops.append(ds_read(VF_(dt) + 2 * kvt, 2, vV[u], off, ("V", None, None, t, dt, kvt), tr=True,
                           extra_reads=[f"ps:vready{t // 2 % 2}"]))
    return ops

def qk_chain(n, kvt, j, first):
    t = n % 16; rp = n // 16
    l = []
    for s in range(4):
        q = X_(j * 4 + s) if n == 16 else Q_(j, s); kr = kreg(t, kvt, s)
        rt = {r: ("K", None, None, t, kvt, s) for r in regs("a", kr, 4)}
        rt.update({r: ("Q", None, rp, j, s) for r in regs("a", q, 4)})
        if s == 0:
            if first and kvt == 0: c = None
            else:
                c = NM_(j); rt.update({r: ("NM", None, rp, j) for r in regs("v", c, 4)})
        else:
            c = S_(kvt, j); rt.update({r: ("Sp", n, None, kvt, j, s - 1) for r in regs("v", c, 4)})
        wt = {r: (("Sp", n, None, kvt, j, s) if s < 3 else ("S", n, None, kvt, j, i))
              for i, r in enumerate(regs("v", S_(kvt, j), 4))}
        if s == 3 and first and kvt == 0:
            wt = {r: ("Sraw", n, None, kvt, j, i) for i, r in enumerate(regs("v", S_(kvt, j), 4))}
        l.append(mfma(S_(kvt, j), "v", kr, "a", q, "a", c, rt, wt))
    return l

def max_ops(n, j):
    rp = n // 16
    ops = []
    s = S_(0, j); t = TMP + 2 * j; u = TMP + 2 * j + 1
    raw = lambda i: {V(s + i): ("Sraw", n, None, 0, j, i)}
    rt = {}; [rt.update(raw(i)) for i in range(3)]
    ops.append(valu(f"v_max3_f32 v{t}, v{s}, v{s+1}, v{s+2}", [V(s), V(s+1), V(s+2)], [V(t)], rt))
    ops.append(valu(f"v_max_f32 v{t}, v{t}, v{s+3}", [V(t), V(s+3)], [V(t)], raw(3)))
    for sw in ("v_permlane16_swap_b32", "v_permlane32_swap_b32"):
        ops.append(valu(f"v_mov_b32 v{u}, v{t}", [V(t)], [V(u)]))
        ops.append(valu(f"{sw} v{t}, v{u}", [V(t), V(u)], [V(t), V(u)], kind="perm"))
        ops.append(valu(f"v_max_f32 v{t}, v{t}, v{u}", [V(t), V(u)], [V(t)]))
    for i in range(4):
        ops.append(valu(f"v_sub_f32 v{NM_(j)+i}, 0, v{t}", [V(t)], [V(NM_(j)+i)], None, {V(NM_(j)+i): ("NM", None, rp, j)}))
    for i in range(4):
        ops.append(valu(f"v_sub_f32 v{s+i}, v{s+i}, v{t}", [V(s+i), V(t)], [V(s+i)], raw(i), {V(s+i): ("S", n, None, 0, j, i)}))
    return ops

def sm_ops(n, kvt, j):
    ops = []
    s = S_(kvt, j); buf = n % 2
    t = n % 16
    for i in range(4):
        ops.append(valu(f"v_exp_f32 v{s+i}, v{s+i}", [V(s+i)], [V(s+i)], {V(s+i): ("S", n, None, kvt, j, i)},
                        {V(s+i): ("E", n, None, kvt, j, i)}, kind="trans"))
        et = {V(s+i): ("E", n, None, kvt, j, i)}
        if msum(j): pass
        elif t == 0:
            if kvt == 0 and i == 0: pass
            elif kvt == 0 and i == 1:
                ops.append(valu(f"v_add_f32 v{LS0_(j)}, v{s}, v{s+1}", [V(s), V(s+1)], [V(LS0_(j))], et))
            else:
                ops.append(valu(f"v_add_f32 v{LS0_(j)}, v{LS0_(j)}, v{s+i}", [V(LS0_(j)), V(s+i)], [V(LS0_(j))], et))
        elif t == 1 and kvt == 0 and i == 0:
            ops.append(valu(f"v_add_f32 v{LS1_(j)}, v{LS0_(j)}, v{s+i}", [V(LS0_(j)), V(s+i)], [V(LS1_(j))], et))
        else:
            ops.append(valu(f"v_add_f32 v{LS1_(j)}, v{LS1_(j)}, v{s+i}", [V(LS1_(j)), V(s+i)], [V(LS1_(j))], et))
        if i % 2 == 1:
            pr = P_(buf, j) + 2 * kvt + i // 2
            rt = {V(s+i-1): ("E", n, None, kvt, j, i-1), V(s+i): ("E", n, None, kvt, j, i)}
            ops.append(valu(f"v_cvt_pk_bf16_f32 v{pr}, v{s+i-1}, v{s+i}", [V(s+i-1), V(s+i)], [V(pr)], rt,
                            {V(pr): ("P", n, None, j, 2 * kvt + i // 2)}))
    return ops

def pv_ops(n, dt):
    t = n % 16; buf = n % 2
    l = []
    for j in range(4):
        rt = {}
        for kvt in range(2):
            rt.update({r: ("V", None, None, t, dt, kvt) for r in regs("a", VF_(dt) + 2 * kvt, 2)})
        rt.update({r: ("P", n, None, j, i) for i, r in enumerate(regs("v", P_(buf, j), 4))})
        if t == 0: c = None
        else:
            c = O_(dt, j); rt.update({r: ("O", n - 1, None, dt, j) for r in regs("v", c, 4)})
        wt = {r: ("O", n, None, dt, j) for r in regs("v", O_(dt, j), 4)}
        l.append(mfma(O_(dt, j), "v", VF_(dt), "a", P_(buf, j), "v", c, rt, wt))
    return l

def sum_ops(n):
    t = n % 16; buf = n % 2
    l = []
    for j in range(4):
        if not msum(j): continue
        rt = {r: ("P", n, None, j, i) for i, r in enumerate(regs("v", P_(buf, j), 4))}
        c = None if t == 0 else L_(j)
        l.append(mfma(L_(j), "a", ONES, "a", P_(buf, j), "v", c, rt, None))
    return l

def q_raw_loads(rp, direct=False):
    ops = []
    for j in range(4):
        for s in range(4):
            d = Q_(j, s) if direct else X_(j * 4 + s)
            dr = regs("a", d, 4)
            ops.append(Op(f"buffer_load_dwordx4 {rng('a', d, 4)}, v{vQO}, s[{sSRD_Q}:{sSRD_Q+3}], s{sQ[j]} offen offset:{64*s}{Cfg.q_flags}",
                          "vld", [V(vQO), f"s{sQ[j]}"], dr + ["pend:" + r for r in dr], None,
                          {r: ("Q", None, rp, j, s) for r in dr}))
    return ops

sQM = 87
def q0_dma_ops():
    ops = []; d = []
    for j in range(4):
        for s in range(4):
            n = j * 4 + s
            ops.append(salu(f"s_add_u32 m0, s{sQM}, {n * 1024}", [], ["m0"]))
            ops.append(salu(f"s_add_u32 s{sKO}, s{sQ[j]}, {64 * s}", [f"s{sQ[j]}"], [f"s{sKO}"]))
            o = Op(f"buffer_load_dwordx4 v{vQL}, s[{sSRD_Q}:{sSRD_Q+3}], s{sKO} offen{Cfg.q0_flags} lds", "dma",
                   [V(vQL), f"s{sKO}", "m0"], [f"pend:ps:q0raw{n}"])
            ops.append(o); d.append(o)
    return ops, d

def q0_reads():
    ops = []
    for j in range(4):
        for s in range(4):
            n = j * 4 + s
            ops.append(ds_read(Q_(j, s), 4, vPF2, n * 1024, ("Q", None, 0, j, s), extra_reads=[f"ps:q0raw{n}"], lead=2))
    return ops

def q_copy(rp, j, s):
    ops = []
    for i in range(4):
        x = X_(j * 4 + s) + i; q = Q_(j, s) + i
        ops.append(valu(f"v_accvgpr_mov_b32 a{q}, a{x}", [A(x)], [A(q)], {A(x): ("Q", None, rp, j, s)}, {A(q): ("Q", None, rp, j, s)}))
    return ops

def dma_ops(t):
    slot = t % 4
    so = sVO if t % 2 == 0 else sVO2
    ops = [salu(f"s_add_u32 m0, s{sM0B}, {slot * 8192}", [f"s{sM0B}"], ["m0"]),
           salu(f"s_add_u32 s{so}, s{sVB if t < 16 - Cfg.rot else sVBH}, {t * 8192}", [f"s{sVB}"], [f"s{so}"])]
    for h in range(2):
        ops.append(Op(f"buffer_load_dwordx4 v{vDMA}, s[{sSRD_V}:{sSRD_V+3}], s{so} offen offset:{1024*h}{Cfg.v_flags} lds", "dma",
                      [V(vDMA), f"s{so}", "m0", f"ps:vfree{t // 2 % 2}"], [f"ps:vdst{t%4}_{h}"]))
    return ops

def epilogue_ops(n):
    ops = []
    for j in range(4):
        t = TMP + 8 + 2 * j; u = TMP + 8 + 2 * j + 1
        if msum(j):
            ops.append(valu(f"v_accvgpr_read_b32 v{t}, a{L_(j)}", [A(L_(j))], [V(t)]))
        else:
            ops.append(valu(f"v_mov_b32 v{t}, v{LS1_(j)}", [V(LS1_(j))], [V(t)]))
        for sw in ("v_permlane16_swap_b32", "v_permlane32_swap_b32"):
            if msum(j): break
            ops.append(valu(f"v_mov_b32 v{u}, v{t}", [V(t)], [V(u)]))
            ops.append(valu(f"{sw} v{t}, v{u}", [V(t), V(u)], [V(t), V(u)], kind="perm"))
            ops.append(valu(f"v_add_f32 v{t}, v{t}, v{u}", [V(t), V(u)], [V(t)]))
        ops.append(valu(f"v_rcp_f32 v{vRC[j]}, v{t}", [V(t)], [V(vRC[j])], kind="trans"))
        ops.append(valu(f"v_cmp_nle_f32 vcc, v{t}, v{vTHR}", [V(t), V(vTHR)], ["vcc"]))
        ops.append(salu(f"s_or_b64 s[{sFLAG}:{sFLAG+1}], s[{sFLAG}:{sFLAG+1}], vcc", ["vcc", f"s{sFLAG}"], [f"s{sFLAG}"]))
    cnt = 0
    for u in range(4):
        for j in range(4):
            tb = TMP + 16 + 4 * (cnt % 2); cnt += 1
            for b in range(2):
                o = O_(2 * u + b, j)
                if Cfg.pkmul:
                    for i in (0, 2):
                        pb = 248 + (j & ~1); sel = j & 1
                        op = valu(f"v_pk_mul_f32 v[{o+i}:{o+i+1}], v[{o+i}:{o+i+1}], v[{pb}:{pb+1}] op_sel:[0,{sel}] op_sel_hi:[1,{sel}]",
                                  [V(o+i), V(o+i+1), V(vRC[j])], [V(o+i), V(o+i+1)],
                                  {V(o+i): ("O", n, None, 2 * u + b, j), V(o+i+1): ("O", n, None, 2 * u + b, j)})
                        op.reads.append("ps:nomfma")
                        ops.append(op)
                else:
                    for i in range(4):
                        ops.append(valu(f"v_mul_f32 v{o+i}, v{o+i}, v{vRC[j]}", [V(o+i), V(vRC[j])], [V(o+i)],
                                        {V(o+i): ("O", n, None, 2 * u + b, j)}))
                for h in range(2):
                    ops.append(valu(f"v_cvt_pk_bf16_f32 v{tb+2*b+h}, v{o+2*h}, v{o+2*h+1}", [V(o+2*h), V(o+2*h+1)], [V(tb+2*b+h)]))
            x = X_(u * 4 + j)
            for i in range(4):
                ops.append(valu(f"v_accvgpr_write_b32 a{x+i}, v{tb+i}", [V(tb+i)], [A(x+i)], None, {A(x+i): ("OX", n, None, u, j)}))
    return ops

def parked_stores(n):
    ops = []
    order = [(u, j) for u in range(4) for j in range(4)] if not Cfg.st_jmajor else [(u, j) for j in range(4) for u in range(4)]
    for (u, j) in order:
        if True:
            x = X_(u * 4 + j); xr = regs("a", x, 4)
            ops.append(Op(f"buffer_store_dwordx4 {rng('a', x, 4)}, v{vQO}, s[{sSRD_O}:{sSRD_O+3}], s{sOP[j]} offen offset:{64*u}{Cfg.st_flags}",
                          "vst", xr + [V(vQO), f"s{sOP[j]}"], [], {r: ("OX", n, None, u, j) for r in xr}))
    return ops

def k_dma_ops(t):
    ops = []
    for h in range(2):
        ops.append(salu(f"s_add_u32 m0, s{sKM}, {t * 8192 + h * 1024}", [f"s{sKM}"], ["m0"]))
        ops.append(salu(f"s_add_u32 s{sKO}, s{sKL if t < 16 - Cfg.rot else sKH}, {t * 8192 + h * 64}", [], [f"s{sKO}"]))
        ops.append(Op(f"buffer_load_dwordx4 v{vQL}, s[{sSRD_K}:{sSRD_K+3}], s{sKO} offen{Cfg.k_flags} lds", "dma",
                      [V(vQL), f"s{sKO}", "m0"], [f"pend:ps:kraw{t}_{h}"]))
    return ops

def k_build_ops(t, idx):
    ops = []
    for h in range(2):
        base = TMP + 12 * ((2 * idx + h) % 2)
        off = t * 8192 + h * 1024
        va = vKW[0]
        if off >= 65536: off -= 65536; va = vKW[1]
        d = regs("v", base, 4)
        rd = Op(f"ds_read_b128 {rng('v', base, 4)}, v{va} offset:{off}", "lds", [V(va), f"ps:kraw{t}_{h}"],
                d + ["pend:" + r for r in d], lead=Cfg.lds_lead)
        ops.append(rd); ops.append(wait("waitl", [rd]))
        for i in range(4):
            if Cfg.kb_novalu and t >= 4: break
            r = base + i; a, b = base + 4 + 2 * i, base + 5 + 2 * i
            ops.append(valu(f"v_lshlrev_b32 v{a}, 16, v{r}", [V(r)], [V(a)]))
            ops.append(valu(f"v_and_b32 v{b}, 0xffff0000, v{r}", [V(r)], [V(b)]))
            ops.append(valu(f"v_mul_f32 v{a}, s{sC}, v{a}", [V(a)], [V(a)]))
            ops.append(valu(f"v_mul_f32 v{b}, s{sC}, v{b}", [V(b)], [V(b)]))
            ops.append(valu(f"v_cvt_pk_bf16_f32 v{r}, v{a}, v{b}", [V(a), V(b)], [V(r)]))
        ops.append(Op(f"ds_write_b128 v{va}, {rng('v', base, 4)} offset:{off}", "ldsw", [V(va)] + d, [f"ps:kw{t}_{h}", f"pend:ps:kws{t}_{h}"]))
    return ops

sTL, sTH, sTO = 75, 76, 77
def touch_ops(t):
    return [salu(f"s_add_u32 s{sTO}, s{sTL if t < 16 - Cfg.rot else sTH}, {t * 8192}", [], [f"s{sTO}"]),
            Op(f"buffer_load_dword a255, v{vTCH}, s[{sSRD_V}:{sSRD_V+3}], s{sTO} offen{Cfg.t_flags}", "vld",
               [V(vTCH), f"s{sTO}"], [A(255)])]

def next_offsets_ops():
    ops = []
    for j in range(4):
        ops.append(salu(f"s_mov_b32 s{sOP[j]}, s{sO[j]}", [f"s{sO[j]}"], [f"s{sOP[j]}"]))
        ops.append(salu(f"s_mov_b32 s{sO[j]}, s{sQ[j]}", [f"s{sQ[j]}"], [f"s{sO[j]}"]))
    ops.append(salu(f"s_add_u32 s{sROW}, s{sROW}, 256", [f"s{sROW}"], [f"s{sROW}", "scc"]))
    for j in range(4):
        o = Op(f"s_add_u32 s{sT0}, s{sROW}, {16*j}\n    s_lshl_b32 s{sT1}, s{sT0}, 8\n    s_add_u32 s{sT1}, s{sT1}, s{sQB}\n"
               f"    s_cmp_lt_u32 s{sT0}, 992\n    s_cselect_b32 s{sQ[j]}, s{sT1}, s{sOOB}", "salu",
               [f"s{sROW}", f"s{sQB}"], [f"s{sQ[j]}", f"s{sT0}", f"s{sT1}", "scc"])
        ops.append(o)
    return ops

def qk_seq(n, first):
    ops = []
    if first:
        for j in range(4): ops += qk_chain(n, 0, j, True)
        for j in range(4): ops += max_ops(n, j)
        for j in range(4): ops += qk_chain(n, 1, j, True)
    else:
        for j in range(4):
            for kvt in range(2): ops += qk_chain(n, kvt, j, False)
    return ops

G = lambda i, k: (64 + XS[0]) * i + k + GOFF[0]
GOFF = [0]

def init_issue_ops():
    ops = []; info = {"kd": {}, "vd": {}}
    def kd(t):
        d = k_dma_ops(t); ops.extend(d); info["kd"][t] = [o for o in d if o.kind == "dma"]
    for t in range(Cfg.k_first): kd(t)
    if Cfg.q0dma:
        qo, q = q0_dma_ops(); ops.extend(qo); info["q"] = q
    else:
        q = q_raw_loads(0, direct=True); ops.extend(q); info["q"] = q
    late = []
    n0 = len(ops)
    for t in range(Cfg.k_first, 4): kd(t)
    for t in (0, 1):
        d = dma_ops(t); ops.extend(d); info["vd"][t] = [o for o in d if o.kind == "dma"]
    for grp in Cfg.init_extra:
        if grp[0] == "t": ops.extend(touch_ops(grp[1]))
        else: kd(grp[1])
    if Cfg.init_min:
        info["late"] = ops[n0:]; ops = ops[:n0]
    else:
        info["late"] = []
    return ops, info

def build_simple_prologue():
    ops = []; kd = {}
    prev = [None]
    def chain(d):
        for o in d:
            if prev[0] is not None: o.deps.append((prev[0], 0, 0))
            prev[0] = o
        ops.extend(d)
    def issue_k(t):
        d = k_dma_ops(t); chain(d); kd[t] = [o for o in d if o.kind == "dma"]
    AHEAD = Cfg.k_ahead
    for t in range(min(AHEAD, 16)): issue_k(t)
    later = []
    for t in range(AHEAD, 16): later.append(("k", t))
    q = q_raw_loads(0, direct=True)
    for n in range(0, 16, 2): later.append(("q", q[n:n + 2]))
    vd = []
    for t in (0, 1): later.append(("v", t))
    def issue_next(n):
        for _ in range(n):
            if not later: return
            k, a = later.pop(0)
            if k == "k": issue_k(a)
            elif k == "q": chain(a)
            elif k == "v":
                d = dma_ops(a); chain(d); vd.extend([o for o in d if o.kind == "dma"])
            else: chain(touch_ops(a))
    wr_all = []
    for t in range(16):
        w = wait("waitv", kd[t]); chain([w])
        kb = k_build_ops(t, t); chain(kb)
        wr_all += [o for o in kb if o.kind == "ldsw"]
        issue_next(Cfg.k_issue)
    issue_next(100)
    chain([wait("waitl", wr_all)])
    chain([Op("s_barrier", "bar", [f"ps:kws{t}_{h}" for t in range(16) for h in (0, 1)], ["ps:kready0"])])
    kr = k_reads(0, 0) + k_reads(0, 1)
    for o in kr: o.reads.append("ps:kready0")
    ops += kr
    ops.append(wait("waitl", kr[:4])); ops.append(wait("waitl", kr[4:]))
    for j in range(4): ops.append(wait("waitv", q[4 * j:4 * j + 4]))
    ops += qk_seq(0, True)
    x = 0
    for t in range(2, 16, 2):
        for o in touch_ops(t):
            o.minGap = 1 + 2 * x; o.cap = o.minGap; x += 1
            ops.append(o)
    kr = k_reads(1, 0) + k_reads(1, 1)
    for o in kr: o.reads.append("ps:kready0")
    ops += kr
    for j in range(4):
        for kvt in range(2): ops += sm_ops(0, kvt, j)
    ops.append(wait("waitl", kr[:4])); ops.append(wait("waitl", kr[4:]))
    return ops, vd

def build_body(pass0, info):
    ops = []
    dmas = {}
    kd = {}
    GOFF[0] = 0
    if pass0:
        kd = dict(info["kd"])
        GOFF[0] = 32
        pre = list(range(Cfg.k_first))
        wr_all = []
        for t in pre:
            w = wait("waitv", kd[t]); ops.append(w)
            kb = k_build_ops(t, t); ops += kb
            wr_all += [o for o in kb if o.kind == "ldsw"]
        ops.append(wait("waitl", wr_all))
        barA = Op("s_barrier", "bar", [f"ps:kws{t}_{h}" for t in pre for h in (0, 1)], ["ps:kready0"] + (["ps:kready1"] if 1 in pre else []))
        kr = k_reads(0, 0) + k_reads(0, 1)
        if info["late"]:
            prev = wr_all[-1] if Cfg.init_min == 1 else barA
            if Cfg.init_min == 2: ops.append(barA)
            for o in info["late"]:
                o.deps.append((prev, 0, 0)); prev = o
            ops += info["late"]
            if Cfg.init_min == 1:
                barA.deps.append((prev, 0, 0)); ops.append(barA)
            else:
                for o in kr: o.deps.append((prev, 0, 0))
        else:
            ops.append(barA)
        for o in kr: o.reads.append("ps:kready0")
        ops += kr
        ops.append(wait("waitl", kr[:4])); ops.append(wait("waitl", kr[4:]))
        q0r = q0_reads() if Cfg.q0dma else None
        for j in range(4):
            ops.append(wait("waitv", info["q"][4 * j:4 * j + 4]))
            if Cfg.q0dma:
                ops += q0r[4 * j:4 * j + 4]
                wl = wait("waitl", q0r[4 * j:4 * j + 4])
                if j == 3: wl.writes.append("ps:q0done")
                ops.append(wl)
        ops += qk_seq(0, True)
        x = 0
        for grp in Cfg.early_list:
            d = touch_ops(grp[1]) if grp[0] == "t" else k_dma_ops(grp[1])
            for o in d:
                o.minGap = Cfg.early0 + x; o.cap = o.minGap; x += 1
            ops += d
            if grp[0] == "k": kd[grp[1]] = [o for o in d if o.kind == "dma"]
        if 1 not in pre:
            w = wait("waitv", kd[1]); w.cap = 0; ops.append(w)
            kb = k_build_ops(1, 1)
            for x, o in enumerate(kb): o.cap = 1 + x // 3
            ops += kb
            ops.append(wait("waitl", [o for o in kb if o.kind == "ldsw"]))
            barB = Op("s_barrier", "bar", [f"ps:kws1_{h}" for h in (0, 1)], ["ps:kready1"])
            barB.cap = 20
            ops.append(barB)
        kr = k_reads(1, 0) + k_reads(1, 1)
        for o in kr: o.reads.append("ps:kready1")
        ops += kr
        for j in range(4):
            for kvt in range(2): ops += sm_ops(0, kvt, j)
        ops.append(wait("waitl", kr[:4])); ops.append(wait("waitl", kr[4:]))
        dmas[0] = info["vd"][0]; dmas[1] = info["vd"][1]
    else:
        ps = parked_stores(-1)
        for x, o in enumerate(ps):
            if Cfg.interleave == 2:
                e, k = Cfg.st_plan[x]
                o.minGap = G(2 * e, Cfg.bar_gap + 12) + k * Cfg.win_space
            else:
                o.minGap = 2 + Cfg.st_space * x
            o.cap = o.minGap + 4
        ops += ps
    qraw = None
    for i in range(16):
        n = i + 1
        first = (n == 16)
        if first:
            for j in range(4):
                wq = wait("waitv", qraw[4 * j:4 * j + 4]); wq.cap = G(14, 4 + 8 * j); ops.append(wq)
        ops += qk_seq(n, first)
        if first:
            x = 0
            for j in range(4):
                for s_ in range(4):
                    for o in q_copy(1, j, s_):
                        o.cap = G(14, 10 + 8 * j) + ((x % 16) * Cfg.qcopy_span) // 16; x += 1
                        ops.append(o)
        extra_bar_reads = []
        if pass0 and i % 2 == 0 and i <= 12 and not (i == 0 and Cfg.k_first == 4):
            w = wait("waitv", kd[i + 2] + kd[i + 3]); ops.append(w)
            W_ = 64 + XS[0]
            if i > 2 or (i == 2):
                w.cap = G(i - 2, Cfg.bar_gap + Cfg.kb_off); w.minGap = w.cap
                span = 2 * W_ - Cfg.kb_off - 8
            else:
                w.cap = 0; span = 30
            kb = k_build_ops(i + 2, 0) + k_build_ops(i + 3, 1)
            for x, o in enumerate(kb):
                if Cfg.kb_lazy and i >= 2:
                    o.cap = w.cap + 2 + Cfg.kb_slack + (x * (span - Cfg.kb_slack)) // len(kb)
                else:
                    o.cap = w.cap + 2 + (x * span) // len(kb)
                    o.minGap = o.cap - 2
            ops += kb
            wr = [o for o in kb if o.kind == "ldsw"]
            ops.append(wait("waitl", wr))
            extra_bar_reads = [f"ps:kws{t}_{h}" for t in (i + 2, i + 3) for h in (0, 1)]
        if i % 2 == 0:
            cov = []
            for t in (i, i + 1):
                if t in dmas: cov += dmas[t]
            wv = Op("", "waitv", [], [f"ps:vw{i}"], covers=cov)
            wv.name = f"vw{i}"
            if i > 0:
                for c in cov: wv.deps.append((c, 0, 0))
            wv.cap = G(i, Cfg.bar_gap - 1)
            ops.append(wv)
            wr = [f"ps:vready{i // 2 % 2}", f"ps:vfree{(i // 2 + 1) % 2}", f"ps:kbar{i}"]
            bar = Op("s_barrier", "bar", [f"ps:vw{i}", "ps:vused"] + extra_bar_reads + (["ps:q0done"] if (pass0 and i == 0 and Cfg.q0dma) else []), wr)
            bar.cap = G(i, Cfg.bar_gap); bar.minGap = G(i, Cfg.bar_gap - 2)
            ops.append(bar)
            x = 0
            for t in (i + 2, i + 3):
                d = dma_ops(t % 16)
                for o in d:
                    o.cap = G(i, Cfg.bar_gap + 2 + 2 * x); x += 1
                ops += d
                dmas[t] = [o for o in d if o.kind == "dma"]
            if i == 14: late = dmas[16] + dmas[17]
            if not pass0 and Cfg.touch_all:
                d = touch_ops((i + Cfg.touch_ahead) % 16)
                for o in d:
                    o.cap = G(i, Cfg.bar_gap + 2 + 2 * x); x += 1
                    o.reads.append(f"ps:kbar{i}")
                ops += d
            if pass0:
                if i + 8 < 16 and not Cfg.kall:
                    for t in (i + 8, i + 9):
                        d = k_dma_ops(t)
                        for o in d:
                            o.cap = G(i, Cfg.bar_gap + 2 + 2 * x); x += 1
                            if o.kind == "dma": o.reads.append(f"ps:kbar{i}")
                        ops += d; kd[t] = [o for o in d if o.kind == "dma"]
                if i + 8 < 16 or Cfg.touch_all:
                    d = touch_ops((i + 8) % 16)
                    for o in d:
                        o.cap = G(i, Cfg.bar_gap + 2 + 2 * x); x += 1
                        o.reads.append(f"ps:kbar{i}")
                    ops += d
        if pass0 and Cfg.pf and Cfg.pf2 and i == Cfg.pf2:
            for h in range(2):
                o = Op(f"global_load_dword a254, v{vPF}, s[80:81] offset:{64*h}", "vld", [V(vPF)], [A(254)])
                o.minGap = G(i, Cfg.bar_gap + 24 + 4 * h); o.cap = o.minGap + 2
                ops.append(o)
        kr = k_reads((n + 1) % 16, 0) + k_reads((n + 1) % 16, 1)
        if pass0 and n + 1 < 16:
            tb = n + 1
            bi = (tb - 2) // 2 * 2
            for o in kr: o.reads.append(f"ps:kbar{bi}")
        ops += kr
        for j in range(4):
            for kvt in range(2):
                ops += sm_ops(n, kvt, j)
        ops += sum_ops(i)
        for dt in range(8):
            vr = v_reads(i, dt)
            ops += vr
            w = wait("waitl", vr)
            if dt == 7: w.writes.append("ps:vused")
            ops.append(w)
            pv = pv_ops(i, dt)
            if i == 15 and dt == 7: pv[-1].writes.append("ps:nomfma")
            ops += pv
        if kr:
            ops.append(wait("waitl", kr[:4]))
            if len(kr) > 4: ops.append(wait("waitl", kr[4:]))
        if i == 4:
            qraw = q_raw_loads(1)
            for x, o in enumerate(qraw):
                if Cfg.interleave == 2:
                    e, k = Cfg.q_plan[x]
                    o.minGap = G(2 * e, Cfg.bar_gap + 12) + k * Cfg.win_space
                elif pass0: o.minGap = G(Cfg.q_start0, 0) + Cfg.q_space0 * x
                elif Cfg.interleave: o.minGap = 2 + Cfg.st_space * x + Cfg.st_space // 2
                else: o.minGap = G(Cfg.q_start, 0) + Cfg.q_space * x
                o.cap = o.minGap + 4
            ops += qraw
    ops += epilogue_ops(15)
    ops += next_offsets_ops()
    return ops, late

ABL = set()
def emit(ops):
    lines = []
    for o in ops:
        t = optext(o)
        if t is None: continue
        if o.kind in ABL: continue
        lines.append("    " + t)
    return "\n".join(lines) + "\n"

T0, T1, T2, T3 = TMP + 8, TMP + 9, TMP + 10, TMP + 11
def fswz(dst, src, tmp):
    return f"    v_lshlrev_b32 v{tmp}, 1, v{src}\n    v_lshrrev_b32 v{dst}, v{tmp}, v{vTHR}\n    v_and_b32 v{dst}, 3, v{dst}\n"

def emit_fix(ops):
    lines = []
    for i, o in enumerate(ops):
        if o.kind == "dma" and i > 0 and "m0" in ops[i - 1].writes: lines.append("    s_nop 0")
        lines.append("    " + o.text)
    return "\n".join(lines) + "\n" if lines else ""

def prologue_text():
    c = f32bits(CSCALE)
    s = f"""
    s_cmp_ge_u32 s2, 256
    s_cbranch_scc1 L_end
    s_load_dwordx4 s[4:7], s[0:1], 0
    s_load_dwordx4 s[8:11], s[0:1], 16
PREFETCH
    v_and_b32 v{T0}, 63, v0                     ; lane
    v_lshrrev_b32 v{T1}, 6, v0                  ; wave
    v_mov_b32 v{vTHR}, 0x78                     ; lookup for f = (0,2,3,1)
    v_readfirstlane_b32 s{sW}, v{T1}
    ; i = lane%16, g = lane/16
    v_and_b32 v{T1}, 15, v{T0}
    v_lshrrev_b32 v{T2}, 4, v{T0}
    v_lshlrev_b32 v{vQO}, 8, v{T1}
    v_lshl_add_u32 v{vQO}, v{T2}, 4, v{vQO}     ; vQO = i*256 + g*16
    ; vK0 = (4i + (g ^ f(i>>2)))*16
    v_lshrrev_b32 v{T3}, 2, v{T1}
""" + fswz(T3, T3, TMP) + f"""
    v_xor_b32 v{T3}, v{T3}, v{T2}
    v_lshl_add_u32 v{T3}, v{T1}, 2, v{T3}
    v_lshlrev_b32 v{vK0}, 4, v{T3}
    v_add_u32 v{vK1}, 0x10000, v{vK0}
    ; vDMA = g*256 + ((i) ^ (g<<2))*16
    v_lshlrev_b32 v{T3}, 2, v{T2}
    v_xor_b32 v{T3}, v{T3}, v{T1}
    v_lshlrev_b32 v{T3}, 4, v{T3}
    v_lshl_add_u32 v{vDMA}, v{T2}, 8, v{T3}
    ; vQL: i' = lane>>2, x = lane&3 : i'*256 + ((x ^ f(i'>>2))<<4)
    v_lshrrev_b32 v{T1}, 4, v{T0}               ; i'>>2 = lane>>4
""" + fswz(T1, T1, TMP) + f"""
    v_and_b32 v{T3}, 3, v{T0}
    v_xor_b32 v{T1}, v{T1}, v{T3}
    v_lshlrev_b32 v{T1}, 4, v{T1}
    v_lshrrev_b32 v{T3}, 2, v{T0}
    v_lshl_add_u32 v{vQL}, v{T3}, 8, v{T1}
    ; V tr-read addresses: g=lane>>4, r=(lane>>2)&3, c=lane&3 : LDS_V + (4g+r)*256 + ((u^r)<<6) + 16c
    v_bfe_u32 v{T1}, v{T0}, 2, 2                ; r
    v_and_b32 v{T3}, 3, v{T0}                   ; c
    v_lshl_add_u32 v{T2}, v{T2}, 2, v{T1}       ; 4g+r
    v_lshlrev_b32 v{T2}, 8, v{T2}
    v_lshl_add_u32 v{T2}, v{T3}, 4, v{T2}
    v_add_u32 v{T2}, {LDS_V}, v{T2}
"""
    for u in range(4):
        s += f"    v_xor_b32 v{T3}, {u}, v{T1}\n    v_lshl_add_u32 v{vV[u]}, v{T3}, 6, v{T2}\n"
    s += f"""
    v_lshlrev_b32 v{vTCH}, 7, v{T0}             ; lane*128
    v_lshlrev_b32 v{T0}, 4, v{T0}               ; lane*16
    ; workgroup -> (group, half)
    s_and_b32 s{sT0}, s2, 7
    s_lshr_b32 s{sT1}, s2, 3
    s_lshl_b32 s{sT0}, s{sT0}, 4
    s_lshr_b32 s52, s{sT1}, 1
    s_add_u32 s{sT0}, s{sT0}, s52              ; group
    s_and_b32 s{sT1}, s{sT1}, 1                ; half
    s_lshl_b32 s{sKB}, s{sT0}, 17              ; group * 131072
    s_mul_i32 s{sQB}, s{sT0}, {1984 * 256}
    s_mul_i32 s52, s{sT1}, {992 * 256}
    s_add_u32 s{sQB}, s{sQB}, s52
    s_mul_i32 s53, s{sT1}, {Cfg.rot * 8192}      ; rotation
    s_mul_i32 s83, s{sT1}, {131072 - Cfg.rot * 8192}
    s_mov_b32 s84, s{sT1}                       ; half
    s_lshl_b32 s{sT0}, s{sW}, 11               ; w*2048
    s_add_u32 s{sVB}, s{sKB}, s{sT0}
    s_sub_u32 s{sVBH}, s{sVB}, s83
    s_add_u32 s{sVB}, s{sVB}, s53
    s_add_u32 s{sM0B}, s{sT0}, {LDS_V}
    s_mov_b32 s{sC}, {c:#x}
    s_mov_b32 s{sOOB}, 0x80000000
    s_mov_b64 s[{sFLAG}:{sFLAG+1}], 0
    s_mov_b32 s{sPASS}, 0
    s_lshl_b32 s{sROW}, s{sW}, 6
"""
    for j in range(4):
        s += f"    s_add_u32 s{sT0}, s{sROW}, {16*j}\n    s_lshl_b32 s{sT0}, s{sT0}, 8\n    s_add_u32 s{sQ[j]}, s{sT0}, s{sQB}\n    s_mov_b32 s{sO[j]}, s{sOOB}\n"
    s += f"""    s_lshr_b32 s{sT0}, s{sW}, 1
    s_lshl_b32 s{sT0}, s{sT0}, 13
    s_and_b32 s{sT1}, s{sW}, 1
    s_lshl_b32 s{sT1}, s{sT1}, 6
    s_add_u32 s{sT0}, s{sT0}, s{sT1}
    s_add_u32 s{sTL}, s{sT0}, s{sKB}
    s_sub_u32 s{sTH}, s{sTL}, s83
    s_add_u32 s{sTL}, s{sTL}, s53
"""
    s += f"""
    s_lshr_b32 s{sT0}, s{sW}, 1
    s_lshl_b32 s{sT0}, s{sT0}, 12
    s_and_b32 s{sT1}, s{sW}, 1
    s_lshl_b32 s52, s{sT1}, 7
    s_add_u32 s{sKL}, s{sKB}, s{sT0}
    s_add_u32 s{sKL}, s{sKL}, s52
    s_sub_u32 s{sKH}, s{sKL}, s83
    s_add_u32 s{sKL}, s{sKL}, s53
    s_lshl_b32 s{sT1}, s{sT1}, 11
    s_add_u32 s{sKM}, s{sT0}, s{sT1}
    v_add_u32 v{vKW[0]}, s{sKM}, v{T0}
    v_add_u32 v{vKW[1]}, 0x10000, v{vKW[0]}
    s_lshl_b32 s{sQM}, s{sW}, 14
    s_add_u32 s{sQM}, s{sQM}, 0x10000
    v_add_u32 v{vPF2}, s{sQM}, v{vK0}
    v_mov_b32 v{vTHR}, 0x3f803f80
    v_accvgpr_write_b32 a{ONES}, v{vTHR}
    v_accvgpr_write_b32 a{ONES+1}, v{vTHR}
    v_accvgpr_write_b32 a{ONES+2}, v{vTHR}
    v_accvgpr_write_b32 a{ONES+3}, v{vTHR}
    v_mov_b32 v{vTHR}, {f32bits(Cfg.thr):#x}
    s_waitcnt lgkmcnt(0)
"""
    for (srd, lo, size) in ((sSRD_Q, 4, Q_BYTES), (sSRD_K, 6, KV_BYTES), (sSRD_V, 8, KV_BYTES), (sSRD_O, 10, Q_BYTES)):
        s += f"    s_mov_b32 s{srd}, s{lo}\n    s_and_b32 s{srd+1}, s{lo+1}, 0xffff\n    s_mov_b32 s{srd+2}, {size}\n    s_mov_b32 s{srd+3}, 0x00020000\n"
    return s

LET = dict(valu="a", trans="E", perm="p", lds="L", vld="G", vst="Z", dma="D", salu="s", waitl="w", waitv="W", bar="B", nop="n", ldsw="l")
def show(ops):
    gaps = []; cur = None
    for o in ops:
        if o.kind == "mfma":
            cur = []; gaps.append(cur)
        elif o.kind != "phantom" and cur is not None:
            cur.append(LET[o.kind])
    tot = 0
    W = 64 + XS[0]
    for i in range(0, len(gaps), W):
        row = gaps[i:i + W]
        c = 0
        for g in row:
            v = sum(8 if x == "E" else 4 for x in g if x in "aEp")
            nm = [x for x in g if x not in "aEp"]
            mem = [x for x in nm if x in "LGZDl"]
            cost = 4 + max(4, 4 * len(nm) + (4 if mem else 0) - (4 if (mem and v == 0) else 0)) + v
            c += max(16.5, cost)
        tot += c
        print(f"it{i//W:2d} est {c:6.0f}: " + " ".join("".join(g) if g else "-" for g in row))
    print("est total", tot)

vST0, vST1 = 250, 251
def stamp_setup():
    return f"""    s_load_dwordx2 s[54:55], s[0:1], 40
    s_waitcnt lgkmcnt(0)
    s_mov_b32 s56, s54
    s_and_b32 s57, s55, 0xffff
    s_mov_b32 s58, 0x10000000
    s_mov_b32 s59, 0x00020000
    s_lshl_b32 s60, s2, 2
    s_add_u32 s60, s60, s{sW}
    s_lshl_b32 s60, s60, 8
"""
def stamp(i, dyn=False):
    t = f"""    s_memrealtime s[62:63]
    s_memtime s[64:65]
    s_waitcnt lgkmcnt(0)
    v_mov_b32 v250, s62
"""
    so = "s60"
    if dyn:
        t += f"    s_lshl_b32 s61, s{sPASS}, 2\n    s_add_u32 s61, s61, s60\n"; so = "s61"
    t += f"    buffer_store_dword v250, off, s[56:59], {so} offset:{4*i}\n    s_nop 3\n    v_mov_b32 v250, s64\n    buffer_store_dword v250, off, s[56:59], {so} offset:{4*i+128}\n"
    return t

def slow_path_text():
    t = []
    A_ = t.append
    vKa, vVa, vMx = TMP, TMP + 1, TMP + 2
    vL = TMP + 6
    vU = TMP + 10
    sT, sP, sSo, sVs = 78, 79, 85, 86
    A_("L_slow:")
    A_("    s_waitcnt vmcnt(0) lgkmcnt(0)")
    A_(f"    v_mbcnt_lo_u32_b32 v{vU}, -1, 0")
    A_(f"    v_mbcnt_hi_u32_b32 v{vU}, -1, v{vU}")
    A_(f"    v_lshrrev_b32 v{vVa}, 4, v{vU}")
    A_(f"    v_lshlrev_b32 v{vVa}, 10, v{vVa}")
    A_(f"    v_bfe_u32 v{vU+1}, v{vU}, 2, 2")
    A_(f"    v_lshl_add_u32 v{vVa}, v{vU+1}, 4, v{vVa}")
    A_(f"    v_and_b32 v{vU+1}, 3, v{vU}")
    A_(f"    v_lshl_add_u32 v{vVa}, v{vU+1}, 1, v{vVa}")
    A_(f"    s_lshl_b32 s{sROW}, s{sW}, 6")
    A_(f"    s_mov_b32 s{sP}, 0")
    A_("L_slow_pass:")
    for j in range(4):
        A_(f"    s_add_u32 s{sT0}, s{sROW}, {16*j}")
        A_(f"    s_lshl_b32 s{sT1}, s{sT0}, 8")
        A_(f"    s_add_u32 s{sT1}, s{sT1}, s{sQB}")
        A_(f"    s_cmp_lt_u32 s{sT0}, 992")
        A_(f"    s_cselect_b32 s{sQ[j]}, s{sT1}, s{sOOB}")
    for j in range(4):
        for ss in range(4):
            A_(f"    buffer_load_dwordx4 a[{Q_(j,ss)}:{Q_(j,ss)+3}], v{vQO}, s[{sSRD_Q}:{sSRD_Q+3}], s{sQ[j]} offen offset:{64*ss}")
    for j in range(4): A_(f"    v_mov_b32 v{vMx+j}, 0xff800000")
    A_("    s_waitcnt vmcnt(0)")
    def kload():
        for kvt in range(2):
            for ss in range(4):
                A_(f"    ds_read_b128 a[{KF_(kvt,ss)}:{KF_(kvt,ss)+3}], v{vKa} offset:{kvt*4096+ss*1024}")
        A_("    s_waitcnt lgkmcnt(0)")
    def qk(usenm):
        for kvt in range(2):
            for j in range(4):
                for ss in range(4):
                    d = S_(kvt, j)
                    c = (f"v[{NM_(j)}:{NM_(j)+3}]" if usenm else "0") if ss == 0 else f"v[{d}:{d+3}]"
                    A_(f"    v_mfma_f32_16x16x32_bf16 v[{d}:{d+3}], a[{KF_(kvt,ss)}:{KF_(kvt,ss)+3}], a[{Q_(j,ss)}:{Q_(j,ss)+3}], {c}")
        A_("    s_nop 15")
    A_(f"    v_mov_b32 v{vKa}, v{vK0}")
    A_(f"    s_mov_b32 s{sT}, 0")
    A_("L_slow_max:")
    kload(); qk(False)
    for j in range(4):
        for kvt in range(2):
            d = S_(kvt, j)
            A_(f"    v_max3_f32 v{vMx+j}, v{vMx+j}, v{d}, v{d+1}")
            A_(f"    v_max3_f32 v{vMx+j}, v{vMx+j}, v{d+2}, v{d+3}")
    A_(f"    v_add_u32 v{vKa}, 8192, v{vKa}")
    A_(f"    s_add_u32 s{sT}, s{sT}, 1")
    A_(f"    s_cmp_lt_u32 s{sT}, 16")
    A_("    s_nop 7")
    A_("    s_cbranch_scc1 L_slow_max")
    def xlane(reg, op):
        for sw in ("v_permlane16_swap_b32", "v_permlane32_swap_b32"):
            A_(f"    v_mov_b32 v{vU}, v{reg}")
            A_("    s_nop 1")
            A_(f"    {sw} v{reg}, v{vU}")
            A_("    s_nop 1")
            A_(f"    {op} v{reg}, v{reg}, v{vU}")
    for j in range(4):
        xlane(vMx + j, "v_max_f32")
        for i in range(4): A_(f"    v_sub_f32 v{NM_(j)+i}, 0, v{vMx+j}")
        A_(f"    v_mov_b32 v{vL+j}, 0")
    for r in range(128): A_(f"    v_mov_b32 v{r}, 0")
    A_(f"    v_mov_b32 v{vKa}, v{vK0}")
    A_(f"    s_mov_b32 s{sT}, 0")
    A_("L_slow_pv:")
    A_(f"    s_mul_i32 s{sVs}, s84, {Cfg.rot}")
    A_(f"    s_add_u32 s{sVs}, s{sVs}, s{sT}")
    A_(f"    s_and_b32 s{sVs}, s{sVs}, 15")
    A_(f"    s_lshl_b32 s{sVs}, s{sVs}, 13")
    A_(f"    s_add_u32 s{sVs}, s{sVs}, s{sKB}")
    A_(f"    s_add_u32 s{sSo}, s{sVs}, 4096")
    kload(); qk(True)
    for j in range(4):
        for kvt in range(2):
            d = S_(kvt, j)
            for i in range(4): A_(f"    v_exp_f32 v{d+i}, v{d+i}")
            A_("    s_nop 0")
            for h in range(2): A_(f"    v_cvt_pk_bf16_f32 v{P_(0,j)+2*kvt+h}, v{d+2*h}, v{d+2*h+1}")
            for i in range(4): A_(f"    v_add_f32 v{vL+j}, v{vL+j}, v{d+i}")
    raw = P_(1, 0); pk = P_(1, 2)
    for dt in range(8):
        u, b = dt // 2, dt % 2
        for kvt in range(2):
            so = sVs if kvt == 0 else sSo
            for r in range(4):
                A_(f"    buffer_load_ushort v{raw + 4*kvt + r}, v{vVa}, s[{sSRD_V}:{sSRD_V+3}], s{so} offen offset:{r*256 + (32*u + 4*b)*2}")
        A_("    s_waitcnt vmcnt(0)")
        for h in range(4):
            A_(f"    v_lshl_or_b32 v{pk + h}, v{raw + 2*h + 1}, 16, v{raw + 2*h}")
        A_("    s_nop 1")
        for j in range(4):
            o = O_(dt, j)
            A_(f"    v_mfma_f32_16x16x32_bf16 v[{o}:{o+3}], v[{pk}:{pk+3}], v[{P_(0,j)}:{P_(0,j)+3}], v[{o}:{o+3}]")
        A_("    s_nop 7")
    A_(f"    v_add_u32 v{vKa}, 8192, v{vKa}")
    A_(f"    s_add_u32 s{sT}, s{sT}, 1")
    A_(f"    s_cmp_lt_u32 s{sT}, 16")
    A_("    s_nop 15")
    A_("    s_cbranch_scc1 L_slow_pv")
    for j in range(4):
        xlane(vL + j, "v_add_f32")
        A_(f"    v_rcp_f32 v{vL+j}, v{vL+j}")
    A_("    s_nop 1")
    for u in range(4):
        for j in range(4):
            tb = S_(0, 0) + 4 * ((u * 4 + j) % 8)
            for b in range(2):
                o = O_(2 * u + b, j)
                for i in range(4): A_(f"    v_mul_f32 v{o+i}, v{o+i}, v{vL+j}")
                for h in range(2): A_(f"    v_cvt_pk_bf16_f32 v{tb+2*b+h}, v{o+2*h}, v{o+2*h+1}")
            A_(f"    buffer_store_dwordx4 v[{tb}:{tb+3}], v{vQO}, s[{sSRD_O}:{sSRD_O+3}], s{sQ[j]} offen offset:{64*u}")
            A_("    s_nop 1")
    A_("    s_waitcnt vmcnt(0)")
    A_(f"    s_add_u32 s{sROW}, s{sROW}, 256")
    A_(f"    s_add_u32 s{sP}, s{sP}, 1")
    A_(f"    s_cmp_lt_u32 s{sP}, 4")
    A_("    s_cbranch_scc1 L_slow_pass")
    A_("    s_endpgm")
    txt = "\n".join(t) + "\n"
    return txt

def SLOWV(dt): return VF_(dt)

def main():
    ap = argparse.ArgumentParser()
    ap.add_argument("-o", default="standalone__gqa_softmax__near_ridge.s")
    ap.add_argument("--backlog", type=int, default=3)
    ap.add_argument("--lead", type=int, default=7)
    ap.add_argument("--show", action="store_true")
    ap.add_argument("--stamp", action="store_true")
    ap.add_argument("--stflags", default="")
    ap.add_argument("--qflags", default="")
    ap.add_argument("--kflags", default="")
    ap.add_argument("--vflags", default="")
    ap.add_argument("--abl", default="")
    ap.add_argument("--rot", type=int, default=0)
    ap.add_argument("--tflags", default="")
    ap.add_argument("--initmin", type=int, default=0)
    ap.add_argument("--align", default="")
    ap.add_argument("--padbody", type=int, default=0)
    ap.add_argument("--padb0", type=int, default=0)
    ap.add_argument("--noq0dma", action="store_true")
    ap.add_argument("--kboff", type=int, default=12)
    ap.add_argument("--horizon", type=int, default=10 ** 9)
    ap.add_argument("--kblazy", type=int, default=-1)
    ap.add_argument("--pf2", type=int, default=10)
    ap.add_argument("--stj", action="store_true")
    ap.add_argument("--kall", action="store_true")
    ap.add_argument("--simple", action="store_true")
    ap.add_argument("--kahead", type=int, default=6)
    ap.add_argument("--kissue", type=int, default=2)
    ap.add_argument("--winspace", type=int, default=9)
    ap.add_argument("--nointer", action="store_true")
    ap.add_argument("--touchall", action="store_true")
    ap.add_argument("--qstart0", type=int, default=3)
    ap.add_argument("--qspace0", type=int, default=40)
    ap.add_argument("--initx", type=int, default=1)
    ap.add_argument("--x", type=int, default=0)
    ap.add_argument("--x0", type=int, default=0)
    ap.add_argument("--kfirst", type=int, default=4)
    ap.add_argument("--kbnovalu", action="store_true")
    ap.add_argument("--stampbar", action="store_true")
    ap.add_argument("--pf", type=int, default=6)
    ap.add_argument("--nopk", action="store_true")
    ap.add_argument("--stspace", type=int, default=14)
    ap.add_argument("--qstart", type=int, default=5)
    ap.add_argument("--qspace", type=int, default=24)
    ap.add_argument("--bargap", type=int, default=11)
    args = ap.parse_args()
    for x in args.abl.split(","):
        if x: ABL.add(x)
    Cfg.backlog = args.backlog; Cfg.lds_lead = args.lead
    Cfg.pf = args.pf
    Cfg.t_flags = (' ' + args.tflags) if args.tflags else ''
    Cfg.kb_novalu = args.kbnovalu
    Cfg.k_first = args.kfirst
    Cfg.q_start0 = args.qstart0; Cfg.q_space0 = args.qspace0
    if args.kall:
        Cfg.kall = True
        Cfg.init_extra = [("k", t) for t in range(4, 16)] + [("t", 2)]
        Cfg.early_list = [("t", 4), ("t", 6)]
    elif args.initx == 0:
        Cfg.early_list = Cfg.init_extra + Cfg.early_list; Cfg.init_extra = []
    elif args.initx == 2:
        Cfg.init_extra = Cfg.init_extra + Cfg.early_list; Cfg.early_list = []
    Cfg.touch_all = args.touchall
    if args.nointer: Cfg.interleave = 0
    Cfg.win_space = args.winspace
    Cfg.simple = args.simple; Cfg.k_ahead = args.kahead; Cfg.k_issue = args.kissue
    Cfg.st_jmajor = args.stj
    Cfg.pf2 = args.pf2
    Cfg.horizon = args.horizon
    if args.kblazy >= 0: Cfg.kb_lazy = True; Cfg.kb_slack = args.kblazy
    Cfg.kb_off = args.kboff
    Cfg.q0dma = not (args.noq0dma or args.simple or args.kall or args.initx == 2)
    Cfg.pad_body = args.padbody; Cfg.pad_b0 = args.padb0
    Cfg.init_min = args.initmin
    Cfg.rot = args.rot; Cfg.pkmul = not args.nopk
    Cfg.st_space = args.stspace; Cfg.q_start = args.qstart; Cfg.q_space = args.qspace; Cfg.bar_gap = args.bargap
    Cfg.st_flags = (" " + args.stflags) if args.stflags else ""
    Cfg.q_flags = (" " + args.qflags) if args.qflags else ""
    Cfg.k_flags = (" " + args.kflags) if args.kflags else ""
    Cfg.v_flags = (" " + args.vflags) if args.vflags else ""

    def pol(k, remaining, ready, emit_, state):
        state["backlog"] = Cfg.backlog
        state["horizon"] = Cfg.horizon
        default_policy(k, remaining, ready, emit_, state)
    noff0 = next_offsets_ops()
    tail = parked_stores(15)
    if Cfg.simple:
        XS[0] = args.x
        init_ops = []
        body0, vd0 = build_simple_prologue()
        body, late = build_body(False, None)
        for o in body:
            if o.kind == "waitv" and o.name == "vw0": o.covers = vd0 + late
        body0_sched = schedule(body0, pol, verbose=True)
        body_sched = schedule(body, pol, verbose=True)
        setx = Op("", "valu", [], regs("a", X_(0), 64), None, {r: ("OX", -1, None, u, j) for u in range(4) for j in range(4) for r in regs("a", X_(u * 4 + j), 4)})
        trace = [(body0_sched, 0), ([setx], 0), (noff0, 0)] + [(body_sched, p) for p in range(0, 4)] + [(tail, 3)]
    else:
        init_ops, info = init_issue_ops()
        XS[0] = args.x0
        body0, late0 = build_body(True, info)
        XS[0] = args.x
        body, late = build_body(False, None)
        for o in body:
            if o.kind == "waitv" and o.name == "vw0": o.covers = late0 + late
        body0_sched = schedule(body0, pol, verbose=True)
        body_sched = schedule(body, pol, verbose=True)
        trace = [(init_ops, 0), (noff0, 0), (body0_sched, 0)] + [(body_sched, p) for p in range(1, 4)] + [(tail, 3)]
    resolve_waits(trace)
    errs = check_trace(trace)
    for e in errs[:40]: print("ERR", e)
    print("errors:", len(errs))
    nm = sum(1 for o in body_sched if o.kind == "mfma")
    print("body instrs:", sum(1 for o in body_sched if o.kind != "phantom"), "mfma:", nm, " body0 instrs:", sum(1 for o in body0_sched if o.kind != "phantom"))
    if args.show:
        XS[0] = args.x0; show(body0_sched); XS[0] = args.x; show(body_sched)

    s = f"""; GQA attention forward, bf16, B=16 Hq=32 Hkv=8 Sq=496 Sk=512 D=128  (written by the author's own generator, gen/gen.py)
; @launch grid=(256,1,1) block=(256,1,1) lds=163840
.amdgcn_target "amdgcn-amd-amdhsa--gfx950"
.text
.globl {KNAME}
.p2align 8
.type {KNAME},@function
{KNAME}:
"""
    pt = prologue_text()
    pf = ""
    if Cfg.pf:
        first_end = "L_code_end" if (Cfg.simple or not Cfg.pf2) else "L_pass"
        pf = f"""    s_getpc_b64 s[80:81]
L_pc:
    v_lshlrev_b32 v{TMP+12}, {Cfg.pf}, v0
    s_mov_b32 s82, {first_end}-L_pc-4
"""
        step = 256 << Cfg.pf
        nbytes = Cfg.code_bytes if first_end == "L_code_end" else 36000
        for i in range((nbytes + step - 1) // step):
            pf += f"    v_min_u32 v{TMP+13}, s82, v{TMP+12}\n    global_load_dword v{TMP+14+i%4}, v{TMP+13}, s[80:81]\n    v_add_u32 v{TMP+12}, {step}, v{TMP+12}\n"
        if Cfg.pf2:
            pf += f"""    v_lshlrev_b32 v{vPF}, 7, v0
    v_add_u32 v{vPF}, L_pass-L_pc, v{vPF}
    s_mov_b32 s82, L_code_end-L_pc-68
    v_min_u32 v{vPF}, s82, v{vPF}
"""
    pt = pt.replace("PREFETCH\n", pf)
    if args.stamp:
        a, b = pt.split("    ; workgroup -> (group, half)")
        pt = a + stamp_setup() + stamp(0) + "    ; workgroup -> (group, half)" + b
    s += pt
    s += emit_fix(init_ops)
    if not Cfg.simple: s += emit(noff0)
    if args.stamp: s += stamp(1)
    b0 = "    s_nop 0\n" * Cfg.pad_b0 + emit(body0_sched)
    if args.align:
        from align8 import align_block
        b0, n = align_block(b0, args.align); print("promoted (body0):", n)
        b0 = ".p2align 3\n" + b0
    if args.stamp and args.stampbar:
        parts = b0.split("    s_barrier\n")
        b0 = parts[0]
        for k, p_ in enumerate(parts[1:]):
            b0 += "    s_barrier\n" + stamp(8 + k) + p_
    s += b0
    if Cfg.simple: s += emit(noff0)
    if args.stamp: s += stamp(2)
    s += f"    s_mov_b32 s{sPASS}, {0 if Cfg.simple else 1}\n"
    s += ".p2align 6\nL_pass:\n" + "    s_nop 0\n" * Cfg.pad_body
    b1 = emit(body_sched)
    if args.align:
        b1, n = align_block(b1, args.align); print("promoted (body):", n)
    if args.stamp and args.stampbar:
        parts = b1.split("    s_barrier\n")
        b1 = stamp(18) + parts[0]
        for k, p_ in enumerate(parts[1:]):
            b1 += "    s_barrier\n" + stamp(19 + k) + p_
        idx = b1.rindex("    v_mfma")
        idx = b1.index("\n", idx) + 1
        b1 = b1[:idx] + stamp(27) + b1[idx:] + stamp(28)
    s += b1
    if args.stamp: s += stamp(3 if Cfg.simple else 2, dyn=True)
    s += f"""    s_add_u32 s{sPASS}, s{sPASS}, 1
    s_cmp_lt_u32 s{sPASS}, 4
    s_cbranch_scc1 L_pass
"""
    s += emit(tail)
    if args.stamp: s += "    s_waitcnt vmcnt(0)\n" + stamp(7 if Cfg.simple else 6)
    s += f"""    s_cmp_lg_u64 s[{sFLAG}:{sFLAG+1}], 0
    s_cbranch_scc1 L_slow
L_end:
    s_endpgm
L_code_end:
"""
    s += slow_path_text()
    s += f"""
.section .rodata,"a"
.p2align 6
.amdhsa_kernel {KNAME}
  .amdhsa_next_free_vgpr 512
  .amdhsa_next_free_sgpr 88
  .amdhsa_accum_offset 256
  .amdhsa_group_segment_fixed_size 0
  .amdhsa_kernarg_size 48
  .amdhsa_user_sgpr_count 2
  .amdhsa_user_sgpr_kernarg_segment_ptr 1
  .amdhsa_system_sgpr_workgroup_id_x 1
.end_amdhsa_kernel
"""
    open(args.o, "w").write(s)

if __name__ == "__main__":
    main()
```

```python
import sys, os, struct, argparse
sys.path.insert(0, os.path.dirname(os.path.abspath(__file__)))
from sched import *

KNAME = "standalone__gqa_softmax__near_ridge_kernel"

def O_(dt, j): return (dt * 4 + j) * 4
def S_(kvt, j): return 128 + (kvt * 4 + j) * 4
def P_(buf, j): return 160 + buf * 16 + j * 4
def NM_(j): return 192 + 4 * j
def LS0_(j): return 208 + j
def LS1_(j): return 212 + j
TMP = 216
vK0, vK1 = 240, 241
vV = [242, 243, 244, 245]
vQO = 246
vDMA = 247
vRC = [248, 249, 250, 251]
def vRCP(j): return 248 + j
vQL = 252
vSTW = 253
vSTR = 254
vTHR = 255
vPF = 254
vPF2 = 251
def Q_(j, s): return (j * 4 + s) * 4
def X_(n): return 64 + n * 4
def KF_(kvt, s, par=0): return 128 + par * 32 + (kvt * 4 + s) * 4
def VF_(dt): return 192 + dt * 4
def L_(j): return 224 + 4 * j
ONES = 240
XS = [0]
def msum(j): return j >= 4 - XS[0]
def KR_(s): return 224 + 4 * s

sSRD_Q, sSRD_K, sSRD_V, sSRD_O = 12, 16, 20, 24
sW = 28; sPASS = 29
sQ = [30, 31, 32, 33]
sO = [34, 35, 36, 37]
sVB = 38; sVO = 39; sM0B = 40; sQB = 41
sFLAG = 42
sROW = 44
sT0, sT1 = 45, 46
sC = 47
sKB = 49; sOOB = 50; sVO2 = 51
sOP = [66, 67, 68, 69]
sVBH = 70
sKL, sKH = 71, 72
sKM = 73
sKO = 74
sVT, sVTH = 75, 76
vKW = [248, 249]
vTCH = 253

LDS_V = 131072
LDS_STG = 31 * 4096
Q_BYTES = 16 * 32 * 496 * 128 * 2
KV_BYTES = 16 * 8 * 512 * 128 * 2
CSCALE = (128 ** -0.5) * 1.4426950408889634
def f32bits(x): return struct.unpack("<I", struct.pack("<f", x))[0]

class Cfg:
    backlog = 3
    lds_lead = 7
    thr = 2.0 ** 30
    pkmul = True
    rot = 0
    init_min = 0
    pad_body = 0
    pad_b0 = 0
    q0_flags = ''
    q0dma = True
    horizon = 10 ** 9
    kb_lazy = False
    kb_slack = 40
    pf2 = 10
    st_jmajor = False
    kall = False
    k_ahead = 6
    k_issue = 2
    simple = False
    interleave = 2
    win_space = 9
    st_plan = [(n // 4, n % 4) for n in range(16)]
    q_plan = [(1, 4), (1, 5), (1, 6), (2, 4), (2, 5), (2, 6), (3, 4), (3, 5), (3, 6), (4, 0), (4, 2), (4, 4), (4, 6), (5, 0), (5, 2), (5, 4)]
    kb_off = 12
    touch_all = False
    touch_ahead = 8
    k_first = 4
    early0 = 2
    qcopy_span = 70
    kb_novalu = False
    t_flags = ''
    init_extra = [("t", 2), ("k", 4), ("k", 5)]
    early_list = [("t", 4), ("k", 6), ("k", 7), ("t", 6)]
    pf = 6
    code_bytes = 60000
    st_space = 14
    q_start = 5
    q_start0 = 3
    q_space0 = 40
    q_space = 24
    bar_gap = 11
    st_flags = ""
    q_flags = ""
    k_flags = ""
    v_flags = ""

def V(i): return f"v{i}"
def A(i): return f"a{i}"

def mfma(d, dpre, a, apre, b, bpre, c=None, rtag=None, wtag=None):
    dr = regs(dpre, d, 4)
    reads = regs(apre, a, 4) + regs(bpre, b, 4)
    if c is None:
        ctext = "0"; srcc = []
    else:
        ctext = rng(dpre, c, 4); srcc = regs(dpre, c, 4); reads += srcc
    return Op(f"v_mfma_f32_16x16x32_bf16 {rng(dpre, d, 4)}, {rng(apre, a, 4)}, {rng(bpre, b, 4)}, {ctext}", "mfma",
              reads, dr, rtag, wtag, srcc=srcc)

def valu(text, reads, writes, rtag=None, wtag=None, kind="valu"):
    return Op(text, kind, reads, writes, rtag, wtag)

def salu(text, reads=(), writes=()):
    return Op(text, "salu", reads, writes)

def ds_read(dst, n, vaddr, off, tagf, tr=False, extra_reads=(), lead=None):
    d = regs("a", dst, n)
    ins = "ds_read_b64_tr_b16" if tr else "ds_read_b128"
    return Op(f"{ins} {rng('a', dst, n)}, v{vaddr} offset:{off}", "lds", [V(vaddr)] + list(extra_reads),
              d + ["pend:" + r for r in d], None, {r: tagf for r in d}, lead=Cfg.lds_lead if lead is None else lead)

def wait(kind, loads, extra_covers=()):
    rs = []; ws = []
    for l in loads:
        for w in l.writes:
            if w.startswith("pend:"):
                rs.append(w); ws.append(w[5:])
    return Op("", kind, rs, ws, covers=list(loads) + list(extra_covers))

def k_reads(t, kvt):
    ops = []
    for s in range(4):
        off = t * 8192 + kvt * 4096 + s * 1024
        va = vK0
        if off >= 65536: off -= 65536; va = vK1
        ops.append(ds_read(KF_(kvt, s, t % 2), 4, va, off, ("K", None, None, t, kvt, s)))
    return ops

def kreg(t, kvt, s):
    return KF_(kvt, s, t % 2)

def v_reads(t, dt):
    slot = t % 4
    u, b = dt // 2, dt % 2
    ops = []
    for kvt in range(2):
        off = slot * 8192 + kvt * 4096 + 8 * b
        ops.append(ds_read(VF_(dt) + 2 * kvt, 2, vV[u], off, ("V", None, None, t, dt, kvt), tr=True,
                           extra_reads=[f"ps:vready{t // 2 % 2}"]))
    return ops

def qk_chain(n, kvt, j, first):
    t = n % 16; rp = n // 16
    l = []
    for s in range(4):
        q = X_(j * 4 + s) if n == 16 else Q_(j, s); kr = kreg(t, kvt, s)
        rt = {r: ("K", None, None, t, kvt, s) for r in regs("a", kr, 4)}
        rt.update({r: ("Q", None, rp, j, s) for r in regs("a", q, 4)})
        if s == 0:
            if first and kvt == 0: c = None
            else:
                c = NM_(j); rt.update({r: ("NM", None, rp, j) for r in regs("v", c, 4)})
        else:
            c = S_(kvt, j); rt.update({r: ("Sp", n, None, kvt, j, s - 1) for r in regs("v", c, 4)})
        wt = {r: (("Sp", n, None, kvt, j, s) if s < 3 else ("S", n, None, kvt, j, i))
              for i, r in enumerate(regs("v", S_(kvt, j), 4))}
        if s == 3 and first and kvt == 0:
            wt = {r: ("Sraw", n, None, kvt, j, i) for i, r in enumerate(regs("v", S_(kvt, j), 4))}
        l.append(mfma(S_(kvt, j), "v", kr, "a", q, "a", c, rt, wt))
    return l

def max_ops(n, j):
    rp = n // 16
    ops = []
    s = S_(0, j); t = TMP + 2 * j; u = TMP + 2 * j + 1
    raw = lambda i: {V(s + i): ("Sraw", n, None, 0, j, i)}
    rt = {}; [rt.update(raw(i)) for i in range(3)]
    ops.append(valu(f"v_max3_f32 v{t}, v{s}, v{s+1}, v{s+2}", [V(s), V(s+1), V(s+2)], [V(t)], rt))
    ops.append(valu(f"v_max_f32 v{t}, v{t}, v{s+3}", [V(t), V(s+3)], [V(t)], raw(3)))
    for sw in ("v_permlane16_swap_b32", "v_permlane32_swap_b32"):
        ops.append(valu(f"v_mov_b32 v{u}, v{t}", [V(t)], [V(u)]))
        ops.append(valu(f"{sw} v{t}, v{u}", [V(t), V(u)], [V(t), V(u)], kind="perm"))
        ops.append(valu(f"v_max_f32 v{t}, v{t}, v{u}", [V(t), V(u)], [V(t)]))
    for i in range(4):
        ops.append(valu(f"v_sub_f32 v{NM_(j)+i}, 0, v{t}", [V(t)], [V(NM_(j)+i)], None, {V(NM_(j)+i): ("NM", None, rp, j)}))
    for i in range(4):
        ops.append(valu(f"v_sub_f32 v{s+i}, v{s+i}, v{t}", [V(s+i), V(t)], [V(s+i)], raw(i), {V(s+i): ("S", n, None, 0, j, i)}))
    return ops

def sm_ops(n, kvt, j):
    ops = []
    s = S_(kvt, j); buf = n % 2
    t = n % 16
    for i in range(4):
        ops.append(valu(f"v_exp_f32 v{s+i}, v{s+i}", [V(s+i)], [V(s+i)], {V(s+i): ("S", n, None, kvt, j, i)},
                        {V(s+i): ("E", n, None, kvt, j, i)}, kind="trans"))
        et = {V(s+i): ("E", n, None, kvt, j, i)}
        if msum(j): pass
        elif t == 0:
            if kvt == 0 and i == 0: pass
            elif kvt == 0 and i == 1:
                ops.append(valu(f"v_add_f32 v{LS0_(j)}, v{s}, v{s+1}", [V(s), V(s+1)], [V(LS0_(j))], et))
            else:
                ops.append(valu(f"v_add_f32 v{LS0_(j)}, v{LS0_(j)}, v{s+i}", [V(LS0_(j)), V(s+i)], [V(LS0_(j))], et))
        elif t == 1 and kvt == 0 and i == 0:
            ops.append(valu(f"v_add_f32 v{LS1_(j)}, v{LS0_(j)}, v{s+i}", [V(LS0_(j)), V(s+i)], [V(LS1_(j))], et))
        else:
            ops.append(valu(f"v_add_f32 v{LS1_(j)}, v{LS1_(j)}, v{s+i}", [V(LS1_(j)), V(s+i)], [V(LS1_(j))], et))
        if i % 2 == 1:
            pr = P_(buf, j) + 2 * kvt + i // 2
            rt = {V(s+i-1): ("E", n, None, kvt, j, i-1), V(s+i): ("E", n, None, kvt, j, i)}
            ops.append(valu(f"v_cvt_pk_bf16_f32 v{pr}, v{s+i-1}, v{s+i}", [V(s+i-1), V(s+i)], [V(pr)], rt,
                            {V(pr): ("P", n, None, j, 2 * kvt + i // 2)}))
    return ops

def pv_ops(n, dt):
    t = n % 16; buf = n % 2
    l = []
    for j in range(4):
        rt = {}
        for kvt in range(2):
            rt.update({r: ("V", None, None, t, dt, kvt) for r in regs("a", VF_(dt) + 2 * kvt, 2)})
        rt.update({r: ("P", n, None, j, i) for i, r in enumerate(regs("v", P_(buf, j), 4))})
        if t == 0: c = None
        else:
            c = O_(dt, j); rt.update({r: ("O", n - 1, None, dt, j) for r in regs("v", c, 4)})
        wt = {r: ("O", n, None, dt, j) for r in regs("v", O_(dt, j), 4)}
        l.append(mfma(O_(dt, j), "v", VF_(dt), "a", P_(buf, j), "v", c, rt, wt))
    return l

def sum_ops(n):
    t = n % 16; buf = n % 2
    l = []
    for j in range(4):
        if not msum(j): continue
        rt = {r: ("P", n, None, j, i) for i, r in enumerate(regs("v", P_(buf, j), 4))}
        c = None if t == 0 else L_(j)
        l.append(mfma(L_(j), "a", ONES, "a", P_(buf, j), "v", c, rt, None))
    return l

def q_raw_loads(rp, direct=False):
    ops = []
    for j in range(4):
        for s in range(4):
            d = Q_(j, s) if direct else X_(j * 4 + s)
            dr = regs("a", d, 4)
            ops.append(Op(f"buffer_load_dwordx4 {rng('a', d, 4)}, v{vQO}, s[{sSRD_Q}:{sSRD_Q+3}], s{sQ[j]} offen offset:{64*s}{Cfg.q_flags}",
                          "vld", [V(vQO), f"s{sQ[j]}"], dr + ["pend:" + r for r in dr], None,
                          {r: ("Q", None, rp, j, s) for r in dr}))
    return ops

sQM = 87
def q0_dma_ops():
    ops = []; d = []
    for j in range(4):
        for s in range(4):
            n = j * 4 + s
            ops.append(salu(f"s_add_u32 m0, s{sQM}, {n * 1024}", [], ["m0"]))
            ops.append(salu(f"s_add_u32 s{sKO}, s{sQ[j]}, {64 * s}", [f"s{sQ[j]}"], [f"s{sKO}"]))
            o = Op(f"buffer_load_dwordx4 v{vQL}, s[{sSRD_Q}:{sSRD_Q+3}], s{sKO} offen{Cfg.q0_flags} lds", "dma",
                   [V(vQL), f"s{sKO}", "m0"], [f"pend:ps:q0raw{n}"])
            ops.append(o); d.append(o)
    return ops, d

def q0_reads():
    ops = []
    for j in range(4):
        for s in range(4):
            n = j * 4 + s
            ops.append(ds_read(Q_(j, s), 4, vPF2, n * 1024, ("Q", None, 0, j, s), extra_reads=[f"ps:q0raw{n}"], lead=2))
    return ops

def q_copy(rp, j, s):
    ops = []
    for i in range(4):
        x = X_(j * 4 + s) + i; q = Q_(j, s) + i
        ops.append(valu(f"v_accvgpr_mov_b32 a{q}, a{x}", [A(x)], [A(q)], {A(x): ("Q", None, rp, j, s)}, {A(q): ("Q", None, rp, j, s)}))
    return ops

def dma_ops(t):
    slot = t % 4
    so = sVO if t % 2 == 0 else sVO2
    ops = [salu(f"s_add_u32 m0, s{sM0B}, {slot * 8192}", [f"s{sM0B}"], ["m0"]),
           salu(f"s_add_u32 s{so}, s{sVB if t < 16 - Cfg.rot else sVBH}, {t * 8192}", [f"s{sVB}"], [f"s{so}"])]
    for h in range(2):
        ops.append(Op(f"buffer_load_dwordx4 v{vDMA}, s[{sSRD_V}:{sSRD_V+3}], s{so} offen offset:{1024*h}{Cfg.v_flags} lds", "dma",
                      [V(vDMA), f"s{so}", "m0", f"ps:vfree{t // 2 % 2}"], [f"ps:vdst{t%4}_{h}"]))
    return ops

def epilogue_ops(n):
    ops = []
    for j in range(4):
        t = TMP + 8 + 2 * j; u = TMP + 8 + 2 * j + 1
        if msum(j):
            ops.append(valu(f"v_accvgpr_read_b32 v{t}, a{L_(j)}", [A(L_(j))], [V(t)]))
        else:
            ops.append(valu(f"v_mov_b32 v{t}, v{LS1_(j)}", [V(LS1_(j))], [V(t)]))
        for sw in ("v_permlane16_swap_b32", "v_permlane32_swap_b32"):
            if msum(j): break
            ops.append(valu(f"v_mov_b32 v{u}, v{t}", [V(t)], [V(u)]))
            ops.append(valu(f"{sw} v{t}, v{u}", [V(t), V(u)], [V(t), V(u)], kind="perm"))
            ops.append(valu(f"v_add_f32 v{t}, v{t}, v{u}", [V(t), V(u)], [V(t)]))
        ops.append(valu(f"v_rcp_f32 v{vRC[j]}, v{t}", [V(t)], [V(vRC[j])], kind="trans"))
        ops.append(valu(f"v_cmp_nle_f32 vcc, v{t}, v{vTHR}", [V(t), V(vTHR)], ["vcc"]))
        ops.append(salu(f"s_or_b64 s[{sFLAG}:{sFLAG+1}], s[{sFLAG}:{sFLAG+1}], vcc", ["vcc", f"s{sFLAG}"], [f"s{sFLAG}"]))
    cnt = 0
    for u in range(4):
        for j in range(4):
            tb = TMP + 16 + 4 * (cnt % 2); cnt += 1
            for b in range(2):
                o = O_(2 * u + b, j)
                if Cfg.pkmul:
                    for i in (0, 2):
                        pb = 248 + (j & ~1); sel = j & 1
                        op = valu(f"v_pk_mul_f32 v[{o+i}:{o+i+1}], v[{o+i}:{o+i+1}], v[{pb}:{pb+1}] op_sel:[0,{sel}] op_sel_hi:[1,{sel}]",
                                  [V(o+i), V(o+i+1), V(vRC[j])], [V(o+i), V(o+i+1)],
                                  {V(o+i): ("O", n, None, 2 * u + b, j), V(o+i+1): ("O", n, None, 2 * u + b, j)})
                        op.reads.append("ps:nomfma")
                        ops.append(op)
                else:
                    for i in range(4):
                        ops.append(valu(f"v_mul_f32 v{o+i}, v{o+i}, v{vRC[j]}", [V(o+i), V(vRC[j])], [V(o+i)],
                                        {V(o+i): ("O", n, None, 2 * u + b, j)}))
                for h in range(2):
                    ops.append(valu(f"v_cvt_pk_bf16_f32 v{tb+2*b+h}, v{o+2*h}, v{o+2*h+1}", [V(o+2*h), V(o+2*h+1)], [V(tb+2*b+h)]))
            x = X_(u * 4 + j)
            for i in range(4):
                ops.append(valu(f"v_accvgpr_write_b32 a{x+i}, v{tb+i}", [V(tb+i)], [A(x+i)], None, {A(x+i): ("OX", n, None, u, j)}))
    return ops

def parked_stores(n):
    ops = []
    order = [(u, j) for u in range(4) for j in range(4)] if not Cfg.st_jmajor else [(u, j) for j in range(4) for u in range(4)]
    for (u, j) in order:
        if True:
            x = X_(u * 4 + j); xr = regs("a", x, 4)
            ops.append(Op(f"buffer_store_dwordx4 {rng('a', x, 4)}, v{vQO}, s[{sSRD_O}:{sSRD_O+3}], s{sOP[j]} offen offset:{64*u}{Cfg.st_flags}",
                          "vst", xr + [V(vQO), f"s{sOP[j]}"], [], {r: ("OX", n, None, u, j) for r in xr}))
    return ops

def k_dma_ops(t):
    ops = []
    for h in range(2):
        ops.append(salu(f"s_add_u32 m0, s{sKM}, {t * 8192 + h * 1024}", [f"s{sKM}"], ["m0"]))
        ops.append(salu(f"s_add_u32 s{sKO}, s{sKL if t < 16 - Cfg.rot else sKH}, {t * 8192 + h * 64}", [], [f"s{sKO}"]))
        ops.append(Op(f"buffer_load_dwordx4 v{vQL}, s[{sSRD_K}:{sSRD_K+3}], s{sKO} offen{Cfg.k_flags} lds", "dma",
                      [V(vQL), f"s{sKO}", "m0"], [f"pend:ps:kraw{t}_{h}"]))
    return ops

def k_build_ops(t, idx):
    ops = []
    for h in range(2):
        base = TMP + 12 * ((2 * idx + h) % 2)
        off = t * 8192 + h * 1024
        va = vKW[0]
        if off >= 65536: off -= 65536; va = vKW[1]
        d = regs("v", base, 4)
        rd = Op(f"ds_read_b128 {rng('v', base, 4)}, v{va} offset:{off}", "lds", [V(va), f"ps:kraw{t}_{h}"],
                d + ["pend:" + r for r in d], lead=Cfg.lds_lead)
        ops.append(rd); ops.append(wait("waitl", [rd]))
        for i in range(4):
            if Cfg.kb_novalu and t >= 4: break
            r = base + i; a, b = base + 4 + 2 * i, base + 5 + 2 * i
            ops.append(valu(f"v_lshlrev_b32 v{a}, 16, v{r}", [V(r)], [V(a)]))
            ops.append(valu(f"v_and_b32 v{b}, 0xffff0000, v{r}", [V(r)], [V(b)]))
            ops.append(valu(f"v_mul_f32 v{a}, s{sC}, v{a}", [V(a)], [V(a)]))
            ops.append(valu(f"v_mul_f32 v{b}, s{sC}, v{b}", [V(b)], [V(b)]))
            ops.append(valu(f"v_cvt_pk_bf16_f32 v{r}, v{a}, v{b}", [V(a), V(b)], [V(r)]))
        ops.append(Op(f"ds_write_b128 v{va}, {rng('v', base, 4)} offset:{off}", "ldsw", [V(va)] + d, [f"ps:kw{t}_{h}", f"pend:ps:kws{t}_{h}"]))
    return ops

sTL, sTH, sTO = 75, 76, 77
def touch_ops(t):
    return [salu(f"s_add_u32 s{sTO}, s{sTL if t < 16 - Cfg.rot else sTH}, {t * 8192}", [], [f"s{sTO}"]),
            Op(f"buffer_load_dword a255, v{vTCH}, s[{sSRD_V}:{sSRD_V+3}], s{sTO} offen{Cfg.t_flags}", "vld",
               [V(vTCH), f"s{sTO}"], [A(255)])]

def next_offsets_ops():
    ops = []
    for j in range(4):
        ops.append(salu(f"s_mov_b32 s{sOP[j]}, s{sO[j]}", [f"s{sO[j]}"], [f"s{sOP[j]}"]))
        ops.append(salu(f"s_mov_b32 s{sO[j]}, s{sQ[j]}", [f"s{sQ[j]}"], [f"s{sO[j]}"]))
    ops.append(salu(f"s_add_u32 s{sROW}, s{sROW}, 256", [f"s{sROW}"], [f"s{sROW}", "scc"]))
    for j in range(4):
        o = Op(f"s_add_u32 s{sT0}, s{sROW}, {16*j}\n    s_lshl_b32 s{sT1}, s{sT0}, 8\n    s_add_u32 s{sT1}, s{sT1}, s{sQB}\n"
               f"    s_cmp_lt_u32 s{sT0}, 992\n    s_cselect_b32 s{sQ[j]}, s{sT1}, s{sOOB}", "salu",
               [f"s{sROW}", f"s{sQB}"], [f"s{sQ[j]}", f"s{sT0}", f"s{sT1}", "scc"])
        ops.append(o)
    return ops

def qk_seq(n, first):
    ops = []
    if first:
        for j in range(4): ops += qk_chain(n, 0, j, True)
        for j in range(4): ops += max_ops(n, j)
        for j in range(4): ops += qk_chain(n, 1, j, True)
    else:
        for j in range(4):
            for kvt in range(2): ops += qk_chain(n, kvt, j, False)
    return ops

G = lambda i, k: (64 + XS[0]) * i + k + GOFF[0]
GOFF = [0]

def init_issue_ops():
    ops = []; info = {"kd": {}, "vd": {}}
    def kd(t):
        d = k_dma_ops(t); ops.extend(d); info["kd"][t] = [o for o in d if o.kind == "dma"]
    for t in range(Cfg.k_first): kd(t)
    if Cfg.q0dma:
        qo, q = q0_dma_ops(); ops.extend(qo); info["q"] = q
    else:
        q = q_raw_loads(0, direct=True); ops.extend(q); info["q"] = q
    late = []
    n0 = len(ops)
    for t in range(Cfg.k_first, 4): kd(t)
    for t in (0, 1):
        d = dma_ops(t); ops.extend(d); info["vd"][t] = [o for o in d if o.kind == "dma"]
    for grp in Cfg.init_extra:
        if grp[0] == "t": ops.extend(touch_ops(grp[1]))
        else: kd(grp[1])
    if Cfg.init_min:
        info["late"] = ops[n0:]; ops = ops[:n0]
    else:
        info["late"] = []
    return ops, info

def build_simple_prologue():
    ops = []; kd = {}
    prev = [None]
    def chain(d):
        for o in d:
            if prev[0] is not None: o.deps.append((prev[0], 0, 0))
            prev[0] = o
        ops.extend(d)
    def issue_k(t):
        d = k_dma_ops(t); chain(d); kd[t] = [o for o in d if o.kind == "dma"]
    AHEAD = Cfg.k_ahead
    for t in range(min(AHEAD, 16)): issue_k(t)
    later = []
    for t in range(AHEAD, 16): later.append(("k", t))
    q = q_raw_loads(0, direct=True)
    for n in range(0, 16, 2): later.append(("q", q[n:n + 2]))
    vd = []
    for t in (0, 1): later.append(("v", t))
    def issue_next(n):
        for _ in range(n):
            if not later: return
            k, a = later.pop(0)
            if k == "k": issue_k(a)
            elif k == "q": chain(a)
            elif k == "v":
                d = dma_ops(a); chain(d); vd.extend([o for o in d if o.kind == "dma"])
            else: chain(touch_ops(a))
    wr_all = []
    for t in range(16):
        w = wait("waitv", kd[t]); chain([w])
        kb = k_build_ops(t, t); chain(kb)
        wr_all += [o for o in kb if o.kind == "ldsw"]
        issue_next(Cfg.k_issue)
    issue_next(100)
    chain([wait("waitl", wr_all)])
    chain([Op("s_barrier", "bar", [f"ps:kws{t}_{h}" for t in range(16) for h in (0, 1)], ["ps:kready0"])])
    kr = k_reads(0, 0) + k_reads(0, 1)
    for o in kr: o.reads.append("ps:kready0")
    ops += kr
    ops.append(wait("waitl", kr[:4])); ops.append(wait("waitl", kr[4:]))
    for j in range(4): ops.append(wait("waitv", q[4 * j:4 * j + 4]))
    ops += qk_seq(0, True)
    x = 0
    for t in range(2, 16, 2):
        for o in touch_ops(t):
            o.minGap = 1 + 2 * x; o.cap = o.minGap; x += 1
            ops.append(o)
    kr = k_reads(1, 0) + k_reads(1, 1)
    for o in kr: o.reads.append("ps:kready0")
    ops += kr
    for j in range(4):
        for kvt in range(2): ops += sm_ops(0, kvt, j)
    ops.append(wait("waitl", kr[:4])); ops.append(wait("waitl", kr[4:]))
    return ops, vd

def build_body(pass0, info):
    ops = []
    dmas = {}
    kd = {}
    GOFF[0] = 0
    if pass0:
        kd = dict(info["kd"])
        GOFF[0] = 32
        pre = list(range(Cfg.k_first))
        wr_all = []
        for t in pre:
            w = wait("waitv", kd[t]); ops.append(w)
            kb = k_build_ops(t, t); ops += kb
            wr_all += [o for o in kb if o.kind == "ldsw"]
        ops.append(wait("waitl", wr_all))
        barA = Op("s_barrier", "bar", [f"ps:kws{t}_{h}" for t in pre for h in (0, 1)], ["ps:kready0"] + (["ps:kready1"] if 1 in pre else []))
        kr = k_reads(0, 0) + k_reads(0, 1)
        if info["late"]:
            prev = wr_all[-1] if Cfg.init_min == 1 else barA
            if Cfg.init_min == 2: ops.append(barA)
            for o in info["late"]:
                o.deps.append((prev, 0, 0)); prev = o
            ops += info["late"]
            if Cfg.init_min == 1:
                barA.deps.append((prev, 0, 0)); ops.append(barA)
            else:
                for o in kr: o.deps.append((prev, 0, 0))
        else:
            ops.append(barA)
        for o in kr: o.reads.append("ps:kready0")
        ops += kr
        ops.append(wait("waitl", kr[:4])); ops.append(wait("waitl", kr[4:]))
        q0r = q0_reads() if Cfg.q0dma else None
        for j in range(4):
            ops.append(wait("waitv", info["q"][4 * j:4 * j + 4]))
            if Cfg.q0dma:
                ops += q0r[4 * j:4 * j + 4]
                wl = wait("waitl", q0r[4 * j:4 * j + 4])
                if j == 3: wl.writes.append("ps:q0done")
                ops.append(wl)
        ops += qk_seq(0, True)
        x = 0
        for grp in Cfg.early_list:
            d = touch_ops(grp[1]) if grp[0] == "t" else k_dma_ops(grp[1])
            for o in d:
                o.minGap = Cfg.early0 + x; o.cap = o.minGap; x += 1
            ops += d
            if grp[0] == "k": kd[grp[1]] = [o for o in d if o.kind == "dma"]
        if 1 not in pre:
            w = wait("waitv", kd[1]); w.cap = 0; ops.append(w)
            kb = k_build_ops(1, 1)
            for x, o in enumerate(kb): o.cap = 1 + x // 3
            ops += kb
            ops.append(wait("waitl", [o for o in kb if o.kind == "ldsw"]))
            barB = Op("s_barrier", "bar", [f"ps:kws1_{h}" for h in (0, 1)], ["ps:kready1"])
            barB.cap = 20
            ops.append(barB)
        kr = k_reads(1, 0) + k_reads(1, 1)
        for o in kr: o.reads.append("ps:kready1")
        ops += kr
        for j in range(4):
            for kvt in range(2): ops += sm_ops(0, kvt, j)
        ops.append(wait("waitl", kr[:4])); ops.append(wait("waitl", kr[4:]))
        dmas[0] = info["vd"][0]; dmas[1] = info["vd"][1]
    else:
        ps = parked_stores(-1)
        for x, o in enumerate(ps):
            if Cfg.interleave == 2:
                e, k = Cfg.st_plan[x]
                o.minGap = G(2 * e, Cfg.bar_gap + 12) + k * Cfg.win_space
            else:
                o.minGap = 2 + Cfg.st_space * x
            o.cap = o.minGap + 4
        ops += ps
    qraw = None
    for i in range(16):
        n = i + 1
        first = (n == 16)
        if first:
            for j in range(4):
                wq = wait("waitv", qraw[4 * j:4 * j + 4]); wq.cap = G(14, 4 + 8 * j); ops.append(wq)
        ops += qk_seq(n, first)
        if first:
            x = 0
            for j in range(4):
                for s_ in range(4):
                    for o in q_copy(1, j, s_):
                        o.cap = G(14, 10 + 8 * j) + ((x % 16) * Cfg.qcopy_span) // 16; x += 1
                        ops.append(o)
        extra_bar_reads = []
        if pass0 and i % 2 == 0 and i <= 12 and not (i == 0 and Cfg.k_first == 4):
            w = wait("waitv", kd[i + 2] + kd[i + 3]); ops.append(w)
            W_ = 64 + XS[0]
            if i > 2 or (i == 2):
                w.cap = G(i - 2, Cfg.bar_gap + Cfg.kb_off); w.minGap = w.cap
                span = 2 * W_ - Cfg.kb_off - 8
            else:
                w.cap = 0; span = 30
            kb = k_build_ops(i + 2, 0) + k_build_ops(i + 3, 1)
            for x, o in enumerate(kb):
                if Cfg.kb_lazy and i >= 2:
                    o.cap = w.cap + 2 + Cfg.kb_slack + (x * (span - Cfg.kb_slack)) // len(kb)
                else:
                    o.cap = w.cap + 2 + (x * span) // len(kb)
                    o.minGap = o.cap - 2
            ops += kb
            wr = [o for o in kb if o.kind == "ldsw"]
            ops.append(wait("waitl", wr))
            extra_bar_reads = [f"ps:kws{t}_{h}" for t in (i + 2, i + 3) for h in (0, 1)]
        if i % 2 == 0:
            cov = []
            for t in (i, i + 1):
                if t in dmas: cov += dmas[t]
            wv = Op("", "waitv", [], [f"ps:vw{i}"], covers=cov)
            wv.name = f"vw{i}"
            if i > 0:
                for c in cov: wv.deps.append((c, 0, 0))
            wv.cap = G(i, Cfg.bar_gap - 1)
            ops.append(wv)
            wr = [f"ps:vready{i // 2 % 2}", f"ps:vfree{(i // 2 + 1) % 2}", f"ps:kbar{i}"]
            bar = Op("s_barrier", "bar", [f"ps:vw{i}", "ps:vused"] + extra_bar_reads + (["ps:q0done"] if (pass0 and i == 0 and Cfg.q0dma) else []), wr)
            bar.cap = G(i, Cfg.bar_gap); bar.minGap = G(i, Cfg.bar_gap - 2)
            ops.append(bar)
            x = 0
            for t in (i + 2, i + 3):
                d = dma_ops(t % 16)
                for o in d:
                    o.cap = G(i, Cfg.bar_gap + 2 + 2 * x); x += 1
                ops += d
                dmas[t] = [o for o in d if o.kind == "dma"]
            if i == 14: late = dmas[16] + dmas[17]
            if not pass0 and Cfg.touch_all:
                d = touch_ops((i + Cfg.touch_ahead) % 16)
                for o in d:
                    o.cap = G(i, Cfg.bar_gap + 2 + 2 * x); x += 1
                    o.reads.append(f"ps:kbar{i}")
                ops += d
            if pass0:
                if i + 8 < 16 and not Cfg.kall:
                    for t in (i + 8, i + 9):
                        d = k_dma_ops(t)
                        for o in d:
                            o.cap = G(i, Cfg.bar_gap + 2 + 2 * x); x += 1
                            if o.kind == "dma": o.reads.append(f"ps:kbar{i}")
                        ops += d; kd[t] = [o for o in d if o.kind == "dma"]
                if i + 8 < 16 or Cfg.touch_all:
                    d = touch_ops((i + 8) % 16)
                    for o in d:
                        o.cap = G(i, Cfg.bar_gap + 2 + 2 * x); x += 1
                        o.reads.append(f"ps:kbar{i}")
                    ops += d
        if pass0 and Cfg.pf and Cfg.pf2 and i == Cfg.pf2:
            for h in range(2):
                o = Op(f"global_load_dword a254, v{vPF}, s[80:81] offset:{64*h}", "vld", [V(vPF)], [A(254)])
                o.minGap = G(i, Cfg.bar_gap + 24 + 4 * h); o.cap = o.minGap + 2
                ops.append(o)
        kr = k_reads((n + 1) % 16, 0) + k_reads((n + 1) % 16, 1)
        if pass0 and n + 1 < 16:
            tb = n + 1
            bi = (tb - 2) // 2 * 2
            for o in kr: o.reads.append(f"ps:kbar{bi}")
        ops += kr
        for j in range(4):
            for kvt in range(2):
                ops += sm_ops(n, kvt, j)
        ops += sum_ops(i)
        for dt in range(8):
            vr = v_reads(i, dt)
            ops += vr
            w = wait("waitl", vr)
            if dt == 7: w.writes.append("ps:vused")
            ops.append(w)
            pv = pv_ops(i, dt)
            if i == 15 and dt == 7: pv[-1].writes.append("ps:nomfma")
            ops += pv
        if kr:
            ops.append(wait("waitl", kr[:4]))
            if len(kr) > 4: ops.append(wait("waitl", kr[4:]))
        if i == 4:
            qraw = q_raw_loads(1)
            for x, o in enumerate(qraw):
                if Cfg.interleave == 2:
                    e, k = Cfg.q_plan[x]
                    o.minGap = G(2 * e, Cfg.bar_gap + 12) + k * Cfg.win_space
                elif pass0: o.minGap = G(Cfg.q_start0, 0) + Cfg.q_space0 * x
                elif Cfg.interleave: o.minGap = 2 + Cfg.st_space * x + Cfg.st_space // 2
                else: o.minGap = G(Cfg.q_start, 0) + Cfg.q_space * x
                o.cap = o.minGap + 4
            ops += qraw
    ops += epilogue_ops(15)
    ops += next_offsets_ops()
    return ops, late

ABL = set()
def emit(ops):
    lines = []
    for o in ops:
        t = optext(o)
        if t is None: continue
        if o.kind in ABL: continue
        lines.append("    " + t)
    return "\n".join(lines) + "\n"

T0, T1, T2, T3 = TMP + 8, TMP + 9, TMP + 10, TMP + 11
def fswz(dst, src, tmp):
    return f"    v_lshlrev_b32 v{tmp}, 1, v{src}\n    v_lshrrev_b32 v{dst}, v{tmp}, v{vTHR}\n    v_and_b32 v{dst}, 3, v{dst}\n"

def emit_fix(ops):
    lines = []
    for i, o in enumerate(ops):
        if o.kind == "dma" and i > 0 and "m0" in ops[i - 1].writes: lines.append("    s_nop 0")
        lines.append("    " + o.text)
    return "\n".join(lines) + "\n" if lines else ""

def prologue_text():
    c = f32bits(CSCALE)
    s = f"""
    s_cmp_ge_u32 s2, 256
    s_cbranch_scc1 L_end
    s_load_dwordx4 s[4:7], s[0:1], 0
    s_load_dwordx4 s[8:11], s[0:1], 16
PREFETCH
    v_and_b32 v{T0}, 63, v0                     ; lane
    v_lshrrev_b32 v{T1}, 6, v0                  ; wave
    v_mov_b32 v{vTHR}, 0x78                     ; lookup for f = (0,2,3,1)
    v_readfirstlane_b32 s{sW}, v{T1}
    ; i = lane%16, g = lane/16
    v_and_b32 v{T1}, 15, v{T0}
    v_lshrrev_b32 v{T2}, 4, v{T0}
    v_lshlrev_b32 v{vQO}, 8, v{T1}
    v_lshl_add_u32 v{vQO}, v{T2}, 4, v{vQO}     ; vQO = i*256 + g*16
    ; vK0 = (4i + (g ^ f(i>>2)))*16
    v_lshrrev_b32 v{T3}, 2, v{T1}
""" + fswz(T3, T3, TMP) + f"""
    v_xor_b32 v{T3}, v{T3}, v{T2}
    v_lshl_add_u32 v{T3}, v{T1}, 2, v{T3}
    v_lshlrev_b32 v{vK0}, 4, v{T3}
    v_add_u32 v{vK1}, 0x10000, v{vK0}
    ; vDMA = g*256 + ((i) ^ (g<<2))*16
    v_lshlrev_b32 v{T3}, 2, v{T2}
    v_xor_b32 v{T3}, v{T3}, v{T1}
    v_lshlrev_b32 v{T3}, 4, v{T3}
    v_lshl_add_u32 v{vDMA}, v{T2}, 8, v{T3}
    ; vQL: i' = lane>>2, x = lane&3 : i'*256 + ((x ^ f(i'>>2))<<4)
    v_lshrrev_b32 v{T1}, 4, v{T0}               ; i'>>2 = lane>>4
""" + fswz(T1, T1, TMP) + f"""
    v_and_b32 v{T3}, 3, v{T0}
    v_xor_b32 v{T1}, v{T1}, v{T3}
    v_lshlrev_b32 v{T1}, 4, v{T1}
    v_lshrrev_b32 v{T3}, 2, v{T0}
    v_lshl_add_u32 v{vQL}, v{T3}, 8, v{T1}
    ; V tr-read addresses: g=lane>>4, r=(lane>>2)&3, c=lane&3 : LDS_V + (4g+r)*256 + ((u^r)<<6) + 16c
    v_bfe_u32 v{T1}, v{T0}, 2, 2                ; r
    v_and_b32 v{T3}, 3, v{T0}                   ; c
    v_lshl_add_u32 v{T2}, v{T2}, 2, v{T1}       ; 4g+r
    v_lshlrev_b32 v{T2}, 8, v{T2}
    v_lshl_add_u32 v{T2}, v{T3}, 4, v{T2}
    v_add_u32 v{T2}, {LDS_V}, v{T2}
"""
    for u in range(4):
        s += f"    v_xor_b32 v{T3}, {u}, v{T1}\n    v_lshl_add_u32 v{vV[u]}, v{T3}, 6, v{T2}\n"
    s += f"""
    v_lshlrev_b32 v{vTCH}, 7, v{T0}             ; lane*128
    v_lshlrev_b32 v{T0}, 4, v{T0}               ; lane*16
    ; workgroup -> (group, half)
    s_and_b32 s{sT0}, s2, 7
    s_lshr_b32 s{sT1}, s2, 3
    s_lshl_b32 s{sT0}, s{sT0}, 4
    s_lshr_b32 s52, s{sT1}, 1
    s_add_u32 s{sT0}, s{sT0}, s52              ; group
    s_and_b32 s{sT1}, s{sT1}, 1                ; half
    s_lshl_b32 s{sKB}, s{sT0}, 17              ; group * 131072
    s_mul_i32 s{sQB}, s{sT0}, {1984 * 256}
    s_mul_i32 s52, s{sT1}, {992 * 256}
    s_add_u32 s{sQB}, s{sQB}, s52
    s_mul_i32 s53, s{sT1}, {Cfg.rot * 8192}      ; rotation
    s_mul_i32 s83, s{sT1}, {131072 - Cfg.rot * 8192}
    s_mov_b32 s84, s{sT1}                       ; half
    s_lshl_b32 s{sT0}, s{sW}, 11               ; w*2048
    s_add_u32 s{sVB}, s{sKB}, s{sT0}
    s_sub_u32 s{sVBH}, s{sVB}, s83
    s_add_u32 s{sVB}, s{sVB}, s53
    s_add_u32 s{sM0B}, s{sT0}, {LDS_V}
    s_mov_b32 s{sC}, {c:#x}
    s_mov_b32 s{sOOB}, 0x80000000
    s_mov_b64 s[{sFLAG}:{sFLAG+1}], 0
    s_mov_b32 s{sPASS}, 0
    s_lshl_b32 s{sROW}, s{sW}, 6
"""
    for j in range(4):
        s += f"    s_add_u32 s{sT0}, s{sROW}, {16*j}\n    s_lshl_b32 s{sT0}, s{sT0}, 8\n    s_add_u32 s{sQ[j]}, s{sT0}, s{sQB}\n    s_mov_b32 s{sO[j]}, s{sOOB}\n"
    s += f"""    s_lshr_b32 s{sT0}, s{sW}, 1
    s_lshl_b32 s{sT0}, s{sT0}, 13
    s_and_b32 s{sT1}, s{sW}, 1
    s_lshl_b32 s{sT1}, s{sT1}, 6
    s_add_u32 s{sT0}, s{sT0}, s{sT1}
    s_add_u32 s{sTL}, s{sT0}, s{sKB}
    s_sub_u32 s{sTH}, s{sTL}, s83
    s_add_u32 s{sTL}, s{sTL}, s53
"""
    s += f"""
    s_lshr_b32 s{sT0}, s{sW}, 1
    s_lshl_b32 s{sT0}, s{sT0}, 12
    s_and_b32 s{sT1}, s{sW}, 1
    s_lshl_b32 s52, s{sT1}, 7
    s_add_u32 s{sKL}, s{sKB}, s{sT0}
    s_add_u32 s{sKL}, s{sKL}, s52
    s_sub_u32 s{sKH}, s{sKL}, s83
    s_add_u32 s{sKL}, s{sKL}, s53
    s_lshl_b32 s{sT1}, s{sT1}, 11
    s_add_u32 s{sKM}, s{sT0}, s{sT1}
    v_add_u32 v{vKW[0]}, s{sKM}, v{T0}
    v_add_u32 v{vKW[1]}, 0x10000, v{vKW[0]}
    s_lshl_b32 s{sQM}, s{sW}, 14
    s_add_u32 s{sQM}, s{sQM}, 0x10000
    v_add_u32 v{vPF2}, s{sQM}, v{vK0}
    v_mov_b32 v{vTHR}, 0x3f803f80
    v_accvgpr_write_b32 a{ONES}, v{vTHR}
    v_accvgpr_write_b32 a{ONES+1}, v{vTHR}
    v_accvgpr_write_b32 a{ONES+2}, v{vTHR}
    v_accvgpr_write_b32 a{ONES+3}, v{vTHR}
    v_mov_b32 v{vTHR}, {f32bits(Cfg.thr):#x}
    s_waitcnt lgkmcnt(0)
"""
    for (srd, lo, size) in ((sSRD_Q, 4, Q_BYTES), (sSRD_K, 6, KV_BYTES), (sSRD_V, 8, KV_BYTES), (sSRD_O, 10, Q_BYTES)):
        s += f"    s_mov_b32 s{srd}, s{lo}\n    s_and_b32 s{srd+1}, s{lo+1}, 0xffff\n    s_mov_b32 s{srd+2}, {size}\n    s_mov_b32 s{srd+3}, 0x00020000\n"
    return s

LET = dict(valu="a", trans="E", perm="p", lds="L", vld="G", vst="Z", dma="D", salu="s", waitl="w", waitv="W", bar="B", nop="n", ldsw="l")
def show(ops):
    gaps = []; cur = None
    for o in ops:
        if o.kind == "mfma":
            cur = []; gaps.append(cur)
        elif o.kind != "phantom" and cur is not None:
            cur.append(LET[o.kind])
    tot = 0
    W = 64 + XS[0]
    for i in range(0, len(gaps), W):
        row = gaps[i:i + W]
        c = 0
        for g in row:
            v = sum(8 if x == "E" else 4 for x in g if x in "aEp")
            nm = [x for x in g if x not in "aEp"]
            mem = [x for x in nm if x in "LGZDl"]
            cost = 4 + max(4, 4 * len(nm) + (4 if mem else 0) - (4 if (mem and v == 0) else 0)) + v
            c += max(16.5, cost)
        tot += c
        print(f"it{i//W:2d} est {c:6.0f}: " + " ".join("".join(g) if g else "-" for g in row))
    print("est total", tot)

vST0, vST1 = 250, 251
def stamp_setup():
    return f"""    s_load_dwordx2 s[54:55], s[0:1], 40
    s_waitcnt lgkmcnt(0)
    s_mov_b32 s56, s54
    s_and_b32 s57, s55, 0xffff
    s_mov_b32 s58, 0x10000000
    s_mov_b32 s59, 0x00020000
    s_lshl_b32 s60, s2, 2
    s_add_u32 s60, s60, s{sW}
    s_lshl_b32 s60, s60, 8
"""
def stamp(i, dyn=False):
    t = f"""    s_memrealtime s[62:63]
    s_memtime s[64:65]
    s_waitcnt lgkmcnt(0)
    v_mov_b32 v250, s62
"""
    so = "s60"
    if dyn:
        t += f"    s_lshl_b32 s61, s{sPASS}, 2\n    s_add_u32 s61, s61, s60\n"; so = "s61"
    t += f"    buffer_store_dword v250, off, s[56:59], {so} offset:{4*i}\n    s_nop 3\n    v_mov_b32 v250, s64\n    buffer_store_dword v250, off, s[56:59], {so} offset:{4*i+128}\n"
    return t

def slow_path_text():
    t = []
    A_ = t.append
    vKa, vVa, vMx = TMP, TMP + 1, TMP + 2
    vL = TMP + 6
    vU = TMP + 10
    sT, sP, sSo, sVs = 78, 79, 85, 86
    A_("L_slow:")
    A_("    s_waitcnt vmcnt(0) lgkmcnt(0)")
    A_(f"    v_mbcnt_lo_u32_b32 v{vU}, -1, 0")
    A_(f"    v_mbcnt_hi_u32_b32 v{vU}, -1, v{vU}")
    A_(f"    v_lshrrev_b32 v{vVa}, 4, v{vU}")
    A_(f"    v_lshlrev_b32 v{vVa}, 10, v{vVa}")
    A_(f"    v_bfe_u32 v{vU+1}, v{vU}, 2, 2")
    A_(f"    v_lshl_add_u32 v{vVa}, v{vU+1}, 4, v{vVa}")
    A_(f"    v_and_b32 v{vU+1}, 3, v{vU}")
    A_(f"    v_lshl_add_u32 v{vVa}, v{vU+1}, 1, v{vVa}")
    A_(f"    s_lshl_b32 s{sROW}, s{sW}, 6")
    A_(f"    s_mov_b32 s{sP}, 0")
    A_("L_slow_pass:")
    for j in range(4):
        A_(f"    s_add_u32 s{sT0}, s{sROW}, {16*j}")
        A_(f"    s_lshl_b32 s{sT1}, s{sT0}, 8")
        A_(f"    s_add_u32 s{sT1}, s{sT1}, s{sQB}")
        A_(f"    s_cmp_lt_u32 s{sT0}, 992")
        A_(f"    s_cselect_b32 s{sQ[j]}, s{sT1}, s{sOOB}")
    for j in range(4):
        for ss in range(4):
            A_(f"    buffer_load_dwordx4 a[{Q_(j,ss)}:{Q_(j,ss)+3}], v{vQO}, s[{sSRD_Q}:{sSRD_Q+3}], s{sQ[j]} offen offset:{64*ss}")
    for j in range(4): A_(f"    v_mov_b32 v{vMx+j}, 0xff800000")
    A_("    s_waitcnt vmcnt(0)")
    def kload():
        for kvt in range(2):
            for ss in range(4):
                A_(f"    ds_read_b128 a[{KF_(kvt,ss)}:{KF_(kvt,ss)+3}], v{vKa} offset:{kvt*4096+ss*1024}")
        A_("    s_waitcnt lgkmcnt(0)")
    def qk(usenm):
        for kvt in range(2):
            for j in range(4):
                for ss in range(4):
                    d = S_(kvt, j)
                    c = (f"v[{NM_(j)}:{NM_(j)+3}]" if usenm else "0") if ss == 0 else f"v[{d}:{d+3}]"
                    A_(f"    v_mfma_f32_16x16x32_bf16 v[{d}:{d+3}], a[{KF_(kvt,ss)}:{KF_(kvt,ss)+3}], a[{Q_(j,ss)}:{Q_(j,ss)+3}], {c}")
        A_("    s_nop 15")
    A_(f"    v_mov_b32 v{vKa}, v{vK0}")
    A_(f"    s_mov_b32 s{sT}, 0")
    A_("L_slow_max:")
    kload(); qk(False)
    for j in range(4):
        for kvt in range(2):
            d = S_(kvt, j)
            A_(f"    v_max3_f32 v{vMx+j}, v{vMx+j}, v{d}, v{d+1}")
            A_(f"    v_max3_f32 v{vMx+j}, v{vMx+j}, v{d+2}, v{d+3}")
    A_(f"    v_add_u32 v{vKa}, 8192, v{vKa}")
    A_(f"    s_add_u32 s{sT}, s{sT}, 1")
    A_(f"    s_cmp_lt_u32 s{sT}, 16")
    A_("    s_nop 7")
    A_("    s_cbranch_scc1 L_slow_max")
    def xlane(reg, op):
        for sw in ("v_permlane16_swap_b32", "v_permlane32_swap_b32"):
            A_(f"    v_mov_b32 v{vU}, v{reg}")
            A_("    s_nop 1")
            A_(f"    {sw} v{reg}, v{vU}")
            A_("    s_nop 1")
            A_(f"    {op} v{reg}, v{reg}, v{vU}")
    for j in range(4):
        xlane(vMx + j, "v_max_f32")
        for i in range(4): A_(f"    v_sub_f32 v{NM_(j)+i}, 0, v{vMx+j}")
        A_(f"    v_mov_b32 v{vL+j}, 0")
    for r in range(128): A_(f"    v_mov_b32 v{r}, 0")
    A_(f"    v_mov_b32 v{vKa}, v{vK0}")
    A_(f"    s_mov_b32 s{sT}, 0")
    A_("L_slow_pv:")
    A_(f"    s_mul_i32 s{sVs}, s84, {Cfg.rot}")
    A_(f"    s_add_u32 s{sVs}, s{sVs}, s{sT}")
    A_(f"    s_and_b32 s{sVs}, s{sVs}, 15")
    A_(f"    s_lshl_b32 s{sVs}, s{sVs}, 13")
    A_(f"    s_add_u32 s{sVs}, s{sVs}, s{sKB}")
    A_(f"    s_add_u32 s{sSo}, s{sVs}, 4096")
    kload(); qk(True)
    for j in range(4):
        for kvt in range(2):
            d = S_(kvt, j)
            for i in range(4): A_(f"    v_exp_f32 v{d+i}, v{d+i}")
            A_("    s_nop 0")
            for h in range(2): A_(f"    v_cvt_pk_bf16_f32 v{P_(0,j)+2*kvt+h}, v{d+2*h}, v{d+2*h+1}")
            for i in range(4): A_(f"    v_add_f32 v{vL+j}, v{vL+j}, v{d+i}")
    raw = P_(1, 0); pk = P_(1, 2)
    for dt in range(8):
        u, b = dt // 2, dt % 2
        for kvt in range(2):
            so = sVs if kvt == 0 else sSo
            for r in range(4):
                A_(f"    buffer_load_ushort v{raw + 4*kvt + r}, v{vVa}, s[{sSRD_V}:{sSRD_V+3}], s{so} offen offset:{r*256 + (32*u + 4*b)*2}")
        A_("    s_waitcnt vmcnt(0)")
        for h in range(4):
            A_(f"    v_lshl_or_b32 v{pk + h}, v{raw + 2*h + 1}, 16, v{raw + 2*h}")
        A_("    s_nop 1")
        for j in range(4):
            o = O_(dt, j)
            A_(f"    v_mfma_f32_16x16x32_bf16 v[{o}:{o+3}], v[{pk}:{pk+3}], v[{P_(0,j)}:{P_(0,j)+3}], v[{o}:{o+3}]")
        A_("    s_nop 7")
    A_(f"    v_add_u32 v{vKa}, 8192, v{vKa}")
    A_(f"    s_add_u32 s{sT}, s{sT}, 1")
    A_(f"    s_cmp_lt_u32 s{sT}, 16")
    A_("    s_nop 15")
    A_("    s_cbranch_scc1 L_slow_pv")
    for j in range(4):
        xlane(vL + j, "v_add_f32")
        A_(f"    v_rcp_f32 v{vL+j}, v{vL+j}")
    A_("    s_nop 1")
    for u in range(4):
        for j in range(4):
            tb = S_(0, 0) + 4 * ((u * 4 + j) % 8)
            for b in range(2):
                o = O_(2 * u + b, j)
                for i in range(4): A_(f"    v_mul_f32 v{o+i}, v{o+i}, v{vL+j}")
                for h in range(2): A_(f"    v_cvt_pk_bf16_f32 v{tb+2*b+h}, v{o+2*h}, v{o+2*h+1}")
            A_(f"    buffer_store_dwordx4 v[{tb}:{tb+3}], v{vQO}, s[{sSRD_O}:{sSRD_O+3}], s{sQ[j]} offen offset:{64*u}")
            A_("    s_nop 1")
    A_("    s_waitcnt vmcnt(0)")
    A_(f"    s_add_u32 s{sROW}, s{sROW}, 256")
    A_(f"    s_add_u32 s{sP}, s{sP}, 1")
    A_(f"    s_cmp_lt_u32 s{sP}, 4")
    A_("    s_cbranch_scc1 L_slow_pass")
    A_("    s_endpgm")
    txt = "\n".join(t) + "\n"
    return txt

def SLOWV(dt): return VF_(dt)

def main():
    ap = argparse.ArgumentParser()
    ap.add_argument("-o", default="standalone__gqa_softmax__near_ridge.s")
    ap.add_argument("--backlog", type=int, default=3)
    ap.add_argument("--lead", type=int, default=7)
    ap.add_argument("--show", action="store_true")
    ap.add_argument("--stamp", action="store_true")
    ap.add_argument("--stflags", default="")
    ap.add_argument("--qflags", default="")
    ap.add_argument("--kflags", default="")
    ap.add_argument("--vflags", default="")
    ap.add_argument("--abl", default="")
    ap.add_argument("--rot", type=int, default=0)
    ap.add_argument("--tflags", default="")
    ap.add_argument("--plan", type=int, default=0)
    ap.add_argument("--initmin", type=int, default=0)
    ap.add_argument("--align", default="")
    ap.add_argument("--padbody", type=int, default=0)
    ap.add_argument("--padb0", type=int, default=0)
    ap.add_argument("--noq0dma", action="store_true")
    ap.add_argument("--kboff", type=int, default=12)
    ap.add_argument("--horizon", type=int, default=10 ** 9)
    ap.add_argument("--kblazy", type=int, default=-1)
    ap.add_argument("--pf2", type=int, default=10)
    ap.add_argument("--stj", action="store_true")
    ap.add_argument("--kall", action="store_true")
    ap.add_argument("--simple", action="store_true")
    ap.add_argument("--kahead", type=int, default=6)
    ap.add_argument("--kissue", type=int, default=2)
    ap.add_argument("--winspace", type=int, default=9)
    ap.add_argument("--nointer", action="store_true")
    ap.add_argument("--touchall", action="store_true")
    ap.add_argument("--qstart0", type=int, default=3)
    ap.add_argument("--qspace0", type=int, default=40)
    ap.add_argument("--initx", type=int, default=1)
    ap.add_argument("--x", type=int, default=0)
    ap.add_argument("--x0", type=int, default=0)
    ap.add_argument("--kfirst", type=int, default=4)
    ap.add_argument("--kbnovalu", action="store_true")
    ap.add_argument("--stampbar", action="store_true")
    ap.add_argument("--pf", type=int, default=6)
    ap.add_argument("--nopk", action="store_true")
    ap.add_argument("--stspace", type=int, default=14)
    ap.add_argument("--qstart", type=int, default=5)
    ap.add_argument("--qspace", type=int, default=24)
    ap.add_argument("--bargap", type=int, default=11)
    args = ap.parse_args()
    for x in args.abl.split(","):
        if x: ABL.add(x)
    Cfg.backlog = args.backlog; Cfg.lds_lead = args.lead
    Cfg.pf = args.pf
    Cfg.t_flags = (' ' + args.tflags) if args.tflags else ''
    Cfg.kb_novalu = args.kbnovalu
    Cfg.k_first = args.kfirst
    Cfg.q_start0 = args.qstart0; Cfg.q_space0 = args.qspace0
    if args.kall:
        Cfg.kall = True
        Cfg.init_extra = [("k", t) for t in range(4, 16)] + [("t", 2)]
        Cfg.early_list = [("t", 4), ("t", 6)]
    elif args.initx == 0:
        Cfg.early_list = Cfg.init_extra + Cfg.early_list; Cfg.init_extra = []
    elif args.initx == 2:
        Cfg.init_extra = Cfg.init_extra + Cfg.early_list; Cfg.early_list = []
    Cfg.touch_all = args.touchall
    if args.nointer: Cfg.interleave = 0
    if args.plan == 1:
        Cfg.interleave = 2
        Cfg.st_plan = [(n // 6, n % 6) for n in range(16)]
        Cfg.q_plan = [(3 + n // 6, n % 6) for n in range(16)]
    if args.plan == 2:
        Cfg.interleave = 2
        Cfg.st_plan = [(n // 6, n % 6) for n in range(16)]
        Cfg.q_plan = [(2, 4), (2, 5)] + [(3 + n // 5, n % 5) for n in range(14)]
    Cfg.win_space = args.winspace
    Cfg.simple = args.simple; Cfg.k_ahead = args.kahead; Cfg.k_issue = args.kissue
    Cfg.st_jmajor = args.stj
    Cfg.pf2 = args.pf2
    Cfg.horizon = args.horizon
    if args.kblazy >= 0: Cfg.kb_lazy = True; Cfg.kb_slack = args.kblazy
    Cfg.kb_off = args.kboff
    Cfg.q0dma = not (args.noq0dma or args.simple or args.kall or args.initx == 2)
    Cfg.pad_body = args.padbody; Cfg.pad_b0 = args.padb0
    Cfg.init_min = args.initmin
    Cfg.rot = args.rot; Cfg.pkmul = not args.nopk
    Cfg.st_space = args.stspace; Cfg.q_start = args.qstart; Cfg.q_space = args.qspace; Cfg.bar_gap = args.bargap
    Cfg.st_flags = (" " + args.stflags) if args.stflags else ""
    Cfg.q_flags = (" " + args.qflags) if args.qflags else ""
    Cfg.k_flags = (" " + args.kflags) if args.kflags else ""
    Cfg.v_flags = (" " + args.vflags) if args.vflags else ""

    def pol(k, remaining, ready, emit_, state):
        state["backlog"] = Cfg.backlog
        state["horizon"] = Cfg.horizon
        default_policy(k, remaining, ready, emit_, state)
    noff0 = next_offsets_ops()
    tail = parked_stores(15)
    if Cfg.simple:
        XS[0] = args.x
        init_ops = []
        body0, vd0 = build_simple_prologue()
        body, late = build_body(False, None)
        for o in body:
            if o.kind == "waitv" and o.name == "vw0": o.covers = vd0 + late
        body0_sched = schedule(body0, pol, verbose=True)
        body_sched = schedule(body, pol, verbose=True)
        setx = Op("", "valu", [], regs("a", X_(0), 64), None, {r: ("OX", -1, None, u, j) for u in range(4) for j in range(4) for r in regs("a", X_(u * 4 + j), 4)})
        trace = [(body0_sched, 0), ([setx], 0), (noff0, 0)] + [(body_sched, p) for p in range(0, 4)] + [(tail, 3)]
    else:
        init_ops, info = init_issue_ops()
        XS[0] = args.x0
        body0, late0 = build_body(True, info)
        XS[0] = args.x
        body, late = build_body(False, None)
        for o in body:
            if o.kind == "waitv" and o.name == "vw0": o.covers = late0 + late
        body0_sched = schedule(body0, pol, verbose=True)
        body_sched = schedule(body, pol, verbose=True)
        trace = [(init_ops, 0), (noff0, 0), (body0_sched, 0)] + [(body_sched, p) for p in range(1, 4)] + [(tail, 3)]
    resolve_waits(trace)
    errs = check_trace(trace)
    for e in errs[:40]: print("ERR", e)
    print("errors:", len(errs))
    nm = sum(1 for o in body_sched if o.kind == "mfma")
    print("body instrs:", sum(1 for o in body_sched if o.kind != "phantom"), "mfma:", nm, " body0 instrs:", sum(1 for o in body0_sched if o.kind != "phantom"))
    if args.show:
        XS[0] = args.x0; show(body0_sched); XS[0] = args.x; show(body_sched)

    s = f"""; GQA attention forward, bf16, B=16 Hq=32 Hkv=8 Sq=496 Sk=512 D=128  (written by the author's own generator, gen/gen.py)
; @launch grid=(256,1,1) block=(256,1,1) lds=163840
.amdgcn_target "amdgcn-amd-amdhsa--gfx950"
.text
.globl {KNAME}
.p2align 8
.type {KNAME},@function
{KNAME}:
"""
    pt = prologue_text()
    pf = ""
    if Cfg.pf:
        first_end = "L_code_end" if (Cfg.simple or not Cfg.pf2) else "L_pass"
        pf = f"""    s_getpc_b64 s[80:81]
L_pc:
    v_lshlrev_b32 v{TMP+12}, {Cfg.pf}, v0
    s_mov_b32 s82, {first_end}-L_pc-4
"""
        step = 256 << Cfg.pf
        nbytes = Cfg.code_bytes if first_end == "L_code_end" else 36000
        for i in range((nbytes + step - 1) // step):
            pf += f"    v_min_u32 v{TMP+13}, s82, v{TMP+12}\n    global_load_dword v{TMP+14+i%4}, v{TMP+13}, s[80:81]\n    v_add_u32 v{TMP+12}, {step}, v{TMP+12}\n"
        if Cfg.pf2:
            pf += f"""    v_lshlrev_b32 v{vPF}, 7, v0
    v_add_u32 v{vPF}, L_pass-L_pc, v{vPF}
    s_mov_b32 s82, L_code_end-L_pc-68
    v_min_u32 v{vPF}, s82, v{vPF}
"""
    pt = pt.replace("PREFETCH\n", pf)
    if args.stamp:
        a, b = pt.split("    ; workgroup -> (group, half)")
        pt = a + stamp_setup() + stamp(0) + "    ; workgroup -> (group, half)" + b
    s += pt
    s += emit_fix(init_ops)
    if not Cfg.simple: s += emit(noff0)
    if args.stamp: s += stamp(1)
    b0 = "    s_nop 0\n" * Cfg.pad_b0 + emit(body0_sched)
    if args.align:
        from align8 import align_block
        b0, n = align_block(b0, args.align); print("promoted (body0):", n)
        b0 = ".p2align 3\n" + b0
    if args.stamp and args.stampbar:
        parts = b0.split("    s_barrier\n")
        b0 = parts[0]
        for k, p_ in enumerate(parts[1:]):
            b0 += "    s_barrier\n" + stamp(8 + k) + p_
    s += b0
    if Cfg.simple: s += emit(noff0)
    if args.stamp: s += stamp(2)
    s += f"    s_mov_b32 s{sPASS}, {0 if Cfg.simple else 1}\n"
    s += ".p2align 6\nL_pass:\n" + "    s_nop 0\n" * Cfg.pad_body
    b1 = emit(body_sched)
    if args.align:
        b1, n = align_block(b1, args.align); print("promoted (body):", n)
    if args.stamp and args.stampbar:
        parts = b1.split("    s_barrier\n")
        b1 = stamp(18) + parts[0]
        for k, p_ in enumerate(parts[1:]):
            b1 += "    s_barrier\n" + stamp(19 + k) + p_
        idx = b1.rindex("    v_mfma")
        idx = b1.index("\n", idx) + 1
        b1 = b1[:idx] + stamp(27) + b1[idx:] + stamp(28)
    s += b1
    if args.stamp: s += stamp(3 if Cfg.simple else 2, dyn=True)
    s += f"""    s_add_u32 s{sPASS}, s{sPASS}, 1
    s_cmp_lt_u32 s{sPASS}, 4
    s_cbranch_scc1 L_pass
"""
    s += emit(tail)
    if args.stamp: s += "    s_waitcnt vmcnt(0)\n" + stamp(7 if Cfg.simple else 6)
    s += f"""    s_cmp_lg_u64 s[{sFLAG}:{sFLAG+1}], 0
    s_cbranch_scc1 L_slow
L_end:
    s_endpgm
L_code_end:
"""
    s += slow_path_text()
    s += f"""
.section .rodata,"a"
.p2align 6
.amdhsa_kernel {KNAME}
  .amdhsa_next_free_vgpr 512
  .amdhsa_next_free_sgpr 88
  .amdhsa_accum_offset 256
  .amdhsa_group_segment_fixed_size 0
  .amdhsa_kernarg_size 48
  .amdhsa_user_sgpr_count 2
  .amdhsa_user_sgpr_kernarg_segment_ptr 1
  .amdhsa_system_sgpr_workgroup_id_x 1
.end_amdhsa_kernel
"""
    open(args.o, "w").write(s)

if __name__ == "__main__":
    main()
```

```python
import re

VALU_KINDS = ("valu", "trans", "perm")

class Op:
    __slots__ = ("text", "kind", "reads", "writes", "rtag", "wtag", "deps", "idx", "gap", "deadline",
                 "name", "covers", "prog", "succ", "lead", "minGap", "passes", "srcc", "extra", "cap")
    def __init__(self, text, kind, reads=(), writes=(), rtag=None, wtag=None, name="", covers=None,
                 lead=0, minGap=None, passes=4, srcc=()):
        self.text = text; self.kind = kind
        self.reads = list(reads); self.writes = list(writes)
        self.rtag = rtag or {}; self.wtag = wtag or {}
        self.deps = []
        self.succ = []
        self.idx = None; self.gap = None; self.deadline = None
        self.name = name; self.covers = covers or []
        self.prog = None; self.lead = lead; self.minGap = minGap
        self.passes = passes; self.srcc = list(srcc); self.extra = None; self.cap = None
    def __repr__(self):
        return f"<{self.kind} {self.text}>"

def regs(prefix, lo, n):
    return [f"{prefix}{lo + i}" for i in range(n)]

def rng(prefix, lo, n):
    return f"{prefix}[{lo}:{lo + n - 1}]" if n > 1 else f"{prefix}{lo}"

def waitstates(p, c, reg, typ):
    if not (reg[0] in "va" and reg[1:].isdigit()):
        if reg == "m0" and typ == "RAW" and c.kind == "dma": return 1
        if reg in ("vcc",) or (reg[0] == "s" and reg[1:].isdigit()):
            if typ == "RAW" and p.kind in VALU_KINDS:
                if c.kind in ("vld", "vst", "dma"): return 5
                if c.kind in VALU_KINDS: return 2
                return 4
        return 0
    if p.kind == "mfma":
        n = {2: 5, 4: 8, 8: 12, 16: 20}[p.passes]
        if typ == "RAW":
            if c.kind == "mfma":
                if reg in c.srcc and set(c.srcc) == set(p.writes) and c.passes == p.passes:
                    return 0
                if reg in c.srcc: return {2: 4, 4: 6, 8: 10, 16: 18}[p.passes]
                return n
            return n
        if typ == "WAW":
            if c.kind == "mfma":
                return {2: 4, 4: 6, 8: 10, 16: 18}[p.passes] if not (reg in c.srcc and set(c.srcc) == set(p.writes)) else 0
            return n
        if typ == "WAR":
            if reg in p.srcc and c.kind in VALU_KINDS: return {2: 1, 4: 3, 8: 7, 16: 15}[p.passes]
            return 0
    if p.kind in VALU_KINDS:
        if typ == "RAW":
            if c.kind == "mfma": return 2
            if c.kind == "perm": return 2
            if p.kind == "trans" and c.kind in VALU_KINDS: return 1
            if c.kind == "readlane": return 1
            return 0
        if typ == "WAW" and c.kind == "mfma": return 2
        return 0
    if p.kind == "vst" and typ == "WAR":
        return 2
    return 0

def build_deps(ops):
    lastw = {}; readers = {}
    for n, op in enumerate(ops):
        op.prog = n
        d = {}
        def add(p, ws, lead=0):
            if p is op: return
            k = id(p)
            if k in d:
                q = d[k]; d[k] = (p, max(q[1], ws), max(q[2], lead))
            else: d[k] = (p, ws, lead)
        for r in op.reads:
            if r in lastw:
                p = lastw[r]
                add(p, waitstates(p, op, r, "RAW"), p.lead if r.startswith("pend:") else 0)
        for w in op.writes:
            if w in lastw:
                p = lastw[w]; add(p, waitstates(p, op, w, "WAW"))
            for p in readers.get(w, ()):
                add(p, waitstates(p, op, w, "WAR"))
        for (p, ws, lead) in op.deps:
            add(p, ws, lead)
        op.deps = list(d.values())
        for r in op.reads: readers.setdefault(r, []).append(op)
        for w in op.writes:
            lastw[w] = op; readers[w] = []
    for op in ops:
        op.succ = []
    for op in ops:
        for (p, ws, lead) in op.deps:
            p.succ.append((op, ws, lead))

def schedule(ops, policy, verbose=False):
    build_deps(ops)
    mf = [o for o in ops if o.kind == "mfma"]
    for k, m in enumerate(mf): m.deadline = k
    INF = len(mf) + 10 ** 6
    for op in reversed(ops):
        if op.kind == "mfma":
            continue
        dl = INF + op.prog
        for (c, ws, lead) in op.succ:
            if c.kind == "mfma":
                dl = min(dl, c.deadline - 1 - lead - (1 if ws > 2 else 0) - (ws // 3 if ws > 2 else 0))
            else:
                dl = min(dl, c.deadline - lead - (ws // 2))
        if op.cap is not None: dl = min(dl, op.cap)
        op.deadline = dl
    out = []
    placed = set()
    fillers = [o for o in ops if o.kind != "mfma"]
    remaining = list(fillers)
    state = dict(gap=-1, bump=0)
    def ready(o):
        for (p, ws, lead) in o.deps:
            if id(p) not in placed: return False
            if len(out) - p.idx - 1 < ws: return False
            if state["gap"] + state["bump"] - p.gap < lead: return False
        if o.minGap is not None and state["gap"] < o.minGap: return False
        return True
    def deps_placed(o):
        return all(id(p) in placed for (p, _, _) in o.deps)
    def emit(o):
        o.idx = len(out); o.gap = state["gap"] + state["bump"]; out.append(o); placed.add(id(o))
        if o.kind != "mfma": remaining.remove(o)
    def nop(n):
        o = Op(f"s_nop {n-1}", "nop"); o.extra = n
        o.idx = len(out); o.gap = state["gap"]; out.append(o)
        for _ in range(n - 1):
            z = Op("", "phantom"); z.idx = len(out); z.gap = state["gap"]; out.append(z)
    def force(target):
        guard = 0
        while not ready(target):
            guard += 1
            assert guard < 100000, f"stuck on {target}"
            need = []
            stack = [target]; seen = set()
            while stack:
                x = stack.pop()
                for (p, _, _) in x.deps:
                    if id(p) not in placed and id(p) not in seen:
                        seen.add(id(p)); need.append(p); stack.append(p)
            cand = [o for o in need if o.kind != "mfma" and ready(o)]
            if cand:
                cand.sort(key=lambda o: (o.deadline, o.prog)); emit(cand[0]); continue
            assert not any(o.kind == "mfma" and o is not target for o in need) or True
            cand = [o for o in remaining if ready(o) and o.kind in VALU_KINDS + ("lds", "salu")]
            if cand and False:
                cand.sort(key=lambda o: (o.deadline, o.prog)); emit(cand[0]); continue
            hard = False
            xs = [target] + need
            miss = 0
            for x in xs:
                if deps_placed(x):
                    for (p, ws, lead) in x.deps:
                        miss = max(miss, 0)
                        m = ws - (len(out) - p.idx - 1)
                        if m > 0: miss = max(miss, m); hard = True
            if hard:
                nop(min(miss, 16))
            else:
                state["bump"] += 1
                state["bumps"] = state.get("bumps", 0) + 1
                for x in xs:
                    if x.minGap is not None and x.minGap > state["gap"] and deps_placed(x): x.minGap = state["gap"]
    for k, m in enumerate(mf):
        force(m)
        state["gap"] = max(state["gap"] + 1, 0)
        emit(m)
        m.extra = k
        policy(k, remaining, ready, emit, state)
    while remaining:
        cand = [o for o in remaining if ready(o)]
        if cand:
            cand.sort(key=lambda o: (o.deadline, o.prog)); emit(cand[0])
        else:
            o = min(remaining, key=lambda o: o.prog)
            force(o); emit(o)
    if verbose: print("gap bumps:", state.get("bumps", 0))
    return out

def default_policy(k, remaining, ready, emit, state):
    g = state["gap"]
    rd = [o for o in remaining if ready(o)]
    rd.sort(key=lambda o: (o.deadline, o.prog))
    mem = [o for o in rd if o.kind in ("lds", "vld", "vst", "dma", "ldsw")]
    sca = [o for o in rd if o.kind in ("salu", "waitl", "waitv", "bar")]
    E = [o for o in rd if o.kind == "trans"]
    aux = state.setdefault("lastE", -10)
    def due(o, slack): return o.deadline - g <= slack
    wantE = bool(E) and (g - state["lastE"] >= 2 or E[0].deadline <= g)
    bars = [o for o in sca if o.kind == "bar"]
    if wantE:
        s = [o for o in sca if o.kind != "bar" and (o.kind == "salu" or due(o, 2))]
        if s: emit(s[0])
        emit(E[0]); state["lastE"] = g
    else:
        budget = 2
        if bars and due(bars[0], 3):
            emit(bars[0]); budget = 1
        elif mem:
            emit(mem[0]); budget = 1
        else:
            s = [o for o in sca if o.kind != "bar" and (o.kind == "salu" or due(o, 2))]
            if s: emit(s[0])
        n = 0
        while n < budget:
            P = [o for o in remaining if o.kind in ("valu", "perm") and ready(o)]
            if not P: break
            P.sort(key=lambda o: (o.deadline, o.prog)); emit(P[0]); n += 1
        P = [o for o in remaining if o.kind in ("valu", "perm") and ready(o) and o.deadline - g <= state.get("horizon", 10 ** 9)]
        if len(P) >= state.get("backlog", 3):
            P.sort(key=lambda o: (o.deadline, o.prog)); emit(P[0])
    while True:
        late = [o for o in remaining if o.deadline <= g and ready(o)]
        if not late: break
        late.sort(key=lambda o: (o.deadline, o.prog)); emit(late[0])

def resolve_waits(trace_segments):
    lq = []
    vq = []
    for (ops, p) in trace_segments:
        for o in ops:
            if o.kind in ("lds", "ldsw"): lq.append(o)
            elif o.kind in ("vld", "vst", "dma"): vq.append(o)
            elif o.kind == "waitl":
                pos = [i for i, x in enumerate(lq) if any(x is c for c in o.covers)]
                if pos:
                    last = max(pos); n = len(lq) - 1 - last
                    lq = lq[last + 1:]
                else:
                    n = 15
                n = min(n, 15)
                o.extra = n if o.extra is None else min(o.extra, n)
            elif o.kind == "waitv":
                pos = [i for i, x in enumerate(vq) if any(x is c for c in o.covers)]
                if pos:
                    last = max(pos)
                    n = len(vq) - 1 - last
                    vq = vq[last + 1:]
                else:
                    n = 63
                n = min(n, 63)
                o.extra = n if o.extra is None else min(o.extra, n)
            elif o.kind == "waitall":
                lq = []; vq = []

def optext(o):
    if o.kind == "phantom": return None
    if o.kind == "waitl": return f"s_waitcnt lgkmcnt({o.extra})"
    if o.kind == "waitv": return f"s_waitcnt vmcnt({o.extra})"
    return o.text

def check_trace(trace_segments, name=""):
    pos = 0
    lastw = {}
    lastr = {}
    tags = {}
    pend = {}
    lq = []; vq = []
    errors = []
    def abs_tag(t, p):
        if t is None: return None
        nm, rt, rp = t[0], t[1], t[2]
        return (nm, None if rt is None else 16 * p + rt, None if rp is None else p + rp) + tuple(t[3:])
    for (ops, p) in trace_segments:
        for o in ops:
            if o.kind == "phantom": pos += 1; continue
            real_reads = [r for r in o.reads if not r.startswith("pend:") and not r.startswith("ps:")]
            real_writes = [w for w in o.writes if not w.startswith("pend:") and not w.startswith("ps:")]
            if o.kind in ("waitl", "waitv"):
                q = lq if o.kind == "waitl" else vq
                n = o.extra
                while len(q) > n:
                    x = q.pop(0)
                    for w in x.writes:
                        if pend.get(w) is x: del pend[w]
                pos += 1; continue
            if o.kind == "waitall":
                lq.clear(); vq.clear(); pend.clear(); pos += 1; continue
            for r in real_reads:
                if r in pend: errors.append(f"{name} p{p}: {o} reads pending {r} of {pend[r]}")
                if r in lastw:
                    w, wp = lastw[r]
                    ws = waitstates(w, o, r, "RAW")
                    if pos - wp - 1 < ws: errors.append(f"{name} p{p}: RAW hazard {w} -> {o} on {r}: need {ws} have {pos-wp-1}")
                if r in o.rtag:
                    exp = abs_tag(o.rtag[r], p)
                    if tags.get(r) != exp: errors.append(f"{name} p{p}: {o} reads {r}: tag {tags.get(r)} expected {exp}")
            for w in real_writes:
                if w in pend and not (o.kind in ("lds", "vld")): errors.append(f"{name} p{p}: {o} writes pending {w}")
                if w in lastw:
                    q, qp = lastw[w]
                    ws = waitstates(q, o, w, "WAW")
                    if pos - qp - 1 < ws: errors.append(f"{name} p{p}: WAW hazard {q} -> {o} on {w}")
                for (q, qp) in lastr.get(w, ()):
                    ws = waitstates(q, o, w, "WAR")
                    if pos - qp - 1 < ws: errors.append(f"{name} p{p}: WAR hazard {q} -> {o} on {w}")
            for r in real_reads: lastr.setdefault(r, []).append((o, pos))
            for w in real_writes:
                lastw[w] = (o, pos); lastr[w] = []
                tags[w] = abs_tag(o.wtag.get(w), p)
            if o.kind in ("lds", "ldsw"):
                lq.append(o)
                if o.kind == "lds":
                    for w in real_writes: pend[w] = o
            elif o.kind in ("vld", "vst", "dma"):
                vq.append(o)
                if o.kind == "vld":
                    for w in real_writes: pend[w] = o
            pos += 1
    return errors
```

```python
import sys, os, struct, argparse
sys.path.insert(0, os.path.dirname(os.path.abspath(__file__)))
from sched import *

KNAME = "standalone__gqa_softmax__near_ridge_kernel"

def O_(dt, j): return (dt * 4 + j) * 4
def S_(kvt, j): return 128 + (kvt * 4 + j) * 4
def P_(buf, j): return 160 + buf * 16 + j * 4
def NM_(j): return 192 + 4 * j
def LS0_(j): return 208 + j
def LS1_(j): return 212 + j
TMP = 216
vK0, vK1 = 240, 241
vV = [242, 243, 244, 245]
vQO = 246
vDMA = 247
vRC = [248, 249, 250, 251]
def vRCP(j): return 248 + j
vQL = 252
vSTW = 253
vSTR = 254
vTHR = 255
vPF = 254
vDUM = 250
vPF2 = 251
def Q_(j, s): return (j * 4 + s) * 4
def X_(n): return 64 + n * 4
def KF_(kvt, s, par=0): return 128 + par * 32 + (kvt * 4 + s) * 4
def VF_(dt): return 192 + dt * 4
def L_(j): return 224 + 4 * j
ONES = 240
XS = [0]
def msum(j): return j >= 4 - XS[0]
def KR_(s): return 224 + 4 * s

sSRD_Q, sSRD_K, sSRD_V, sSRD_O = 12, 16, 20, 24
sW = 28; sPASS = 29
sQ = [30, 31, 32, 33]
sO = [34, 35, 36, 37]
sVB = 38; sVO = 39; sM0B = 40; sQB = 41
sFLAG = 42
sROW = 44
sT0, sT1 = 45, 46
sC = 47
sKB = 49; sOOB = 50; sVO2 = 51
sOP = [66, 67, 68, 69]
sVBH = 70
sKL, sKH = 71, 72
sKM = 73
sKO = 74
sVT, sVTH = 75, 76
vKW = [248, 249]
vTCH = 253

LDS_V = 131072
LDS_STG = 31 * 4096
Q_BYTES = 16 * 32 * 496 * 128 * 2
KV_BYTES = 16 * 8 * 512 * 128 * 2
CSCALE = (128 ** -0.5) * 1.4426950408889634
def f32bits(x): return struct.unpack("<I", struct.pack("<f", x))[0]

class Cfg:
    backlog = 3
    lds_lead = 7
    thr = 2.0 ** 30
    pkmul = True
    rot = 0
    kb_mfma = False
    init_min = 0
    pad_body = 0
    pad_b0 = 0
    q0_flags = ''
    q0dma = True
    horizon = 10 ** 9
    kb_lazy = False
    kb_slack = 40
    pf2 = 10
    st_jmajor = False
    kall = False
    k_ahead = 6
    k_issue = 2
    simple = False
    interleave = 2
    win_space = 9
    st_plan = [(n // 4, n % 4) for n in range(16)]
    q_plan = [(1, 4), (1, 5), (1, 6), (2, 4), (2, 5), (2, 6), (3, 4), (3, 5), (3, 6), (4, 0), (4, 2), (4, 4), (4, 6), (5, 0), (5, 2), (5, 4)]
    kb_off = 12
    touch_all = False
    touch_ahead = 8
    k_first = 4
    early0 = 2
    qcopy_span = 70
    kb_novalu = False
    t_flags = ''
    init_extra = [("t", 2), ("k", 4), ("k", 5)]
    early_list = [("t", 4), ("k", 6), ("k", 7), ("t", 6)]
    pf = 6
    code_bytes = 60000
    st_space = 14
    q_start = 5
    q_start0 = 3
    q_space0 = 40
    q_space = 24
    bar_gap = 11
    st_flags = ""
    q_flags = ""
    k_flags = ""
    v_flags = ""

def V(i): return f"v{i}"
def A(i): return f"a{i}"

def mfma(d, dpre, a, apre, b, bpre, c=None, rtag=None, wtag=None):
    dr = regs(dpre, d, 4)
    reads = regs(apre, a, 4) + regs(bpre, b, 4)
    if c is None:
        ctext = "0"; srcc = []
    else:
        ctext = rng(dpre, c, 4); srcc = regs(dpre, c, 4); reads += srcc
    return Op(f"v_mfma_f32_16x16x32_bf16 {rng(dpre, d, 4)}, {rng(apre, a, 4)}, {rng(bpre, b, 4)}, {ctext}", "mfma",
              reads, dr, rtag, wtag, srcc=srcc)

def valu(text, reads, writes, rtag=None, wtag=None, kind="valu"):
    return Op(text, kind, reads, writes, rtag, wtag)

def salu(text, reads=(), writes=()):
    return Op(text, "salu", reads, writes)

def ds_read(dst, n, vaddr, off, tagf, tr=False, extra_reads=(), lead=None):
    d = regs("a", dst, n)
    ins = "ds_read_b64_tr_b16" if tr else "ds_read_b128"
    return Op(f"{ins} {rng('a', dst, n)}, v{vaddr} offset:{off}", "lds", [V(vaddr)] + list(extra_reads),
              d + ["pend:" + r for r in d], None, {r: tagf for r in d}, lead=Cfg.lds_lead if lead is None else lead)

def wait(kind, loads, extra_covers=()):
    rs = []; ws = []
    for l in loads:
        for w in l.writes:
            if w.startswith("pend:"):
                rs.append(w); ws.append(w[5:])
    return Op("", kind, rs, ws, covers=list(loads) + list(extra_covers))

def k_reads(t, kvt):
    ops = []
    for s in range(4):
        off = t * 8192 + kvt * 4096 + s * 1024
        va = vK0
        if off >= 65536: off -= 65536; va = vK1
        ops.append(ds_read(KF_(kvt, s, t % 2), 4, va, off, ("K", None, None, t, kvt, s)))
    return ops

def kreg(t, kvt, s):
    return KF_(kvt, s, t % 2)

def v_reads(t, dt):
    slot = t % 4
    u, b = dt // 2, dt % 2
    ops = []
    for kvt in range(2):
        off = slot * 8192 + kvt * 4096 + 8 * b
        ops.append(ds_read(VF_(dt) + 2 * kvt, 2, vV[u], off, ("V", None, None, t, dt, kvt), tr=True,
                           extra_reads=[f"ps:vready{t // 2 % 2}"]))
    return ops

def qk_chain(n, kvt, j, first):
    t = n % 16; rp = n // 16
    l = []
    for s in range(4):
        q = X_(j * 4 + s) if n == 16 else Q_(j, s); kr = kreg(t, kvt, s)
        rt = {r: ("K", None, None, t, kvt, s) for r in regs("a", kr, 4)}
        rt.update({r: ("Q", None, rp, j, s) for r in regs("a", q, 4)})
        if s == 0:
            if first and kvt == 0: c = None
            else:
                c = NM_(j); rt.update({r: ("NM", None, rp, j) for r in regs("v", c, 4)})
        else:
            c = S_(kvt, j); rt.update({r: ("Sp", n, None, kvt, j, s - 1) for r in regs("v", c, 4)})
        wt = {r: (("Sp", n, None, kvt, j, s) if s < 3 else ("S", n, None, kvt, j, i))
              for i, r in enumerate(regs("v", S_(kvt, j), 4))}
        if s == 3 and first and kvt == 0:
            wt = {r: ("Sraw", n, None, kvt, j, i) for i, r in enumerate(regs("v", S_(kvt, j), 4))}
        l.append(mfma(S_(kvt, j), "v", kr, "a", q, "a", c, rt, wt))
    return l

def max_ops(n, j):
    rp = n // 16
    ops = []
    s = S_(0, j); t = TMP + 2 * j; u = TMP + 2 * j + 1
    raw = lambda i: {V(s + i): ("Sraw", n, None, 0, j, i)}
    rt = {}; [rt.update(raw(i)) for i in range(3)]
    ops.append(valu(f"v_max3_f32 v{t}, v{s}, v{s+1}, v{s+2}", [V(s), V(s+1), V(s+2)], [V(t)], rt))
    ops.append(valu(f"v_max_f32 v{t}, v{t}, v{s+3}", [V(t), V(s+3)], [V(t)], raw(3)))
    for sw in ("v_permlane16_swap_b32", "v_permlane32_swap_b32"):
        ops.append(valu(f"v_mov_b32 v{u}, v{t}", [V(t)], [V(u)]))
        ops.append(valu(f"{sw} v{t}, v{u}", [V(t), V(u)], [V(t), V(u)], kind="perm"))
        ops.append(valu(f"v_max_f32 v{t}, v{t}, v{u}", [V(t), V(u)], [V(t)]))
    for i in range(4):
        ops.append(valu(f"v_sub_f32 v{NM_(j)+i}, 0, v{t}", [V(t)], [V(NM_(j)+i)], None, {V(NM_(j)+i): ("NM", None, rp, j)}))
    for i in range(4):
        ops.append(valu(f"v_sub_f32 v{s+i}, v{s+i}, v{t}", [V(s+i), V(t)], [V(s+i)], raw(i), {V(s+i): ("S", n, None, 0, j, i)}))
    return ops

def sm_ops(n, kvt, j):
    ops = []
    s = S_(kvt, j); buf = n % 2
    t = n % 16
    for i in range(4):
        ops.append(valu(f"v_exp_f32 v{s+i}, v{s+i}", [V(s+i)], [V(s+i)], {V(s+i): ("S", n, None, kvt, j, i)},
                        {V(s+i): ("E", n, None, kvt, j, i)}, kind="trans"))
        et = {V(s+i): ("E", n, None, kvt, j, i)}
        if msum(j): pass
        elif t == 0:
            if kvt == 0 and i == 0: pass
            elif kvt == 0 and i == 1:
                ops.append(valu(f"v_add_f32 v{LS0_(j)}, v{s}, v{s+1}", [V(s), V(s+1)], [V(LS0_(j))], et))
            else:
                ops.append(valu(f"v_add_f32 v{LS0_(j)}, v{LS0_(j)}, v{s+i}", [V(LS0_(j)), V(s+i)], [V(LS0_(j))], et))
        elif t == 1 and kvt == 0 and i == 0:
            ops.append(valu(f"v_add_f32 v{LS1_(j)}, v{LS0_(j)}, v{s+i}", [V(LS0_(j)), V(s+i)], [V(LS1_(j))], et))
        else:
            ops.append(valu(f"v_add_f32 v{LS1_(j)}, v{LS1_(j)}, v{s+i}", [V(LS1_(j)), V(s+i)], [V(LS1_(j))], et))
        if i % 2 == 1:
            pr = P_(buf, j) + 2 * kvt + i // 2
            rt = {V(s+i-1): ("E", n, None, kvt, j, i-1), V(s+i): ("E", n, None, kvt, j, i)}
            ops.append(valu(f"v_cvt_pk_bf16_f32 v{pr}, v{s+i-1}, v{s+i}", [V(s+i-1), V(s+i)], [V(pr)], rt,
                            {V(pr): ("P", n, None, j, 2 * kvt + i // 2)}))
    return ops

def pv_ops(n, dt):
    t = n % 16; buf = n % 2
    l = []
    for j in range(4):
        rt = {}
        for kvt in range(2):
            rt.update({r: ("V", None, None, t, dt, kvt) for r in regs("a", VF_(dt) + 2 * kvt, 2)})
        rt.update({r: ("P", n, None, j, i) for i, r in enumerate(regs("v", P_(buf, j), 4))})
        if t == 0: c = None
        else:
            c = O_(dt, j); rt.update({r: ("O", n - 1, None, dt, j) for r in regs("v", c, 4)})
        wt = {r: ("O", n, None, dt, j) for r in regs("v", O_(dt, j), 4)}
        l.append(mfma(O_(dt, j), "v", VF_(dt), "a", P_(buf, j), "v", c, rt, wt))
    return l

def sum_ops(n):
    t = n % 16; buf = n % 2
    l = []
    for j in range(4):
        if not msum(j): continue
        rt = {r: ("P", n, None, j, i) for i, r in enumerate(regs("v", P_(buf, j), 4))}
        c = None if t == 0 else L_(j)
        l.append(mfma(L_(j), "a", ONES, "a", P_(buf, j), "v", c, rt, None))
    return l

def q_raw_loads(rp, direct=False):
    ops = []
    for j in range(4):
        for s in range(4):
            d = Q_(j, s) if direct else X_(j * 4 + s)
            dr = regs("a", d, 4)
            ops.append(Op(f"buffer_load_dwordx4 {rng('a', d, 4)}, v{vQO}, s[{sSRD_Q}:{sSRD_Q+3}], s{sQ[j]} offen offset:{64*s}{Cfg.q_flags}",
                          "vld", [V(vQO), f"s{sQ[j]}"], dr + ["pend:" + r for r in dr], None,
                          {r: ("Q", None, rp, j, s) for r in dr}))
    return ops

sQM = 87
def q0_dma_ops():
    ops = []; d = []
    for j in range(4):
        for s in range(4):
            n = j * 4 + s
            ops.append(salu(f"s_add_u32 m0, s{sQM}, {n * 1024}", [], ["m0"]))
            ops.append(salu(f"s_add_u32 s{sKO}, s{sQ[j]}, {64 * s}", [f"s{sQ[j]}"], [f"s{sKO}"]))
            o = Op(f"buffer_load_dwordx4 v{vQL}, s[{sSRD_Q}:{sSRD_Q+3}], s{sKO} offen{Cfg.q0_flags} lds", "dma",
                   [V(vQL), f"s{sKO}", "m0"], [f"pend:ps:q0raw{n}"])
            ops.append(o); d.append(o)
    return ops, d

def q0_reads():
    ops = []
    for j in range(4):
        for s in range(4):
            n = j * 4 + s
            ops.append(ds_read(Q_(j, s), 4, vPF2, n * 1024, ("Q", None, 0, j, s), extra_reads=[f"ps:q0raw{n}"], lead=2))
    return ops

def q_copy(rp, j, s):
    ops = []
    for i in range(4):
        x = X_(j * 4 + s) + i; q = Q_(j, s) + i
        ops.append(valu(f"v_accvgpr_mov_b32 a{q}, a{x}", [A(x)], [A(q)], {A(x): ("Q", None, rp, j, s)}, {A(q): ("Q", None, rp, j, s)}))
    return ops

def dma_ops(t):
    slot = t % 4
    so = sVO if t % 2 == 0 else sVO2
    ops = [salu(f"s_add_u32 m0, s{sM0B}, {slot * 8192}", [f"s{sM0B}"], ["m0"]),
           salu(f"s_add_u32 s{so}, s{sVB if t < 16 - Cfg.rot else sVBH}, {t * 8192}", [f"s{sVB}"], [f"s{so}"])]
    for h in range(2):
        ops.append(Op(f"buffer_load_dwordx4 v{vDMA}, s[{sSRD_V}:{sSRD_V+3}], s{so} offen offset:{1024*h}{Cfg.v_flags} lds", "dma",
                      [V(vDMA), f"s{so}", "m0", f"ps:vfree{t // 2 % 2}"], [f"ps:vdst{t%4}_{h}"]))
    return ops

def epilogue_ops(n):
    ops = []
    for j in range(4):
        t = TMP + 8 + 2 * j; u = TMP + 8 + 2 * j + 1
        if msum(j):
            ops.append(valu(f"v_accvgpr_read_b32 v{t}, a{L_(j)}", [A(L_(j))], [V(t)]))
        else:
            ops.append(valu(f"v_mov_b32 v{t}, v{LS1_(j)}", [V(LS1_(j))], [V(t)]))
        for sw in ("v_permlane16_swap_b32", "v_permlane32_swap_b32"):
            if msum(j): break
            ops.append(valu(f"v_mov_b32 v{u}, v{t}", [V(t)], [V(u)]))
            ops.append(valu(f"{sw} v{t}, v{u}", [V(t), V(u)], [V(t), V(u)], kind="perm"))
            ops.append(valu(f"v_add_f32 v{t}, v{t}, v{u}", [V(t), V(u)], [V(t)]))
        ops.append(valu(f"v_rcp_f32 v{vRC[j]}, v{t}", [V(t)], [V(vRC[j])], kind="trans"))
        ops.append(valu(f"v_cmp_nle_f32 vcc, v{t}, v{vTHR}", [V(t), V(vTHR)], ["vcc"]))
        ops.append(salu(f"s_or_b64 s[{sFLAG}:{sFLAG+1}], s[{sFLAG}:{sFLAG+1}], vcc", ["vcc", f"s{sFLAG}"], [f"s{sFLAG}"]))
    cnt = 0
    for u in range(4):
        for j in range(4):
            tb = TMP + 16 + 4 * (cnt % 2); cnt += 1
            for b in range(2):
                o = O_(2 * u + b, j)
                if Cfg.pkmul:
                    for i in (0, 2):
                        pb = 248 + (j & ~1); sel = j & 1
                        op = valu(f"v_pk_mul_f32 v[{o+i}:{o+i+1}], v[{o+i}:{o+i+1}], v[{pb}:{pb+1}] op_sel:[0,{sel}] op_sel_hi:[1,{sel}]",
                                  [V(o+i), V(o+i+1), V(vRC[j])], [V(o+i), V(o+i+1)],
                                  {V(o+i): ("O", n, None, 2 * u + b, j), V(o+i+1): ("O", n, None, 2 * u + b, j)})
                        op.reads.append("ps:nomfma")
                        ops.append(op)
                else:
                    for i in range(4):
                        ops.append(valu(f"v_mul_f32 v{o+i}, v{o+i}, v{vRC[j]}", [V(o+i), V(vRC[j])], [V(o+i)],
                                        {V(o+i): ("O", n, None, 2 * u + b, j)}))
                for h in range(2):
                    ops.append(valu(f"v_cvt_pk_bf16_f32 v{tb+2*b+h}, v{o+2*h}, v{o+2*h+1}", [V(o+2*h), V(o+2*h+1)], [V(tb+2*b+h)]))
            x = X_(u * 4 + j)
            for i in range(4):
                ops.append(valu(f"v_accvgpr_write_b32 a{x+i}, v{tb+i}", [V(tb+i)], [A(x+i)], None, {A(x+i): ("OX", n, None, u, j)}))
    return ops

def parked_stores(n):
    ops = []
    order = [(u, j) for u in range(4) for j in range(4)] if not Cfg.st_jmajor else [(u, j) for j in range(4) for u in range(4)]
    for (u, j) in order:
        if True:
            x = X_(u * 4 + j); xr = regs("a", x, 4)
            ops.append(Op(f"buffer_store_dwordx4 {rng('a', x, 4)}, v{vQO}, s[{sSRD_O}:{sSRD_O+3}], s{sOP[j]} offen offset:{64*u}{Cfg.st_flags}",
                          "vst", xr + [V(vQO), f"s{sOP[j]}"], [], {r: ("OX", n, None, u, j) for r in xr}))
    return ops

def k_dma_ops(t):
    ops = []
    for h in range(2):
        ops.append(salu(f"s_add_u32 m0, s{sKM}, {t * 8192 + h * 1024}", [f"s{sKM}"], ["m0"]))
        ops.append(salu(f"s_add_u32 s{sKO}, s{sKL if t < 16 - Cfg.rot else sKH}, {t * 8192 + h * 64}", [], [f"s{sKO}"]))
        ops.append(Op(f"buffer_load_dwordx4 v{vQL}, s[{sSRD_K}:{sSRD_K+3}], s{sKO} offen{Cfg.k_flags} lds", "dma",
                      [V(vQL), f"s{sKO}", "m0"], [f"pend:ps:kraw{t}_{h}"]))
    return ops

KC = 244
def k_build_mfma(t, h, slot):
    base = TMP + 12 * (slot % 2)
    off = t * 8192 + h * 1024
    va = vKW[0]
    if off >= 65536: off -= 65536; va = vKW[1]
    d = regs("v", base, 4)
    rd = Op(f"ds_read_b128 {rng('v', base, 4)}, v{va} offset:{off}", "lds", [V(va), f"ps:kraw{t}_{h}"],
            d + ["pend:" + r for r in d], lead=Cfg.lds_lead)
    pre = [rd, wait("waitl", [rd])]
    m = []
    for p in range(2):
        dd = base + 4 + 4 * p
        m.append(mfma(dd, "v", KC + 2 * p, "a", base, "v", None))
        m.append(mfma(dd, "v", KC + 6 + 2 * p, "a", base, "v", dd))
    post = []
    for p in range(2):
        dd = base + 4 + 4 * p
        for q in range(2):
            post.append(valu(f"v_cvt_pk_bf16_f32 v{base + 2*p + q}, v{dd + 2*q}, v{dd + 2*q + 1}", [V(dd + 2*q), V(dd + 2*q + 1)], [V(base + 2*p + q)]))
    post.append(Op(f"ds_write_b128 v{va}, {rng('v', base, 4)} offset:{off}", "ldsw", [V(va)] + d, [f"ps:kw{t}_{h}", f"pend:ps:kws{t}_{h}"]))
    return pre, m, post

def k_build_ops(t, idx):
    ops = []
    for h in range(2):
        base = TMP + 12 * ((2 * idx + h) % 2)
        off = t * 8192 + h * 1024
        va = vKW[0]
        if off >= 65536: off -= 65536; va = vKW[1]
        d = regs("v", base, 4)
        rd = Op(f"ds_read_b128 {rng('v', base, 4)}, v{va} offset:{off}", "lds", [V(va), f"ps:kraw{t}_{h}"],
                d + ["pend:" + r for r in d], lead=Cfg.lds_lead)
        ops.append(rd); ops.append(wait("waitl", [rd]))
        for i in range(4):
            if Cfg.kb_novalu and t >= 4: break
            r = base + i; a, b = base + 4 + 2 * i, base + 5 + 2 * i
            ops.append(valu(f"v_lshlrev_b32 v{a}, 16, v{r}", [V(r)], [V(a)]))
            ops.append(valu(f"v_and_b32 v{b}, 0xffff0000, v{r}", [V(r)], [V(b)]))
            ops.append(valu(f"v_mul_f32 v{a}, s{sC}, v{a}", [V(a)], [V(a)]))
            ops.append(valu(f"v_mul_f32 v{b}, s{sC}, v{b}", [V(b)], [V(b)]))
            ops.append(valu(f"v_cvt_pk_bf16_f32 v{r}, v{a}, v{b}", [V(a), V(b)], [V(r)]))
        ops.append(Op(f"ds_write_b128 v{va}, {rng('v', base, 4)} offset:{off}", "ldsw", [V(va)] + d, [f"ps:kw{t}_{h}", f"pend:ps:kws{t}_{h}"]))
    return ops

sTL, sTH, sTO = 75, 76, 77
def touch_ops(t):
    return [salu(f"s_add_u32 s{sTO}, s{sTL if t < 16 - Cfg.rot else sTH}, {t * 8192}", [], [f"s{sTO}"]),
            Op(f"buffer_load_dword v{vDUM}, v{vTCH}, s[{sSRD_V}:{sSRD_V+3}], s{sTO} offen{Cfg.t_flags}", "vld",
               [V(vTCH), f"s{sTO}"], [V(vDUM), "pend:" + V(vDUM)])]

def next_offsets_ops():
    ops = []
    for j in range(4):
        ops.append(salu(f"s_mov_b32 s{sOP[j]}, s{sO[j]}", [f"s{sO[j]}"], [f"s{sOP[j]}"]))
        ops.append(salu(f"s_mov_b32 s{sO[j]}, s{sQ[j]}", [f"s{sQ[j]}"], [f"s{sO[j]}"]))
    ops.append(salu(f"s_add_u32 s{sROW}, s{sROW}, 256", [f"s{sROW}"], [f"s{sROW}", "scc"]))
    for j in range(4):
        o = Op(f"s_add_u32 s{sT0}, s{sROW}, {16*j}\n    s_lshl_b32 s{sT1}, s{sT0}, 8\n    s_add_u32 s{sT1}, s{sT1}, s{sQB}\n"
               f"    s_cmp_lt_u32 s{sT0}, 992\n    s_cselect_b32 s{sQ[j]}, s{sT1}, s{sOOB}", "salu",
               [f"s{sROW}", f"s{sQB}"], [f"s{sQ[j]}", f"s{sT0}", f"s{sT1}", "scc"])
        ops.append(o)
    return ops

def qk_seq(n, first):
    ops = []
    if first:
        for j in range(4): ops += qk_chain(n, 0, j, True)
        for j in range(4): ops += max_ops(n, j)
        for j in range(4): ops += qk_chain(n, 1, j, True)
    else:
        for j in range(4):
            for kvt in range(2): ops += qk_chain(n, kvt, j, False)
    return ops

GOFF = [0]
KBX = [0]
def G(i, k): return (64 + XS[0]) * i + KBX[0] * min(max(i, 0), 12) + k + GOFF[0]

def init_issue_ops():
    ops = []; info = {"kd": {}, "vd": {}}
    def kd(t):
        d = k_dma_ops(t); ops.extend(d); info["kd"][t] = [o for o in d if o.kind == "dma"]
    for t in range(Cfg.k_first): kd(t)
    if Cfg.q0dma:
        qo, q = q0_dma_ops(); ops.extend(qo); info["q"] = q
    else:
        q = q_raw_loads(0, direct=True); ops.extend(q); info["q"] = q
    late = []
    n0 = len(ops)
    for t in range(Cfg.k_first, 4): kd(t)
    for t in (0, 1):
        d = dma_ops(t); ops.extend(d); info["vd"][t] = [o for o in d if o.kind == "dma"]
    for grp in Cfg.init_extra:
        if grp[0] == "t": ops.extend(touch_ops(grp[1]))
        else: kd(grp[1])
    info["all"] = list(ops)
    if Cfg.init_min:
        info["late"] = ops[n0:]; ops = ops[:n0]
    else:
        info["late"] = []
    return ops, info

def build_simple_prologue():
    ops = []; kd = {}
    prev = [None]
    def chain(d):
        for o in d:
            if prev[0] is not None: o.deps.append((prev[0], 0, 0))
            prev[0] = o
        ops.extend(d)
    def issue_k(t):
        d = k_dma_ops(t); chain(d); kd[t] = [o for o in d if o.kind == "dma"]
    AHEAD = Cfg.k_ahead
    for t in range(min(AHEAD, 16)): issue_k(t)
    later = []
    for t in range(AHEAD, 16): later.append(("k", t))
    q = q_raw_loads(0, direct=True)
    for n in range(0, 16, 2): later.append(("q", q[n:n + 2]))
    vd = []
    for t in (0, 1): later.append(("v", t))
    def issue_next(n):
        for _ in range(n):
            if not later: return
            k, a = later.pop(0)
            if k == "k": issue_k(a)
            elif k == "q": chain(a)
            elif k == "v":
                d = dma_ops(a); chain(d); vd.extend([o for o in d if o.kind == "dma"])
            else: chain(touch_ops(a))
    wr_all = []
    for t in range(16):
        w = wait("waitv", kd[t]); chain([w])
        kb = k_build_ops(t, t); chain(kb)
        wr_all += [o for o in kb if o.kind == "ldsw"]
        issue_next(Cfg.k_issue)
    issue_next(100)
    chain([wait("waitl", wr_all)])
    chain([Op("s_barrier", "bar", [f"ps:kws{t}_{h}" for t in range(16) for h in (0, 1)], ["ps:kready0"])])
    kr = k_reads(0, 0) + k_reads(0, 1)
    for o in kr: o.reads.append("ps:kready0")
    ops += kr
    ops.append(wait("waitl", kr[:4])); ops.append(wait("waitl", kr[4:]))
    for j in range(4): ops.append(wait("waitv", q[4 * j:4 * j + 4]))
    ops += qk_seq(0, True)
    x = 0
    for t in range(2, 16, 2):
        for o in touch_ops(t):
            o.minGap = 1 + 2 * x; o.cap = o.minGap; x += 1
            ops.append(o)
    kr = k_reads(1, 0) + k_reads(1, 1)
    for o in kr: o.reads.append("ps:kready0")
    ops += kr
    for j in range(4):
        for kvt in range(2): ops += sm_ops(0, kvt, j)
    ops.append(wait("waitl", kr[:4])); ops.append(wait("waitl", kr[4:]))
    return ops, vd

def build_body(pass0, info):
    ops = []
    dmas = {}
    kd = {}
    GOFF[0] = 0
    KBX[0] = 8 if (pass0 and Cfg.kb_mfma) else 0
    if pass0:
        kd = dict(info["kd"])
        GOFF[0] = 32
        pre = list(range(Cfg.k_first))
        wr_all = []
        for t in pre:
            w = wait("waitv", kd[t]); ops.append(w)
            kb = k_build_ops(t, t); ops += kb
            wr_all += [o for o in kb if o.kind == "ldsw"]
        ops.append(wait("waitl", wr_all))
        barA = Op("s_barrier", "bar", [f"ps:kws{t}_{h}" for t in pre for h in (0, 1)], ["ps:kready0"] + (["ps:kready1"] if 1 in pre else []))
        kr = k_reads(0, 0) + k_reads(0, 1)
        if info["late"]:
            prev = wr_all[-1] if Cfg.init_min == 1 else barA
            if Cfg.init_min == 2: ops.append(barA)
            for o in info["late"]:
                o.deps.append((prev, 0, 0)); prev = o
            ops += info["late"]
            if Cfg.init_min == 1:
                barA.deps.append((prev, 0, 0)); ops.append(barA)
            else:
                for o in kr: o.deps.append((prev, 0, 0))
        else:
            ops.append(barA)
        for o in kr: o.reads.append("ps:kready0")
        ops += kr
        ops.append(wait("waitl", kr[:4])); ops.append(wait("waitl", kr[4:]))
        q0r = q0_reads() if Cfg.q0dma else None
        for j in range(4):
            ops.append(wait("waitv", info["q"][4 * j:4 * j + 4]))
            if Cfg.q0dma:
                ops += q0r[4 * j:4 * j + 4]
                wl = wait("waitl", q0r[4 * j:4 * j + 4])
                if j == 3: wl.writes.append("ps:q0done")
                ops.append(wl)
        ops += qk_seq(0, True)
        x = 0
        for grp in Cfg.early_list:
            d = touch_ops(grp[1]) if grp[0] == "t" else k_dma_ops(grp[1])
            for o in d:
                o.minGap = Cfg.early0 + x; o.cap = o.minGap; x += 1
            ops += d
            if grp[0] == "k": kd[grp[1]] = [o for o in d if o.kind == "dma"]
        if 1 not in pre:
            w = wait("waitv", kd[1]); w.cap = 0; ops.append(w)
            kb = k_build_ops(1, 1)
            for x, o in enumerate(kb): o.cap = 1 + x // 3
            ops += kb
            ops.append(wait("waitl", [o for o in kb if o.kind == "ldsw"]))
            barB = Op("s_barrier", "bar", [f"ps:kws1_{h}" for h in (0, 1)], ["ps:kready1"])
            barB.cap = 20
            ops.append(barB)
        kr = k_reads(1, 0) + k_reads(1, 1)
        for o in kr: o.reads.append("ps:kready1")
        ops += kr
        for j in range(4):
            for kvt in range(2): ops += sm_ops(0, kvt, j)
        ops.append(wait("waitl", kr[:4])); ops.append(wait("waitl", kr[4:]))
        dmas[0] = info["vd"][0]; dmas[1] = info["vd"][1]
    else:
        ps = parked_stores(-1)
        for x, o in enumerate(ps):
            if Cfg.interleave == 2:
                e, k = Cfg.st_plan[x]
                o.minGap = G(2 * e, Cfg.bar_gap + 12) + k * Cfg.win_space
            else:
                o.minGap = 2 + Cfg.st_space * x
            o.cap = o.minGap + 4
        ops += ps
    qraw = None
    kb_writes = {}
    for i in range(16):
        n = i + 1
        first = (n == 16)
        if first:
            for j in range(4):
                wq = wait("waitv", qraw[4 * j:4 * j + 4]); wq.cap = G(14, 4 + 8 * j); ops.append(wq)
        ops += qk_seq(n, first)
        if first:
            x = 0
            for j in range(4):
                for s_ in range(4):
                    for o in q_copy(1, j, s_):
                        o.cap = G(14, 10 + 8 * j) + ((x % 16) * Cfg.qcopy_span) // 16; x += 1
                        ops.append(o)
        extra_bar_reads = []
        kbw = {}
        if pass0 and Cfg.kb_mfma:
            if i % 2 == 0 and 2 <= i <= 12:
                wr = kb_writes.get(i + 2, []) + kb_writes.get(i + 3, [])
                ops.append(wait("waitl", wr))
                extra_bar_reads = [f"ps:kws{t}_{h}" for t in (i + 2, i + 3) for h in (0, 1)]
            if i <= 11:
                t4 = i + 4
                w = wait("waitv", kd[t4]); w.cap = G(i, 14); ops.append(w)
                p0_, m0_, q0_ = k_build_mfma(t4, 0, 0)
                for o in p0_: o.cap = G(i, 20)
                ops += p0_ + m0_ + q0_
                kbw[0] = q0_; kbw["h1"] = k_build_mfma(t4, 1, 1)
                kb_writes[t4] = [q0_[-1]]
        if pass0 and i % 2 == 0 and i <= 12 and not (i == 0 and Cfg.k_first == 4) and not (Cfg.kb_mfma and i >= 2):
            w = wait("waitv", kd[i + 2] + kd[i + 3]); ops.append(w)
            W_ = 64 + XS[0]
            if i > 2 or (i == 2):
                w.cap = G(i - 2, Cfg.bar_gap + Cfg.kb_off); w.minGap = w.cap
                span = 2 * W_ - Cfg.kb_off - 8
            else:
                w.cap = 0; span = 30
            kb = k_build_ops(i + 2, 0) + k_build_ops(i + 3, 1)
            for x, o in enumerate(kb):
                if Cfg.kb_lazy and i >= 2:
                    o.cap = w.cap + 2 + Cfg.kb_slack + (x * (span - Cfg.kb_slack)) // len(kb)
                else:
                    o.cap = w.cap + 2 + (x * span) // len(kb)
                    o.minGap = o.cap - 2
            ops += kb
            wr = [o for o in kb if o.kind == "ldsw"]
            ops.append(wait("waitl", wr))
            extra_bar_reads = [f"ps:kws{t}_{h}" for t in (i + 2, i + 3) for h in (0, 1)]
        if i % 2 == 0:
            cov = []
            for t in (i, i + 1):
                if t in dmas: cov += dmas[t]
            wv = Op("", "waitv", [], [f"ps:vw{i}"], covers=cov)
            wv.name = f"vw{i}"
            if i > 0:
                for c in cov: wv.deps.append((c, 0, 0))
            wv.cap = G(i, Cfg.bar_gap - 1)
            ops.append(wv)
            wr = [f"ps:vready{i // 2 % 2}", f"ps:vfree{(i // 2 + 1) % 2}", f"ps:kbar{i}"]
            bar = Op("s_barrier", "bar", [f"ps:vw{i}", "ps:vused"] + extra_bar_reads + (["ps:q0done"] if (pass0 and i == 0 and Cfg.q0dma) else []), wr)
            bar.cap = G(i, Cfg.bar_gap); bar.minGap = G(i, Cfg.bar_gap - 2)
            ops.append(bar)
            x = 0
            for t in (i + 2, i + 3):
                d = dma_ops(t % 16)
                for o in d:
                    o.cap = G(i, Cfg.bar_gap + 2 + 2 * x); x += 1
                ops += d
                dmas[t] = [o for o in d if o.kind == "dma"]
            if i == 14: late = dmas[16] + dmas[17]
            if not pass0 and Cfg.touch_all:
                d = touch_ops((i + Cfg.touch_ahead) % 16)
                for o in d:
                    o.cap = G(i, Cfg.bar_gap + 2 + 2 * x); x += 1
                    o.reads.append(f"ps:kbar{i}")
                ops += d
            if pass0:
                if i + 8 < 16 and not Cfg.kall:
                    for t in (i + 8, i + 9):
                        d = k_dma_ops(t)
                        for o in d:
                            o.cap = G(i, Cfg.bar_gap + 2 + 2 * x); x += 1
                            if o.kind == "dma": o.reads.append(f"ps:kbar{i}")
                        ops += d; kd[t] = [o for o in d if o.kind == "dma"]
                if i + 8 < 16 or Cfg.touch_all:
                    d = touch_ops((i + 8) % 16)
                    for o in d:
                        o.cap = G(i, Cfg.bar_gap + 2 + 2 * x); x += 1
                        o.reads.append(f"ps:kbar{i}")
                    ops += d
        if pass0 and Cfg.pf and Cfg.pf2 and i == Cfg.pf2:
            for h in range(2):
                o = Op(f"global_load_dword v{vDUM}, v{vPF}, s[80:81] offset:{64*h}", "vld", [V(vPF)], [V(vDUM), "pend:" + V(vDUM)])
                o.minGap = G(i, Cfg.bar_gap + 24 + 4 * h); o.cap = o.minGap + 2
                ops.append(o)
        kr = k_reads((n + 1) % 16, 0) + k_reads((n + 1) % 16, 1)
        if pass0 and n + 1 < 16:
            tb = n + 1
            bi = (tb - 2) // 2 * 2
            for o in kr: o.reads.append(f"ps:kbar{bi}")
        ops += kr
        for j in range(4):
            for kvt in range(2):
                ops += sm_ops(n, kvt, j)
        ops += sum_ops(i)
        for dt in range(8):
            vr = v_reads(i, dt)
            ops += vr
            w = wait("waitl", vr)
            if dt == 7: w.writes.append("ps:vused")
            ops.append(w)
            pv = pv_ops(i, dt)
            if i == 15 and dt == 7: pv[-1].writes.append("ps:nomfma")
            ops += pv
        if "h1" in kbw:
            p1_, m1_, q1_ = kbw["h1"]
            for o in p1_: o.cap = G(i, 56)
            ops += p1_ + m1_ + q1_
            kb_writes[i + 4].append(q1_[-1])
        if kr:
            ops.append(wait("waitl", kr[:4]))
            if len(kr) > 4: ops.append(wait("waitl", kr[4:]))
        if i == 4:
            qraw = q_raw_loads(1)
            for x, o in enumerate(qraw):
                if Cfg.interleave == 2:
                    e, k = Cfg.q_plan[x]
                    o.minGap = G(2 * e, Cfg.bar_gap + 12) + k * Cfg.win_space
                elif pass0: o.minGap = G(Cfg.q_start0, 0) + Cfg.q_space0 * x
                elif Cfg.interleave: o.minGap = 2 + Cfg.st_space * x + Cfg.st_space // 2
                else: o.minGap = G(Cfg.q_start, 0) + Cfg.q_space * x
                o.cap = o.minGap + 4
            ops += qraw
    dummies = [o for o in ops if o.kind == "vld" and V(vDUM) in o.writes]
    if pass0 and info is not None: dummies = [o for o in info.get("all", []) if o.kind == "vld" and V(vDUM) in o.writes] + dummies
    if dummies:
        w = wait("waitv", dummies[-1:], extra_covers=dummies[:-1]); w.cap = G(15, 40); ops.append(w)
    ops += epilogue_ops(15)
    ops += next_offsets_ops()
    return ops, late

ABL = set()
def emit(ops):
    lines = []
    for o in ops:
        t = optext(o)
        if t is None: continue
        if o.kind in ABL: continue
        lines.append("    " + t)
    return "\n".join(lines) + "\n"

T0, T1, T2, T3 = TMP + 8, TMP + 9, TMP + 10, TMP + 11
def fswz(dst, src, tmp):
    return f"    v_lshlrev_b32 v{tmp}, 1, v{src}\n    v_lshrrev_b32 v{dst}, v{tmp}, v{vTHR}\n    v_and_b32 v{dst}, 3, v{dst}\n"

def bf16_rne(x):
    u = f32bits(x); return ((u + 0x7fff + ((u >> 16) & 1)) >> 16) & 0xffff
def bf16_val(b): return struct.unpack("<f", struct.pack("<I", b << 16))[0]
def kconst_text():
    import numpy as np
    c = float(np.float32(CSCALE)); hi = bf16_rne(c); lo = bf16_rne(c - bf16_val(hi))
    a, b, c_, d = TMP + 12, TMP + 13, TMP + 14, TMP + 15
    t = f"""    v_and_b32 v{a}, 63, v0
    v_lshrrev_b32 v{b}, 4, v{a}                 ; g
    v_bfe_u32 v{c_}, v{a}, 2, 2                 ; i/4
    v_cmp_eq_u32 vcc, v{b}, v{c_}
    v_and_b32 v{b}, 1, v{a}                     ; rho & 1
    v_lshlrev_b32 v{b}, 4, v{b}                 ; shift 0 / 16
    v_bfe_u32 v{c_}, v{a}, 1, 1                 ; rho >> 1
"""
    for (val, r0) in ((hi, KC), (lo, KC + 6)):
        t += f"""    v_mov_b32 v{d}, {val:#x}
    v_lshlrev_b32 v{d}, v{b}, v{d}
    v_cndmask_b32 v{d}, 0, v{d}, vcc
    v_cmp_eq_u32 s[84+2:84+3], 0, v{c_}
"""
        t = t.replace("s[84+2:84+3]", "s[88:89]")
        t += f"""    s_nop 1
    v_cndmask_b32 v{a}, 0, v{d}, s[88:89]
    v_sub_u32 v{d}, v{d}, v{a}
    v_accvgpr_write_b32 a{r0}, v{a}
    v_accvgpr_write_b32 a{r0+1}, v{d}
    v_accvgpr_write_b32 a{r0+4}, v{a}
    v_accvgpr_write_b32 a{r0+5}, v{d}
    v_mov_b32 v{a}, 0
    v_accvgpr_write_b32 a{r0+2}, v{a}
    v_accvgpr_write_b32 a{r0+3}, v{a}
"""
    return t

def emit_fix(ops):
    lines = []
    for i, o in enumerate(ops):
        if o.kind == "dma" and i > 0 and "m0" in ops[i - 1].writes: lines.append("    s_nop 0")
        lines.append("    " + o.text)
    return "\n".join(lines) + "\n" if lines else ""

def prologue_text():
    c = f32bits(CSCALE)
    s = f"""
    s_cmp_ge_u32 s2, 256
    s_cbranch_scc1 L_end
    s_load_dwordx4 s[4:7], s[0:1], 0
    s_load_dwordx4 s[8:11], s[0:1], 16
PREFETCH
    v_and_b32 v{T0}, 63, v0                     ; lane
    v_lshrrev_b32 v{T1}, 6, v0                  ; wave
    v_mov_b32 v{vTHR}, 0x78                     ; lookup for f = (0,2,3,1)
    v_readfirstlane_b32 s{sW}, v{T1}
    ; i = lane%16, g = lane/16
    v_and_b32 v{T1}, 15, v{T0}
    v_lshrrev_b32 v{T2}, 4, v{T0}
    v_lshlrev_b32 v{vQO}, 8, v{T1}
    v_lshl_add_u32 v{vQO}, v{T2}, 4, v{vQO}     ; vQO = i*256 + g*16
    ; vK0 = (4i + (g ^ f(i>>2)))*16
    v_lshrrev_b32 v{T3}, 2, v{T1}
""" + fswz(T3, T3, TMP) + f"""
    v_xor_b32 v{T3}, v{T3}, v{T2}
    v_lshl_add_u32 v{T3}, v{T1}, 2, v{T3}
    v_lshlrev_b32 v{vK0}, 4, v{T3}
    v_add_u32 v{vK1}, 0x10000, v{vK0}
    ; vDMA = g*256 + ((i) ^ (g<<2))*16
    v_lshlrev_b32 v{T3}, 2, v{T2}
    v_xor_b32 v{T3}, v{T3}, v{T1}
    v_lshlrev_b32 v{T3}, 4, v{T3}
    v_lshl_add_u32 v{vDMA}, v{T2}, 8, v{T3}
    ; vQL: i' = lane>>2, x = lane&3 : i'*256 + ((x ^ f(i'>>2))<<4)
    v_lshrrev_b32 v{T1}, 4, v{T0}               ; i'>>2 = lane>>4
""" + fswz(T1, T1, TMP) + f"""
    v_and_b32 v{T3}, 3, v{T0}
    v_xor_b32 v{T1}, v{T1}, v{T3}
    v_lshlrev_b32 v{T1}, 4, v{T1}
    v_lshrrev_b32 v{T3}, 2, v{T0}
    v_lshl_add_u32 v{vQL}, v{T3}, 8, v{T1}
    ; V tr-read addresses: g=lane>>4, r=(lane>>2)&3, c=lane&3 : LDS_V + (4g+r)*256 + ((u^r)<<6) + 16c
    v_bfe_u32 v{T1}, v{T0}, 2, 2                ; r
    v_and_b32 v{T3}, 3, v{T0}                   ; c
    v_lshl_add_u32 v{T2}, v{T2}, 2, v{T1}       ; 4g+r
    v_lshlrev_b32 v{T2}, 8, v{T2}
    v_lshl_add_u32 v{T2}, v{T3}, 4, v{T2}
    v_add_u32 v{T2}, {LDS_V}, v{T2}
"""
    for u in range(4):
        s += f"    v_xor_b32 v{T3}, {u}, v{T1}\n    v_lshl_add_u32 v{vV[u]}, v{T3}, 6, v{T2}\n"
    s += f"""
    v_lshlrev_b32 v{vTCH}, 7, v{T0}             ; lane*128
    v_lshlrev_b32 v{T0}, 4, v{T0}               ; lane*16
    ; workgroup -> (group, half)
    s_and_b32 s{sT0}, s2, 7
    s_lshr_b32 s{sT1}, s2, 3
    s_lshl_b32 s{sT0}, s{sT0}, 4
    s_lshr_b32 s52, s{sT1}, 1
    s_add_u32 s{sT0}, s{sT0}, s52              ; group
    s_and_b32 s{sT1}, s{sT1}, 1                ; half
    s_lshl_b32 s{sKB}, s{sT0}, 17              ; group * 131072
    s_mul_i32 s{sQB}, s{sT0}, {1984 * 256}
    s_mul_i32 s52, s{sT1}, {992 * 256}
    s_add_u32 s{sQB}, s{sQB}, s52
    s_mul_i32 s53, s{sT1}, {Cfg.rot * 8192}      ; rotation
    s_mul_i32 s83, s{sT1}, {131072 - Cfg.rot * 8192}
    s_mov_b32 s84, s{sT1}                       ; half
    s_lshl_b32 s{sT0}, s{sW}, 11               ; w*2048
    s_add_u32 s{sVB}, s{sKB}, s{sT0}
    s_sub_u32 s{sVBH}, s{sVB}, s83
    s_add_u32 s{sVB}, s{sVB}, s53
    s_add_u32 s{sM0B}, s{sT0}, {LDS_V}
    s_mov_b32 s{sC}, {c:#x}
    s_mov_b32 s{sOOB}, 0x80000000
    s_mov_b64 s[{sFLAG}:{sFLAG+1}], 0
    s_mov_b32 s{sPASS}, 0
    s_lshl_b32 s{sROW}, s{sW}, 6
"""
    for j in range(4):
        s += f"    s_add_u32 s{sT0}, s{sROW}, {16*j}\n    s_lshl_b32 s{sT0}, s{sT0}, 8\n    s_add_u32 s{sQ[j]}, s{sT0}, s{sQB}\n    s_mov_b32 s{sO[j]}, s{sOOB}\n"
    s += f"""    s_lshr_b32 s{sT0}, s{sW}, 1
    s_lshl_b32 s{sT0}, s{sT0}, 13
    s_and_b32 s{sT1}, s{sW}, 1
    s_lshl_b32 s{sT1}, s{sT1}, 6
    s_add_u32 s{sT0}, s{sT0}, s{sT1}
    s_add_u32 s{sTL}, s{sT0}, s{sKB}
    s_sub_u32 s{sTH}, s{sTL}, s83
    s_add_u32 s{sTL}, s{sTL}, s53
"""
    s += f"""
    s_lshr_b32 s{sT0}, s{sW}, 1
    s_lshl_b32 s{sT0}, s{sT0}, 12
    s_and_b32 s{sT1}, s{sW}, 1
    s_lshl_b32 s52, s{sT1}, 7
    s_add_u32 s{sKL}, s{sKB}, s{sT0}
    s_add_u32 s{sKL}, s{sKL}, s52
    s_sub_u32 s{sKH}, s{sKL}, s83
    s_add_u32 s{sKL}, s{sKL}, s53
    s_lshl_b32 s{sT1}, s{sT1}, 11
    s_add_u32 s{sKM}, s{sT0}, s{sT1}
    v_add_u32 v{vKW[0]}, s{sKM}, v{T0}
    v_add_u32 v{vKW[1]}, 0x10000, v{vKW[0]}
    s_lshl_b32 s{sQM}, s{sW}, 14
    s_add_u32 s{sQM}, s{sQM}, 0x10000
    v_add_u32 v{vPF2}, s{sQM}, v{vK0}
KCONST
    v_mov_b32 v{vTHR}, 0x3f803f80
    v_accvgpr_write_b32 a{ONES}, v{vTHR}
    v_accvgpr_write_b32 a{ONES+1}, v{vTHR}
    v_accvgpr_write_b32 a{ONES+2}, v{vTHR}
    v_accvgpr_write_b32 a{ONES+3}, v{vTHR}
    v_mov_b32 v{vTHR}, {f32bits(Cfg.thr):#x}
    s_waitcnt lgkmcnt(0)
"""
    for (srd, lo, size) in ((sSRD_Q, 4, Q_BYTES), (sSRD_K, 6, KV_BYTES), (sSRD_V, 8, KV_BYTES), (sSRD_O, 10, Q_BYTES)):
        s += f"    s_mov_b32 s{srd}, s{lo}\n    s_and_b32 s{srd+1}, s{lo+1}, 0xffff\n    s_mov_b32 s{srd+2}, {size}\n    s_mov_b32 s{srd+3}, 0x00020000\n"
    return s

LET = dict(valu="a", trans="E", perm="p", lds="L", vld="G", vst="Z", dma="D", salu="s", waitl="w", waitv="W", bar="B", nop="n", ldsw="l")
def show(ops):
    gaps = []; cur = None
    for o in ops:
        if o.kind == "mfma":
            cur = []; gaps.append(cur)
        elif o.kind != "phantom" and cur is not None:
            cur.append(LET[o.kind])
    tot = 0
    W = 64 + XS[0]
    bounds = [0] + [G(i, 0) for i in range(0 if GOFF[0] else 1, 16)] + [len(gaps)]
    for bi in range(len(bounds) - 1):
        i = bi * W
        row = gaps[bounds[bi]:bounds[bi + 1]]
        c = 0
        for g in row:
            v = sum(8 if x == "E" else 4 for x in g if x in "aEp")
            nm = [x for x in g if x not in "aEp"]
            mem = [x for x in nm if x in "LGZDl"]
            cost = 4 + max(4, 4 * len(nm) + (4 if mem else 0) - (4 if (mem and v == 0) else 0)) + v
            c += max(16.5, cost)
        tot += c
        print(f"it{i//W:2d} est {c:6.0f}: " + " ".join("".join(g) if g else "-" for g in row))
    print("est total", tot)

vST0, vST1 = 250, 251
def stamp_setup():
    return f"""    s_load_dwordx2 s[54:55], s[0:1], 40
    s_waitcnt lgkmcnt(0)
    s_mov_b32 s56, s54
    s_and_b32 s57, s55, 0xffff
    s_mov_b32 s58, 0x10000000
    s_mov_b32 s59, 0x00020000
    s_lshl_b32 s60, s2, 2
    s_add_u32 s60, s60, s{sW}
    s_lshl_b32 s60, s60, 8
"""
def stamp(i, dyn=False):
    t = f"""    s_memrealtime s[62:63]
    s_memtime s[64:65]
    s_waitcnt lgkmcnt(0)
    v_mov_b32 v250, s62
"""
    so = "s60"
    if dyn:
        t += f"    s_lshl_b32 s61, s{sPASS}, 2\n    s_add_u32 s61, s61, s60\n"; so = "s61"
    t += f"    buffer_store_dword v250, off, s[56:59], {so} offset:{4*i}\n    s_nop 3\n    v_mov_b32 v250, s64\n    buffer_store_dword v250, off, s[56:59], {so} offset:{4*i+128}\n"
    return t

def slow_path_text():
    t = []
    A_ = t.append
    vKa, vVa, vMx = TMP, TMP + 1, TMP + 2
    vL = TMP + 6
    vU = TMP + 10
    sT, sP, sSo, sVs = 78, 79, 85, 86
    A_("L_slow:")
    A_("    s_waitcnt vmcnt(0) lgkmcnt(0)")
    A_(f"    v_mbcnt_lo_u32_b32 v{vU}, -1, 0")
    A_(f"    v_mbcnt_hi_u32_b32 v{vU}, -1, v{vU}")
    A_(f"    v_lshrrev_b32 v{vVa}, 4, v{vU}")
    A_(f"    v_lshlrev_b32 v{vVa}, 10, v{vVa}")
    A_(f"    v_bfe_u32 v{vU+1}, v{vU}, 2, 2")
    A_(f"    v_lshl_add_u32 v{vVa}, v{vU+1}, 4, v{vVa}")
    A_(f"    v_and_b32 v{vU+1}, 3, v{vU}")
    A_(f"    v_lshl_add_u32 v{vVa}, v{vU+1}, 1, v{vVa}")
    A_(f"    s_lshl_b32 s{sROW}, s{sW}, 6")
    A_(f"    s_mov_b32 s{sP}, 0")
    A_("L_slow_pass:")
    for j in range(4):
        A_(f"    s_add_u32 s{sT0}, s{sROW}, {16*j}")
        A_(f"    s_lshl_b32 s{sT1}, s{sT0}, 8")
        A_(f"    s_add_u32 s{sT1}, s{sT1}, s{sQB}")
        A_(f"    s_cmp_lt_u32 s{sT0}, 992")
        A_(f"    s_cselect_b32 s{sQ[j]}, s{sT1}, s{sOOB}")
    for j in range(4):
        for ss in range(4):
            A_(f"    buffer_load_dwordx4 a[{Q_(j,ss)}:{Q_(j,ss)+3}], v{vQO}, s[{sSRD_Q}:{sSRD_Q+3}], s{sQ[j]} offen offset:{64*ss}")
    for j in range(4): A_(f"    v_mov_b32 v{vMx+j}, 0xff800000")
    A_("    s_waitcnt vmcnt(0)")
    def kload():
        for kvt in range(2):
            for ss in range(4):
                A_(f"    ds_read_b128 a[{KF_(kvt,ss)}:{KF_(kvt,ss)+3}], v{vKa} offset:{kvt*4096+ss*1024}")
        A_("    s_waitcnt lgkmcnt(0)")
    def qk(usenm):
        for kvt in range(2):
            for j in range(4):
                for ss in range(4):
                    d = S_(kvt, j)
                    c = (f"v[{NM_(j)}:{NM_(j)+3}]" if usenm else "0") if ss == 0 else f"v[{d}:{d+3}]"
                    A_(f"    v_mfma_f32_16x16x32_bf16 v[{d}:{d+3}], a[{KF_(kvt,ss)}:{KF_(kvt,ss)+3}], a[{Q_(j,ss)}:{Q_(j,ss)+3}], {c}")
        A_("    s_nop 15")
    A_(f"    v_mov_b32 v{vKa}, v{vK0}")
    A_(f"    s_mov_b32 s{sT}, 0")
    A_("L_slow_max:")
    kload(); qk(False)
    for j in range(4):
        for kvt in range(2):
            d = S_(kvt, j)
            A_(f"    v_max3_f32 v{vMx+j}, v{vMx+j}, v{d}, v{d+1}")
            A_(f"    v_max3_f32 v{vMx+j}, v{vMx+j}, v{d+2}, v{d+3}")
    A_(f"    v_add_u32 v{vKa}, 8192, v{vKa}")
    A_(f"    s_add_u32 s{sT}, s{sT}, 1")
    A_(f"    s_cmp_lt_u32 s{sT}, 16")
    A_("    s_nop 7")
    A_("    s_cbranch_scc1 L_slow_max")
    def xlane(reg, op):
        for sw in ("v_permlane16_swap_b32", "v_permlane32_swap_b32"):
            A_(f"    v_mov_b32 v{vU}, v{reg}")
            A_("    s_nop 1")
            A_(f"    {sw} v{reg}, v{vU}")
            A_("    s_nop 1")
            A_(f"    {op} v{reg}, v{reg}, v{vU}")
    for j in range(4):
        xlane(vMx + j, "v_max_f32")
        for i in range(4): A_(f"    v_sub_f32 v{NM_(j)+i}, 0, v{vMx+j}")
        A_(f"    v_mov_b32 v{vL+j}, 0")
    for r in range(128): A_(f"    v_mov_b32 v{r}, 0")
    A_(f"    v_mov_b32 v{vKa}, v{vK0}")
    A_(f"    s_mov_b32 s{sT}, 0")
    A_("L_slow_pv:")
    A_(f"    s_mul_i32 s{sVs}, s84, {Cfg.rot}")
    A_(f"    s_add_u32 s{sVs}, s{sVs}, s{sT}")
    A_(f"    s_and_b32 s{sVs}, s{sVs}, 15")
    A_(f"    s_lshl_b32 s{sVs}, s{sVs}, 13")
    A_(f"    s_add_u32 s{sVs}, s{sVs}, s{sKB}")
    A_(f"    s_add_u32 s{sSo}, s{sVs}, 4096")
    kload(); qk(True)
    for j in range(4):
        for kvt in range(2):
            d = S_(kvt, j)
            for i in range(4): A_(f"    v_exp_f32 v{d+i}, v{d+i}")
            A_("    s_nop 0")
            for h in range(2): A_(f"    v_cvt_pk_bf16_f32 v{P_(0,j)+2*kvt+h}, v{d+2*h}, v{d+2*h+1}")
            for i in range(4): A_(f"    v_add_f32 v{vL+j}, v{vL+j}, v{d+i}")
    raw = P_(1, 0); pk = P_(1, 2)
    for dt in range(8):
        u, b = dt // 2, dt % 2
        for kvt in range(2):
            so = sVs if kvt == 0 else sSo
            for r in range(4):
                A_(f"    buffer_load_ushort v{raw + 4*kvt + r}, v{vVa}, s[{sSRD_V}:{sSRD_V+3}], s{so} offen offset:{r*256 + (32*u + 4*b)*2}")
        A_("    s_waitcnt vmcnt(0)")
        for h in range(4):
            A_(f"    v_lshl_or_b32 v{pk + h}, v{raw + 2*h + 1}, 16, v{raw + 2*h}")
        A_("    s_nop 1")
        for j in range(4):
            o = O_(dt, j)
            A_(f"    v_mfma_f32_16x16x32_bf16 v[{o}:{o+3}], v[{pk}:{pk+3}], v[{P_(0,j)}:{P_(0,j)+3}], v[{o}:{o+3}]")
        A_("    s_nop 7")
    A_(f"    v_add_u32 v{vKa}, 8192, v{vKa}")
    A_(f"    s_add_u32 s{sT}, s{sT}, 1")
    A_(f"    s_cmp_lt_u32 s{sT}, 16")
    A_("    s_nop 15")
    A_("    s_cbranch_scc1 L_slow_pv")
    for j in range(4):
        xlane(vL + j, "v_add_f32")
        A_(f"    v_rcp_f32 v{vL+j}, v{vL+j}")
    A_("    s_nop 1")
    for u in range(4):
        for j in range(4):
            tb = S_(0, 0) + 4 * ((u * 4 + j) % 8)
            for b in range(2):
                o = O_(2 * u + b, j)
                for i in range(4): A_(f"    v_mul_f32 v{o+i}, v{o+i}, v{vL+j}")
                for h in range(2): A_(f"    v_cvt_pk_bf16_f32 v{tb+2*b+h}, v{o+2*h}, v{o+2*h+1}")
            A_(f"    buffer_store_dwordx4 v[{tb}:{tb+3}], v{vQO}, s[{sSRD_O}:{sSRD_O+3}], s{sQ[j]} offen offset:{64*u}")
            A_("    s_nop 1")
    A_("    s_waitcnt vmcnt(0)")
    A_(f"    s_add_u32 s{sROW}, s{sROW}, 256")
    A_(f"    s_add_u32 s{sP}, s{sP}, 1")
    A_(f"    s_cmp_lt_u32 s{sP}, 4")
    A_("    s_cbranch_scc1 L_slow_pass")
    A_("    s_endpgm")
    txt = "\n".join(t) + "\n"
    return txt

def SLOWV(dt): return VF_(dt)

def main():
    ap = argparse.ArgumentParser()
    ap.add_argument("-o", default="standalone__gqa_softmax__near_ridge.s")
    ap.add_argument("--backlog", type=int, default=3)
    ap.add_argument("--lead", type=int, default=7)
    ap.add_argument("--show", action="store_true")
    ap.add_argument("--stamp", action="store_true")
    ap.add_argument("--stflags", default="")
    ap.add_argument("--qflags", default="")
    ap.add_argument("--kflags", default="")
    ap.add_argument("--vflags", default="")
    ap.add_argument("--abl", default="")
    ap.add_argument("--rot", type=int, default=0)
    ap.add_argument("--tflags", default="")
    ap.add_argument("--kbmfma", action="store_true")
    ap.add_argument("--plan", type=int, default=0)
    ap.add_argument("--initmin", type=int, default=0)
    ap.add_argument("--align", default="")
    ap.add_argument("--padbody", type=int, default=0)
    ap.add_argument("--padb0", type=int, default=0)
    ap.add_argument("--noq0dma", action="store_true")
    ap.add_argument("--kboff", type=int, default=12)
    ap.add_argument("--horizon", type=int, default=10 ** 9)
    ap.add_argument("--kblazy", type=int, default=-1)
    ap.add_argument("--pf2", type=int, default=10)
    ap.add_argument("--stj", action="store_true")
    ap.add_argument("--kall", action="store_true")
    ap.add_argument("--simple", action="store_true")
    ap.add_argument("--kahead", type=int, default=6)
    ap.add_argument("--kissue", type=int, default=2)
    ap.add_argument("--winspace", type=int, default=9)
    ap.add_argument("--nointer", action="store_true")
    ap.add_argument("--touchall", action="store_true")
    ap.add_argument("--qstart0", type=int, default=3)
    ap.add_argument("--qspace0", type=int, default=40)
    ap.add_argument("--initx", type=int, default=1)
    ap.add_argument("--x", type=int, default=0)
    ap.add_argument("--x0", type=int, default=0)
    ap.add_argument("--kfirst", type=int, default=4)
    ap.add_argument("--kbnovalu", action="store_true")
    ap.add_argument("--stampbar", action="store_true")
    ap.add_argument("--pf", type=int, default=6)
    ap.add_argument("--nopk", action="store_true")
    ap.add_argument("--stspace", type=int, default=14)
    ap.add_argument("--qstart", type=int, default=5)
    ap.add_argument("--qspace", type=int, default=24)
    ap.add_argument("--bargap", type=int, default=11)
    args = ap.parse_args()
    for x in args.abl.split(","):
        if x: ABL.add(x)
    Cfg.backlog = args.backlog; Cfg.lds_lead = args.lead
    Cfg.pf = args.pf
    Cfg.t_flags = (' ' + args.tflags) if args.tflags else ''
    Cfg.kb_novalu = args.kbnovalu
    Cfg.k_first = args.kfirst
    Cfg.q_start0 = args.qstart0; Cfg.q_space0 = args.qspace0
    if args.kall:
        Cfg.kall = True
        Cfg.init_extra = [("k", t) for t in range(4, 16)] + [("t", 2)]
        Cfg.early_list = [("t", 4), ("t", 6)]
    elif args.initx == 0:
        Cfg.early_list = Cfg.init_extra + Cfg.early_list; Cfg.init_extra = []
    elif args.initx == 2:
        Cfg.init_extra = Cfg.init_extra + Cfg.early_list; Cfg.early_list = []
    Cfg.touch_all = args.touchall
    if args.nointer: Cfg.interleave = 0
    if args.plan == 1:
        Cfg.interleave = 2
        Cfg.st_plan = [(n // 6, n % 6) for n in range(16)]
        Cfg.q_plan = [(3 + n // 6, n % 6) for n in range(16)]
    if args.plan == 2:
        Cfg.interleave = 2
        Cfg.st_plan = [(n // 6, n % 6) for n in range(16)]
        Cfg.q_plan = [(2, 4), (2, 5)] + [(3 + n // 5, n % 5) for n in range(14)]
    Cfg.win_space = args.winspace
    Cfg.simple = args.simple; Cfg.k_ahead = args.kahead; Cfg.k_issue = args.kissue
    Cfg.st_jmajor = args.stj
    Cfg.pf2 = args.pf2
    Cfg.horizon = args.horizon
    if args.kblazy >= 0: Cfg.kb_lazy = True; Cfg.kb_slack = args.kblazy
    Cfg.kb_off = args.kboff
    Cfg.q0dma = not (args.noq0dma or args.simple or args.kall or args.initx == 2)
    Cfg.pad_body = args.padbody; Cfg.pad_b0 = args.padb0
    Cfg.init_min = args.initmin
    Cfg.kb_mfma = args.kbmfma
    Cfg.rot = args.rot; Cfg.pkmul = not args.nopk
    Cfg.st_space = args.stspace; Cfg.q_start = args.qstart; Cfg.q_space = args.qspace; Cfg.bar_gap = args.bargap
    Cfg.st_flags = (" " + args.stflags) if args.stflags else ""
    Cfg.q_flags = (" " + args.qflags) if args.qflags else ""
    Cfg.k_flags = (" " + args.kflags) if args.kflags else ""
    Cfg.v_flags = (" " + args.vflags) if args.vflags else ""

    def pol(k, remaining, ready, emit_, state):
        state["backlog"] = Cfg.backlog
        state["horizon"] = Cfg.horizon
        default_policy(k, remaining, ready, emit_, state)
    noff0 = next_offsets_ops()
    tail = parked_stores(15)
    if Cfg.simple:
        XS[0] = args.x
        init_ops = []
        body0, vd0 = build_simple_prologue()
        body, late = build_body(False, None)
        for o in body:
            if o.kind == "waitv" and o.name == "vw0": o.covers = vd0 + late
        body0_sched = schedule(body0, pol, verbose=True)
        body_sched = schedule(body, pol, verbose=True)
        setx = Op("", "valu", [], regs("a", X_(0), 64), None, {r: ("OX", -1, None, u, j) for u in range(4) for j in range(4) for r in regs("a", X_(u * 4 + j), 4)})
        trace = [(body0_sched, 0), ([setx], 0), (noff0, 0)] + [(body_sched, p) for p in range(0, 4)] + [(tail, 3)]
    else:
        init_ops, info = init_issue_ops()
        XS[0] = args.x0
        body0, late0 = build_body(True, info)
        XS[0] = args.x
        body, late = build_body(False, None)
        for o in body:
            if o.kind == "waitv" and o.name == "vw0": o.covers = late0 + late
        body0_sched = schedule(body0, pol, verbose=True)
        body_sched = schedule(body, pol, verbose=True)
        trace = [(init_ops, 0), (noff0, 0), (body0_sched, 0)] + [(body_sched, p) for p in range(1, 4)] + [(tail, 3)]
    resolve_waits(trace)
    errs = check_trace(trace)
    for e in errs[:40]: print("ERR", e)
    print("errors:", len(errs))
    nm = sum(1 for o in body_sched if o.kind == "mfma")
    print("body instrs:", sum(1 for o in body_sched if o.kind != "phantom"), "mfma:", nm, " body0 instrs:", sum(1 for o in body0_sched if o.kind != "phantom"))
    if args.show:
        XS[0] = args.x0; GOFF[0] = 32; KBX[0] = 8 if Cfg.kb_mfma else 0; show(body0_sched); XS[0] = args.x; GOFF[0] = 0; KBX[0] = 0; show(body_sched)

    s = f"""; GQA attention forward, bf16, B=16 Hq=32 Hkv=8 Sq=496 Sk=512 D=128  (written by the author's own generator, gen/gen.py)
; @launch grid=(256,1,1) block=(256,1,1) lds=163840
.amdgcn_target "amdgcn-amd-amdhsa--gfx950"
.text
.globl {KNAME}
.p2align 8
.type {KNAME},@function
{KNAME}:
"""
    pt = prologue_text()
    pf = ""
    if Cfg.pf:
        first_end = "L_code_end" if (Cfg.simple or not Cfg.pf2) else "L_pass"
        pf = f"""    s_getpc_b64 s[80:81]
L_pc:
    v_lshlrev_b32 v{TMP+12}, {Cfg.pf}, v0
    s_mov_b32 s82, {first_end}-L_pc-4
"""
        step = 256 << Cfg.pf
        nbytes = Cfg.code_bytes if first_end == "L_code_end" else 36000
        for i in range((nbytes + step - 1) // step):
            pf += f"    v_min_u32 v{TMP+13}, s82, v{TMP+12}\n    global_load_dword v{TMP+14+i%4}, v{TMP+13}, s[80:81]\n    v_add_u32 v{TMP+12}, {step}, v{TMP+12}\n"
        if Cfg.pf2:
            pf += f"""    v_lshlrev_b32 v{vPF}, 7, v0
    v_add_u32 v{vPF}, L_pass-L_pc, v{vPF}
    s_mov_b32 s82, L_code_end-L_pc-68
    v_min_u32 v{vPF}, s82, v{vPF}
"""
    pt = pt.replace("PREFETCH\n", pf)
    pt = pt.replace("KCONST\n", kconst_text() if Cfg.kb_mfma else "")
    if args.stamp:
        a, b = pt.split("    ; workgroup -> (group, half)")
        pt = a + stamp_setup() + stamp(0) + "    ; workgroup -> (group, half)" + b
    s += pt
    s += emit_fix(init_ops)
    if not Cfg.simple: s += emit(noff0)
    if args.stamp: s += stamp(1)
    b0 = "    s_nop 0\n" * Cfg.pad_b0 + emit(body0_sched)
    if args.align:
        from align8 import align_block
        b0, n = align_block(b0, args.align); print("promoted (body0):", n)
        b0 = ".p2align 3\n" + b0
    if args.stamp and args.stampbar:
        parts = b0.split("    s_barrier\n")
        b0 = parts[0]
        for k, p_ in enumerate(parts[1:]):
            b0 += "    s_barrier\n" + stamp(8 + k) + p_
    s += b0
    if Cfg.simple: s += emit(noff0)
    if args.stamp: s += stamp(2)
    s += f"    s_mov_b32 s{sPASS}, {0 if Cfg.simple else 1}\n"
    s += ".p2align 6\nL_pass:\n" + "    s_nop 0\n" * Cfg.pad_body
    b1 = emit(body_sched)
    if args.align:
        b1, n = align_block(b1, args.align); print("promoted (body):", n)
    if args.stamp and args.stampbar:
        parts = b1.split("    s_barrier\n")
        b1 = stamp(18) + parts[0]
        for k, p_ in enumerate(parts[1:]):
            b1 += "    s_barrier\n" + stamp(19 + k) + p_
        idx = b1.rindex("    v_mfma")
        idx = b1.index("\n", idx) + 1
        b1 = b1[:idx] + stamp(27) + b1[idx:] + stamp(28)
    s += b1
    if args.stamp: s += stamp(3 if Cfg.simple else 2, dyn=True)
    s += f"""    s_add_u32 s{sPASS}, s{sPASS}, 1
    s_cmp_lt_u32 s{sPASS}, 4
    s_cbranch_scc1 L_pass
"""
    s += emit(tail)
    if args.stamp: s += "    s_waitcnt vmcnt(0)\n" + stamp(7 if Cfg.simple else 6)
    s += f"""    s_cmp_lg_u64 s[{sFLAG}:{sFLAG+1}], 0
    s_cbranch_scc1 L_slow
L_end:
    s_endpgm
L_code_end:
"""
    s += slow_path_text()
    s += f"""
.section .rodata,"a"
.p2align 6
.amdhsa_kernel {KNAME}
  .amdhsa_next_free_vgpr 512
  .amdhsa_next_free_sgpr 96
  .amdhsa_accum_offset 256
  .amdhsa_group_segment_fixed_size 0
  .amdhsa_kernarg_size 48
  .amdhsa_user_sgpr_count 2
  .amdhsa_user_sgpr_kernarg_segment_ptr 1
  .amdhsa_system_sgpr_workgroup_id_x 1
.end_amdhsa_kernel
"""
    open(args.o, "w").write(s)

if __name__ == "__main__":
    main()
```

```python
import sys, os, struct, argparse
sys.path.insert(0, os.path.dirname(os.path.abspath(__file__)))
from sched import *

KNAME = "standalone__gqa_softmax__near_ridge_kernel"

def O_(dt, j): return (dt * 4 + j) * 4
def S_(kvt, j): return 128 + (kvt * 4 + j) * 4
def P_(buf, j): return 160 + buf * 16 + j * 4
def NM_(j): return 192 + 4 * j
def LS0_(j): return 208 + j
def LS1_(j): return 212 + j
TMP = 216
vK0, vK1 = 240, 241
vV = [242, 243, 244, 245]
vQO = 246
vDMA = 247
vRC = [248, 249, 250, 251]
def vRCP(j): return 248 + j
vQL = 252
vSTW = 253
vSTR = 254
vTHR = 255
vPF = 254
vDUM = 250
vPF2 = 251
def Q_(j, s): return (j * 4 + s) * 4
def X_(n): return 64 + n * 4
def KF_(kvt, s, par=0): return 128 + par * 32 + (kvt * 4 + s) * 4
def VF_(dt): return 192 + dt * 4
def L_(j): return 224 + 4 * j
ONES = 240
XS = [0]
def msum(j): return j >= 4 - XS[0]
def KR_(s): return 224 + 4 * s

sSRD_Q, sSRD_K, sSRD_V, sSRD_O = 12, 16, 20, 24
sW = 28; sPASS = 29
sQ = [30, 31, 32, 33]
sO = [34, 35, 36, 37]
sVB = 38; sVO = 39; sM0B = 40; sQB = 41
sFLAG = 42
sROW = 44
sT0, sT1 = 45, 46
sC = 47
sKB = 49; sOOB = 50; sVO2 = 51
sOP = [66, 67, 68, 69]
sVBH = 70
sKL, sKH = 71, 72
sKM = 73
sKO = 74
sVT, sVTH = 75, 76
vKW = [248, 249]
vTCH = 253

LDS_V = 131072
LDS_STG = 31 * 4096
Q_BYTES = 16 * 32 * 496 * 128 * 2
KV_BYTES = 16 * 8 * 512 * 128 * 2
CSCALE = (128 ** -0.5) * 1.4426950408889634
def f32bits(x): return struct.unpack("<I", struct.pack("<f", x))[0]

class Cfg:
    backlog = 3
    lds_lead = 7
    thr = 2.0 ** 30
    pkmul = True
    rot = 0
    notouch = False
    kb_mfma = False
    init_min = 0
    pad_body = 0
    pad_b0 = 0
    q0_flags = ''
    q0dma = True
    horizon = 10 ** 9
    kb_lazy = False
    kb_slack = 40
    pf2 = 10
    st_jmajor = False
    kall = False
    k_ahead = 6
    k_issue = 2
    simple = False
    interleave = 2
    win_space = 9
    st_plan = [(n // 4, n % 4) for n in range(16)]
    q_plan = [(1, 4), (1, 5), (1, 6), (2, 4), (2, 5), (2, 6), (3, 4), (3, 5), (3, 6), (4, 0), (4, 2), (4, 4), (4, 6), (5, 0), (5, 2), (5, 4)]
    kb_off = 12
    touch_all = False
    touch_ahead = 8
    k_first = 4
    early0 = 2
    qcopy_span = 70
    kb_novalu = False
    t_flags = ''
    init_extra = [("t", 2), ("k", 4), ("k", 5)]
    early_list = [("t", 4), ("k", 6), ("k", 7), ("t", 6)]
    pf = 6
    code_bytes = 60000
    st_space = 14
    q_start = 5
    q_start0 = 3
    q_space0 = 40
    q_space = 24
    bar_gap = 11
    st_flags = ""
    q_flags = ""
    k_flags = ""
    v_flags = ""

def V(i): return f"v{i}"
def A(i): return f"a{i}"

def mfma(d, dpre, a, apre, b, bpre, c=None, rtag=None, wtag=None):
    dr = regs(dpre, d, 4)
    reads = regs(apre, a, 4) + regs(bpre, b, 4)
    if c is None:
        ctext = "0"; srcc = []
    else:
        ctext = rng(dpre, c, 4); srcc = regs(dpre, c, 4); reads += srcc
    return Op(f"v_mfma_f32_16x16x32_bf16 {rng(dpre, d, 4)}, {rng(apre, a, 4)}, {rng(bpre, b, 4)}, {ctext}", "mfma",
              reads, dr, rtag, wtag, srcc=srcc)

def valu(text, reads, writes, rtag=None, wtag=None, kind="valu"):
    return Op(text, kind, reads, writes, rtag, wtag)

def salu(text, reads=(), writes=()):
    return Op(text, "salu", reads, writes)

def ds_read(dst, n, vaddr, off, tagf, tr=False, extra_reads=(), lead=None):
    d = regs("a", dst, n)
    ins = "ds_read_b64_tr_b16" if tr else "ds_read_b128"
    return Op(f"{ins} {rng('a', dst, n)}, v{vaddr} offset:{off}", "lds", [V(vaddr)] + list(extra_reads),
              d + ["pend:" + r for r in d], None, {r: tagf for r in d}, lead=Cfg.lds_lead if lead is None else lead)

def wait(kind, loads, extra_covers=()):
    rs = []; ws = []
    for l in loads:
        for w in l.writes:
            if w.startswith("pend:"):
                rs.append(w); ws.append(w[5:])
    return Op("", kind, rs, ws, covers=list(loads) + list(extra_covers))

def k_reads(t, kvt):
    ops = []
    for s in range(4):
        off = t * 8192 + kvt * 4096 + s * 1024
        va = vK0
        if off >= 65536: off -= 65536; va = vK1
        ops.append(ds_read(KF_(kvt, s, t % 2), 4, va, off, ("K", None, None, t, kvt, s)))
    return ops

def kreg(t, kvt, s):
    return KF_(kvt, s, t % 2)

def v_reads(t, dt):
    slot = t % 4
    u, b = dt // 2, dt % 2
    ops = []
    for kvt in range(2):
        off = slot * 8192 + kvt * 4096 + 8 * b
        ops.append(ds_read(VF_(dt) + 2 * kvt, 2, vV[u], off, ("V", None, None, t, dt, kvt), tr=True,
                           extra_reads=[f"ps:vready{t // 2 % 2}"]))
    return ops

def qk_chain(n, kvt, j, first):
    t = n % 16; rp = n // 16
    l = []
    for s in range(4):
        q = X_(j * 4 + s) if n == 16 else Q_(j, s); kr = kreg(t, kvt, s)
        rt = {r: ("K", None, None, t, kvt, s) for r in regs("a", kr, 4)}
        rt.update({r: ("Q", None, rp, j, s) for r in regs("a", q, 4)})
        if s == 0:
            if first and kvt == 0: c = None
            else:
                c = NM_(j); rt.update({r: ("NM", None, rp, j) for r in regs("v", c, 4)})
        else:
            c = S_(kvt, j); rt.update({r: ("Sp", n, None, kvt, j, s - 1) for r in regs("v", c, 4)})
        wt = {r: (("Sp", n, None, kvt, j, s) if s < 3 else ("S", n, None, kvt, j, i))
              for i, r in enumerate(regs("v", S_(kvt, j), 4))}
        if s == 3 and first and kvt == 0:
            wt = {r: ("Sraw", n, None, kvt, j, i) for i, r in enumerate(regs("v", S_(kvt, j), 4))}
        l.append(mfma(S_(kvt, j), "v", kr, "a", q, "a", c, rt, wt))
    return l

def max_ops(n, j):
    rp = n // 16
    ops = []
    s = S_(0, j); t = TMP + 2 * j; u = TMP + 2 * j + 1
    raw = lambda i: {V(s + i): ("Sraw", n, None, 0, j, i)}
    rt = {}; [rt.update(raw(i)) for i in range(3)]
    ops.append(valu(f"v_max3_f32 v{t}, v{s}, v{s+1}, v{s+2}", [V(s), V(s+1), V(s+2)], [V(t)], rt))
    ops.append(valu(f"v_max_f32 v{t}, v{t}, v{s+3}", [V(t), V(s+3)], [V(t)], raw(3)))
    for sw in ("v_permlane16_swap_b32", "v_permlane32_swap_b32"):
        ops.append(valu(f"v_mov_b32 v{u}, v{t}", [V(t)], [V(u)]))
        ops.append(valu(f"{sw} v{t}, v{u}", [V(t), V(u)], [V(t), V(u)], kind="perm"))
        ops.append(valu(f"v_max_f32 v{t}, v{t}, v{u}", [V(t), V(u)], [V(t)]))
    for i in range(4):
        ops.append(valu(f"v_sub_f32 v{NM_(j)+i}, 0, v{t}", [V(t)], [V(NM_(j)+i)], None, {V(NM_(j)+i): ("NM", None, rp, j)}))
    for i in range(4):
        ops.append(valu(f"v_sub_f32 v{s+i}, v{s+i}, v{t}", [V(s+i), V(t)], [V(s+i)], raw(i), {V(s+i): ("S", n, None, 0, j, i)}))
    return ops

def sm_ops(n, kvt, j):
    ops = []
    s = S_(kvt, j); buf = n % 2
    t = n % 16
    for i in range(4):
        ops.append(valu(f"v_exp_f32 v{s+i}, v{s+i}", [V(s+i)], [V(s+i)], {V(s+i): ("S", n, None, kvt, j, i)},
                        {V(s+i): ("E", n, None, kvt, j, i)}, kind="trans"))
        et = {V(s+i): ("E", n, None, kvt, j, i)}
        if msum(j): pass
        elif t == 0:
            if kvt == 0 and i == 0: pass
            elif kvt == 0 and i == 1:
                ops.append(valu(f"v_add_f32 v{LS0_(j)}, v{s}, v{s+1}", [V(s), V(s+1)], [V(LS0_(j))], et))
            else:
                ops.append(valu(f"v_add_f32 v{LS0_(j)}, v{LS0_(j)}, v{s+i}", [V(LS0_(j)), V(s+i)], [V(LS0_(j))], et))
        elif t == 1 and kvt == 0 and i == 0:
            ops.append(valu(f"v_add_f32 v{LS1_(j)}, v{LS0_(j)}, v{s+i}", [V(LS0_(j)), V(s+i)], [V(LS1_(j))], et))
        else:
            ops.append(valu(f"v_add_f32 v{LS1_(j)}, v{LS1_(j)}, v{s+i}", [V(LS1_(j)), V(s+i)], [V(LS1_(j))], et))
        if i % 2 == 1:
            pr = P_(buf, j) + 2 * kvt + i // 2
            rt = {V(s+i-1): ("E", n, None, kvt, j, i-1), V(s+i): ("E", n, None, kvt, j, i)}
            ops.append(valu(f"v_cvt_pk_bf16_f32 v{pr}, v{s+i-1}, v{s+i}", [V(s+i-1), V(s+i)], [V(pr)], rt,
                            {V(pr): ("P", n, None, j, 2 * kvt + i // 2)}))
    return ops

def pv_ops(n, dt):
    t = n % 16; buf = n % 2
    l = []
    for j in range(4):
        rt = {}
        for kvt in range(2):
            rt.update({r: ("V", None, None, t, dt, kvt) for r in regs("a", VF_(dt) + 2 * kvt, 2)})
        rt.update({r: ("P", n, None, j, i) for i, r in enumerate(regs("v", P_(buf, j), 4))})
        if t == 0: c = None
        else:
            c = O_(dt, j); rt.update({r: ("O", n - 1, None, dt, j) for r in regs("v", c, 4)})
        wt = {r: ("O", n, None, dt, j) for r in regs("v", O_(dt, j), 4)}
        l.append(mfma(O_(dt, j), "v", VF_(dt), "a", P_(buf, j), "v", c, rt, wt))
    return l

def sum_ops(n):
    t = n % 16; buf = n % 2
    l = []
    for j in range(4):
        if not msum(j): continue
        rt = {r: ("P", n, None, j, i) for i, r in enumerate(regs("v", P_(buf, j), 4))}
        c = None if t == 0 else L_(j)
        l.append(mfma(L_(j), "a", ONES, "a", P_(buf, j), "v", c, rt, None))
    return l

def q_raw_loads(rp, direct=False):
    ops = []
    for j in range(4):
        for s in range(4):
            d = Q_(j, s) if direct else X_(j * 4 + s)
            dr = regs("a", d, 4)
            ops.append(Op(f"buffer_load_dwordx4 {rng('a', d, 4)}, v{vQO}, s[{sSRD_Q}:{sSRD_Q+3}], s{sQ[j]} offen offset:{64*s}{Cfg.q_flags}",
                          "vld", [V(vQO), f"s{sQ[j]}"], dr + ["pend:" + r for r in dr], None,
                          {r: ("Q", None, rp, j, s) for r in dr}))
    return ops

sQM = 87
def q0_dma_ops():
    ops = []; d = []
    for j in range(4):
        for s in range(4):
            n = j * 4 + s
            ops.append(salu(f"s_add_u32 m0, s{sQM}, {n * 1024}", [], ["m0"]))
            ops.append(salu(f"s_add_u32 s{sKO}, s{sQ[j]}, {64 * s}", [f"s{sQ[j]}"], [f"s{sKO}"]))
            o = Op(f"buffer_load_dwordx4 v{vQL}, s[{sSRD_Q}:{sSRD_Q+3}], s{sKO} offen{Cfg.q0_flags} lds", "dma",
                   [V(vQL), f"s{sKO}", "m0"], [f"pend:ps:q0raw{n}"])
            ops.append(o); d.append(o)
    return ops, d

def q0_reads():
    ops = []
    for j in range(4):
        for s in range(4):
            n = j * 4 + s
            ops.append(ds_read(Q_(j, s), 4, vPF2, n * 1024, ("Q", None, 0, j, s), extra_reads=[f"ps:q0raw{n}"], lead=2))
    return ops

def q_copy(rp, j, s):
    ops = []
    for i in range(4):
        x = X_(j * 4 + s) + i; q = Q_(j, s) + i
        ops.append(valu(f"v_accvgpr_mov_b32 a{q}, a{x}", [A(x)], [A(q)], {A(x): ("Q", None, rp, j, s)}, {A(q): ("Q", None, rp, j, s)}))
    return ops

def dma_ops(t):
    slot = t % 4
    so = sVO if t % 2 == 0 else sVO2
    ops = [salu(f"s_add_u32 m0, s{sM0B}, {slot * 8192}", [f"s{sM0B}"], ["m0"]),
           salu(f"s_add_u32 s{so}, s{sVB if t < 16 - Cfg.rot else sVBH}, {t * 8192}", [f"s{sVB}"], [f"s{so}"])]
    for h in range(2):
        ops.append(Op(f"buffer_load_dwordx4 v{vDMA}, s[{sSRD_V}:{sSRD_V+3}], s{so} offen offset:{1024*h}{Cfg.v_flags} lds", "dma",
                      [V(vDMA), f"s{so}", "m0", f"ps:vfree{t // 2 % 2}"], [f"ps:vdst{t%4}_{h}"]))
    return ops

def epilogue_ops(n):
    ops = []
    for j in range(4):
        t = TMP + 8 + 2 * j; u = TMP + 8 + 2 * j + 1
        if msum(j):
            ops.append(valu(f"v_accvgpr_read_b32 v{t}, a{L_(j)}", [A(L_(j))], [V(t)]))
        else:
            ops.append(valu(f"v_mov_b32 v{t}, v{LS1_(j)}", [V(LS1_(j))], [V(t)]))
        for sw in ("v_permlane16_swap_b32", "v_permlane32_swap_b32"):
            if msum(j): break
            ops.append(valu(f"v_mov_b32 v{u}, v{t}", [V(t)], [V(u)]))
            ops.append(valu(f"{sw} v{t}, v{u}", [V(t), V(u)], [V(t), V(u)], kind="perm"))
            ops.append(valu(f"v_add_f32 v{t}, v{t}, v{u}", [V(t), V(u)], [V(t)]))
        ops.append(valu(f"v_rcp_f32 v{vRC[j]}, v{t}", [V(t)], [V(vRC[j])], kind="trans"))
        ops.append(valu(f"v_cmp_nle_f32 vcc, v{t}, v{vTHR}", [V(t), V(vTHR)], ["vcc"]))
        ops.append(salu(f"s_or_b64 s[{sFLAG}:{sFLAG+1}], s[{sFLAG}:{sFLAG+1}], vcc", ["vcc", f"s{sFLAG}"], [f"s{sFLAG}"]))
    cnt = 0
    for u in range(4):
        for j in range(4):
            tb = TMP + 16 + 4 * (cnt % 2); cnt += 1
            for b in range(2):
                o = O_(2 * u + b, j)
                if Cfg.pkmul:
                    for i in (0, 2):
                        pb = 248 + (j & ~1); sel = j & 1
                        op = valu(f"v_pk_mul_f32 v[{o+i}:{o+i+1}], v[{o+i}:{o+i+1}], v[{pb}:{pb+1}] op_sel:[0,{sel}] op_sel_hi:[1,{sel}]",
                                  [V(o+i), V(o+i+1), V(vRC[j])], [V(o+i), V(o+i+1)],
                                  {V(o+i): ("O", n, None, 2 * u + b, j), V(o+i+1): ("O", n, None, 2 * u + b, j)})
                        op.reads.append("ps:nomfma")
                        ops.append(op)
                else:
                    for i in range(4):
                        ops.append(valu(f"v_mul_f32 v{o+i}, v{o+i}, v{vRC[j]}", [V(o+i), V(vRC[j])], [V(o+i)],
                                        {V(o+i): ("O", n, None, 2 * u + b, j)}))
                for h in range(2):
                    ops.append(valu(f"v_cvt_pk_bf16_f32 v{tb+2*b+h}, v{o+2*h}, v{o+2*h+1}", [V(o+2*h), V(o+2*h+1)], [V(tb+2*b+h)]))
            x = X_(u * 4 + j)
            for i in range(4):
                ops.append(valu(f"v_accvgpr_write_b32 a{x+i}, v{tb+i}", [V(tb+i)], [A(x+i)], None, {A(x+i): ("OX", n, None, u, j)}))
    return ops

def parked_stores(n):
    ops = []
    order = [(u, j) for u in range(4) for j in range(4)] if not Cfg.st_jmajor else [(u, j) for j in range(4) for u in range(4)]
    for (u, j) in order:
        if True:
            x = X_(u * 4 + j); xr = regs("a", x, 4)
            ops.append(Op(f"buffer_store_dwordx4 {rng('a', x, 4)}, v{vQO}, s[{sSRD_O}:{sSRD_O+3}], s{sOP[j]} offen offset:{64*u}{Cfg.st_flags}",
                          "vst", xr + [V(vQO), f"s{sOP[j]}"], [], {r: ("OX", n, None, u, j) for r in xr}))
    return ops

def k_dma_ops(t):
    ops = []
    for h in range(2):
        ops.append(salu(f"s_add_u32 m0, s{sKM}, {t * 8192 + h * 1024}", [f"s{sKM}"], ["m0"]))
        ops.append(salu(f"s_add_u32 s{sKO}, s{sKL if t < 16 - Cfg.rot else sKH}, {t * 8192 + h * 64}", [], [f"s{sKO}"]))
        ops.append(Op(f"buffer_load_dwordx4 v{vQL}, s[{sSRD_K}:{sSRD_K+3}], s{sKO} offen{Cfg.k_flags} lds", "dma",
                      [V(vQL), f"s{sKO}", "m0"], [f"pend:ps:kraw{t}_{h}"]))
    return ops

KC = 244
def k_build_mfma(t, h, slot):
    base = TMP + 12 * (slot % 2)
    off = t * 8192 + h * 1024
    va = vKW[0]
    if off >= 65536: off -= 65536; va = vKW[1]
    d = regs("v", base, 4)
    rd = Op(f"ds_read_b128 {rng('v', base, 4)}, v{va} offset:{off}", "lds", [V(va), f"ps:kraw{t}_{h}"],
            d + ["pend:" + r for r in d], lead=Cfg.lds_lead)
    pre = [rd, wait("waitl", [rd])]
    m = []
    for p in range(2):
        dd = base + 4 + 4 * p
        m.append(mfma(dd, "v", KC + 2 * p, "a", base, "v", None))
        m.append(mfma(dd, "v", KC + 6 + 2 * p, "a", base, "v", dd))
    post = []
    for p in range(2):
        dd = base + 4 + 4 * p
        for q in range(2):
            post.append(valu(f"v_cvt_pk_bf16_f32 v{base + 2*p + q}, v{dd + 2*q}, v{dd + 2*q + 1}", [V(dd + 2*q), V(dd + 2*q + 1)], [V(base + 2*p + q)]))
    post.append(Op(f"ds_write_b128 v{va}, {rng('v', base, 4)} offset:{off}", "ldsw", [V(va)] + d, [f"ps:kw{t}_{h}", f"pend:ps:kws{t}_{h}"]))
    return pre, m, post

def k_build_ops(t, idx):
    ops = []
    for h in range(2):
        base = TMP + 12 * ((2 * idx + h) % 2)
        off = t * 8192 + h * 1024
        va = vKW[0]
        if off >= 65536: off -= 65536; va = vKW[1]
        d = regs("v", base, 4)
        rd = Op(f"ds_read_b128 {rng('v', base, 4)}, v{va} offset:{off}", "lds", [V(va), f"ps:kraw{t}_{h}"],
                d + ["pend:" + r for r in d], lead=Cfg.lds_lead)
        ops.append(rd); ops.append(wait("waitl", [rd]))
        for i in range(4):
            if Cfg.kb_novalu and t >= 4: break
            r = base + i; a, b = base + 4 + 2 * i, base + 5 + 2 * i
            ops.append(valu(f"v_lshlrev_b32 v{a}, 16, v{r}", [V(r)], [V(a)]))
            ops.append(valu(f"v_and_b32 v{b}, 0xffff0000, v{r}", [V(r)], [V(b)]))
            ops.append(valu(f"v_mul_f32 v{a}, s{sC}, v{a}", [V(a)], [V(a)]))
            ops.append(valu(f"v_mul_f32 v{b}, s{sC}, v{b}", [V(b)], [V(b)]))
            ops.append(valu(f"v_cvt_pk_bf16_f32 v{r}, v{a}, v{b}", [V(a), V(b)], [V(r)]))
        ops.append(Op(f"ds_write_b128 v{va}, {rng('v', base, 4)} offset:{off}", "ldsw", [V(va)] + d, [f"ps:kw{t}_{h}", f"pend:ps:kws{t}_{h}"]))
    return ops

sTL, sTH, sTO = 75, 76, 77
def touch_ops(t):
    if Cfg.notouch: return []
    return [salu(f"s_add_u32 s{sTO}, s{sTL if t < 16 - Cfg.rot else sTH}, {t * 8192}", [], [f"s{sTO}"]),
            Op(f"buffer_load_dword v{vDUM}, v{vTCH}, s[{sSRD_V}:{sSRD_V+3}], s{sTO} offen{Cfg.t_flags}", "vld",
               [V(vTCH), f"s{sTO}"], [V(vDUM), "pend:" + V(vDUM)])]

def next_offsets_ops():
    ops = []
    for j in range(4):
        ops.append(salu(f"s_mov_b32 s{sOP[j]}, s{sO[j]}", [f"s{sO[j]}"], [f"s{sOP[j]}"]))
        ops.append(salu(f"s_mov_b32 s{sO[j]}, s{sQ[j]}", [f"s{sQ[j]}"], [f"s{sO[j]}"]))
    ops.append(salu(f"s_add_u32 s{sROW}, s{sROW}, 256", [f"s{sROW}"], [f"s{sROW}", "scc"]))
    for j in range(4):
        o = Op(f"s_add_u32 s{sT0}, s{sROW}, {16*j}\n    s_lshl_b32 s{sT1}, s{sT0}, 8\n    s_add_u32 s{sT1}, s{sT1}, s{sQB}\n"
               f"    s_cmp_lt_u32 s{sT0}, 992\n    s_cselect_b32 s{sQ[j]}, s{sT1}, s{sOOB}", "salu",
               [f"s{sROW}", f"s{sQB}"], [f"s{sQ[j]}", f"s{sT0}", f"s{sT1}", "scc"])
        ops.append(o)
    return ops

def qk_seq(n, first):
    ops = []
    if first:
        for j in range(4): ops += qk_chain(n, 0, j, True)
        for j in range(4): ops += max_ops(n, j)
        for j in range(4): ops += qk_chain(n, 1, j, True)
    else:
        for j in range(4):
            for kvt in range(2): ops += qk_chain(n, kvt, j, False)
    return ops

GOFF = [0]
KBX = [0]
def G(i, k): return (64 + XS[0]) * i + KBX[0] * min(max(i, 0), 12) + k + GOFF[0]

def init_issue_ops():
    ops = []; info = {"kd": {}, "vd": {}}
    def kd(t):
        d = k_dma_ops(t); ops.extend(d); info["kd"][t] = [o for o in d if o.kind == "dma"]
    for t in range(Cfg.k_first): kd(t)
    if Cfg.q0dma:
        qo, q = q0_dma_ops(); ops.extend(qo); info["q"] = q
    else:
        q = q_raw_loads(0, direct=True); ops.extend(q); info["q"] = q
    late = []
    n0 = len(ops)
    for t in range(Cfg.k_first, 4): kd(t)
    for t in (0, 1):
        d = dma_ops(t); ops.extend(d); info["vd"][t] = [o for o in d if o.kind == "dma"]
    for grp in Cfg.init_extra:
        if grp[0] == "t": ops.extend(touch_ops(grp[1]))
        else: kd(grp[1])
    info["all"] = list(ops)
    if Cfg.init_min:
        info["late"] = ops[n0:]; ops = ops[:n0]
    else:
        info["late"] = []
    return ops, info

def build_simple_prologue():
    ops = []; kd = {}
    prev = [None]
    def chain(d):
        for o in d:
            if prev[0] is not None: o.deps.append((prev[0], 0, 0))
            prev[0] = o
        ops.extend(d)
    def issue_k(t):
        d = k_dma_ops(t); chain(d); kd[t] = [o for o in d if o.kind == "dma"]
    AHEAD = Cfg.k_ahead
    for t in range(min(AHEAD, 16)): issue_k(t)
    later = []
    for t in range(AHEAD, 16): later.append(("k", t))
    q = q_raw_loads(0, direct=True)
    for n in range(0, 16, 2): later.append(("q", q[n:n + 2]))
    vd = []
    for t in (0, 1): later.append(("v", t))
    def issue_next(n):
        for _ in range(n):
            if not later: return
            k, a = later.pop(0)
            if k == "k": issue_k(a)
            elif k == "q": chain(a)
            elif k == "v":
                d = dma_ops(a); chain(d); vd.extend([o for o in d if o.kind == "dma"])
            else: chain(touch_ops(a))
    wr_all = []
    for t in range(16):
        w = wait("waitv", kd[t]); chain([w])
        kb = k_build_ops(t, t); chain(kb)
        wr_all += [o for o in kb if o.kind == "ldsw"]
        issue_next(Cfg.k_issue)
    issue_next(100)
    chain([wait("waitl", wr_all)])
    chain([Op("s_barrier", "bar", [f"ps:kws{t}_{h}" for t in range(16) for h in (0, 1)], ["ps:kready0"])])
    kr = k_reads(0, 0) + k_reads(0, 1)
    for o in kr: o.reads.append("ps:kready0")
    ops += kr
    ops.append(wait("waitl", kr[:4])); ops.append(wait("waitl", kr[4:]))
    for j in range(4): ops.append(wait("waitv", q[4 * j:4 * j + 4]))
    ops += qk_seq(0, True)
    x = 0
    for t in range(2, 16, 2):
        for o in touch_ops(t):
            o.minGap = 1 + 2 * x; o.cap = o.minGap; x += 1
            ops.append(o)
    kr = k_reads(1, 0) + k_reads(1, 1)
    for o in kr: o.reads.append("ps:kready0")
    ops += kr
    for j in range(4):
        for kvt in range(2): ops += sm_ops(0, kvt, j)
    ops.append(wait("waitl", kr[:4])); ops.append(wait("waitl", kr[4:]))
    return ops, vd

def build_body(pass0, info):
    ops = []
    dmas = {}
    kd = {}
    GOFF[0] = 0
    KBX[0] = 8 if (pass0 and Cfg.kb_mfma) else 0
    if pass0:
        kd = dict(info["kd"])
        GOFF[0] = 32
        pre = list(range(Cfg.k_first))
        wr_all = []
        for t in pre:
            w = wait("waitv", kd[t]); ops.append(w)
            kb = k_build_ops(t, t); ops += kb
            wr_all += [o for o in kb if o.kind == "ldsw"]
        ops.append(wait("waitl", wr_all))
        barA = Op("s_barrier", "bar", [f"ps:kws{t}_{h}" for t in pre for h in (0, 1)], ["ps:kready0"] + (["ps:kready1"] if 1 in pre else []))
        kr = k_reads(0, 0) + k_reads(0, 1)
        if info["late"]:
            prev = wr_all[-1] if Cfg.init_min == 1 else barA
            if Cfg.init_min == 2: ops.append(barA)
            for o in info["late"]:
                o.deps.append((prev, 0, 0)); prev = o
            ops += info["late"]
            if Cfg.init_min == 1:
                barA.deps.append((prev, 0, 0)); ops.append(barA)
            else:
                for o in kr: o.deps.append((prev, 0, 0))
        else:
            ops.append(barA)
        for o in kr: o.reads.append("ps:kready0")
        ops += kr
        ops.append(wait("waitl", kr[:4])); ops.append(wait("waitl", kr[4:]))
        q0r = q0_reads() if Cfg.q0dma else None
        for j in range(4):
            ops.append(wait("waitv", info["q"][4 * j:4 * j + 4]))
            if Cfg.q0dma:
                ops += q0r[4 * j:4 * j + 4]
                wl = wait("waitl", q0r[4 * j:4 * j + 4])
                if j == 3: wl.writes.append("ps:q0done")
                ops.append(wl)
        ops += qk_seq(0, True)
        x = 0
        for grp in Cfg.early_list:
            d = touch_ops(grp[1]) if grp[0] == "t" else k_dma_ops(grp[1])
            for o in d:
                o.minGap = Cfg.early0 + x; o.cap = o.minGap; x += 1
            ops += d
            if grp[0] == "k": kd[grp[1]] = [o for o in d if o.kind == "dma"]
        if 1 not in pre:
            w = wait("waitv", kd[1]); w.cap = 0; ops.append(w)
            kb = k_build_ops(1, 1)
            for x, o in enumerate(kb): o.cap = 1 + x // 3
            ops += kb
            ops.append(wait("waitl", [o for o in kb if o.kind == "ldsw"]))
            barB = Op("s_barrier", "bar", [f"ps:kws1_{h}" for h in (0, 1)], ["ps:kready1"])
            barB.cap = 20
            ops.append(barB)
        kr = k_reads(1, 0) + k_reads(1, 1)
        for o in kr: o.reads.append("ps:kready1")
        ops += kr
        for j in range(4):
            for kvt in range(2): ops += sm_ops(0, kvt, j)
        ops.append(wait("waitl", kr[:4])); ops.append(wait("waitl", kr[4:]))
        dmas[0] = info["vd"][0]; dmas[1] = info["vd"][1]
    else:
        ps = parked_stores(-1)
        for x, o in enumerate(ps):
            if Cfg.interleave == 2:
                e, k = Cfg.st_plan[x]
                o.minGap = G(2 * e, Cfg.bar_gap + 12) + k * Cfg.win_space
            else:
                o.minGap = 2 + Cfg.st_space * x
            o.cap = o.minGap + 4
        ops += ps
    qraw = None
    kb_writes = {}
    for i in range(16):
        n = i + 1
        first = (n == 16)
        if first:
            for j in range(4):
                wq = wait("waitv", qraw[4 * j:4 * j + 4]); wq.cap = G(14, 4 + 8 * j); ops.append(wq)
        ops += qk_seq(n, first)
        if first:
            x = 0
            for j in range(4):
                for s_ in range(4):
                    for o in q_copy(1, j, s_):
                        o.cap = G(14, 10 + 8 * j) + ((x % 16) * Cfg.qcopy_span) // 16; x += 1
                        ops.append(o)
        extra_bar_reads = []
        kbw = {}
        if pass0 and Cfg.kb_mfma:
            if i % 2 == 0 and 2 <= i <= 12:
                wr = kb_writes.get(i + 2, []) + kb_writes.get(i + 3, [])
                ops.append(wait("waitl", wr))
                extra_bar_reads = [f"ps:kws{t}_{h}" for t in (i + 2, i + 3) for h in (0, 1)]
            if i <= 11:
                t4 = i + 4
                w = wait("waitv", kd[t4]); w.cap = G(i, 14); ops.append(w)
                p0_, m0_, q0_ = k_build_mfma(t4, 0, 0)
                for o in p0_: o.cap = G(i, 20)
                ops += p0_ + m0_ + q0_
                kbw[0] = q0_; kbw["h1"] = k_build_mfma(t4, 1, 1)
                kb_writes[t4] = [q0_[-1]]
        if pass0 and i % 2 == 0 and i <= 12 and not (i == 0 and Cfg.k_first == 4) and not (Cfg.kb_mfma and i >= 2):
            w = wait("waitv", kd[i + 2] + kd[i + 3]); ops.append(w)
            W_ = 64 + XS[0]
            if i > 2 or (i == 2):
                w.cap = G(i - 2, Cfg.bar_gap + Cfg.kb_off); w.minGap = w.cap
                span = 2 * W_ - Cfg.kb_off - 8
            else:
                w.cap = 0; span = 30
            kb = k_build_ops(i + 2, 0) + k_build_ops(i + 3, 1)
            for x, o in enumerate(kb):
                if Cfg.kb_lazy and i >= 2:
                    o.cap = w.cap + 2 + Cfg.kb_slack + (x * (span - Cfg.kb_slack)) // len(kb)
                else:
                    o.cap = w.cap + 2 + (x * span) // len(kb)
                    o.minGap = o.cap - 2
            ops += kb
            wr = [o for o in kb if o.kind == "ldsw"]
            ops.append(wait("waitl", wr))
            extra_bar_reads = [f"ps:kws{t}_{h}" for t in (i + 2, i + 3) for h in (0, 1)]
        if i % 2 == 0:
            cov = []
            for t in (i, i + 1):
                if t in dmas: cov += dmas[t]
            wv = Op("", "waitv", [], [f"ps:vw{i}"], covers=cov)
            wv.name = f"vw{i}"
            if i > 0:
                for c in cov: wv.deps.append((c, 0, 0))
            wv.cap = G(i, Cfg.bar_gap - 1)
            ops.append(wv)
            wr = [f"ps:vready{i // 2 % 2}", f"ps:vfree{(i // 2 + 1) % 2}", f"ps:kbar{i}"]
            bar = Op("s_barrier", "bar", [f"ps:vw{i}", "ps:vused"] + extra_bar_reads + (["ps:q0done"] if (pass0 and i == 0 and Cfg.q0dma) else []), wr)
            bar.cap = G(i, Cfg.bar_gap); bar.minGap = G(i, Cfg.bar_gap - 2)
            ops.append(bar)
            x = 0
            for t in (i + 2, i + 3):
                d = dma_ops(t % 16)
                for o in d:
                    o.cap = G(i, Cfg.bar_gap + 2 + 2 * x); x += 1
                ops += d
                dmas[t] = [o for o in d if o.kind == "dma"]
            if i == 14: late = dmas[16] + dmas[17]
            if not pass0 and Cfg.touch_all:
                d = touch_ops((i + Cfg.touch_ahead) % 16)
                for o in d:
                    o.cap = G(i, Cfg.bar_gap + 2 + 2 * x); x += 1
                    o.reads.append(f"ps:kbar{i}")
                ops += d
            if pass0:
                if i + 8 < 16 and not Cfg.kall:
                    for t in (i + 8, i + 9):
                        d = k_dma_ops(t)
                        for o in d:
                            o.cap = G(i, Cfg.bar_gap + 2 + 2 * x); x += 1
                            if o.kind == "dma": o.reads.append(f"ps:kbar{i}")
                        ops += d; kd[t] = [o for o in d if o.kind == "dma"]
                if i + 8 < 16 or Cfg.touch_all:
                    d = touch_ops((i + 8) % 16)
                    for o in d:
                        o.cap = G(i, Cfg.bar_gap + 2 + 2 * x); x += 1
                        o.reads.append(f"ps:kbar{i}")
                    ops += d
        if pass0 and Cfg.pf and Cfg.pf2 and i == Cfg.pf2:
            for h in range(2):
                o = Op(f"global_load_dword v{vDUM}, v{vPF}, s[80:81] offset:{64*h}", "vld", [V(vPF)], [V(vDUM), "pend:" + V(vDUM)])
                o.minGap = G(i, Cfg.bar_gap + 24 + 4 * h); o.cap = o.minGap + 2
                ops.append(o)
        kr = k_reads((n + 1) % 16, 0) + k_reads((n + 1) % 16, 1)
        if pass0 and n + 1 < 16:
            tb = n + 1
            bi = (tb - 2) // 2 * 2
            for o in kr: o.reads.append(f"ps:kbar{bi}")
        ops += kr
        for j in range(4):
            for kvt in range(2):
                ops += sm_ops(n, kvt, j)
        ops += sum_ops(i)
        for dt in range(8):
            vr = v_reads(i, dt)
            ops += vr
            w = wait("waitl", vr)
            if dt == 7: w.writes.append("ps:vused")
            ops.append(w)
            pv = pv_ops(i, dt)
            if i == 15 and dt == 7: pv[-1].writes.append("ps:nomfma")
            ops += pv
        if "h1" in kbw:
            p1_, m1_, q1_ = kbw["h1"]
            for o in p1_: o.cap = G(i, 56)
            ops += p1_ + m1_ + q1_
            kb_writes[i + 4].append(q1_[-1])
        if kr:
            ops.append(wait("waitl", kr[:4]))
            if len(kr) > 4: ops.append(wait("waitl", kr[4:]))
        if i == 4:
            qraw = q_raw_loads(1)
            for x, o in enumerate(qraw):
                if Cfg.interleave == 2:
                    e, k = Cfg.q_plan[x]
                    o.minGap = G(2 * e, Cfg.bar_gap + 12) + k * Cfg.win_space
                elif pass0: o.minGap = G(Cfg.q_start0, 0) + Cfg.q_space0 * x
                elif Cfg.interleave: o.minGap = 2 + Cfg.st_space * x + Cfg.st_space // 2
                else: o.minGap = G(Cfg.q_start, 0) + Cfg.q_space * x
                o.cap = o.minGap + 4
            ops += qraw
    dummies = [o for o in ops if o.kind == "vld" and V(vDUM) in o.writes]
    if pass0 and info is not None: dummies = [o for o in info.get("all", []) if o.kind == "vld" and V(vDUM) in o.writes] + dummies
    if dummies:
        w = wait("waitv", dummies[-1:], extra_covers=dummies[:-1]); w.cap = G(15, 40); ops.append(w)
    ops += epilogue_ops(15)
    ops += next_offsets_ops()
    return ops, late

ABL = set()
def emit(ops):
    lines = []
    for o in ops:
        t = optext(o)
        if t is None: continue
        if o.kind in ABL: continue
        lines.append("    " + t)
    return "\n".join(lines) + "\n"

T0, T1, T2, T3 = TMP + 8, TMP + 9, TMP + 10, TMP + 11
def fswz(dst, src, tmp):
    return f"    v_lshlrev_b32 v{tmp}, 1, v{src}\n    v_lshrrev_b32 v{dst}, v{tmp}, v{vTHR}\n    v_and_b32 v{dst}, 3, v{dst}\n"

def bf16_rne(x):
    u = f32bits(x); return ((u + 0x7fff + ((u >> 16) & 1)) >> 16) & 0xffff
def bf16_val(b): return struct.unpack("<f", struct.pack("<I", b << 16))[0]
def kconst_text():
    import numpy as np
    c = float(np.float32(CSCALE)); hi = bf16_rne(c); lo = bf16_rne(c - bf16_val(hi))
    a, b, c_, d = TMP + 12, TMP + 13, TMP + 14, TMP + 15
    t = f"""    v_and_b32 v{a}, 63, v0
    v_lshrrev_b32 v{b}, 4, v{a}                 ; g
    v_bfe_u32 v{c_}, v{a}, 2, 2                 ; i/4
    v_cmp_eq_u32 vcc, v{b}, v{c_}
    v_and_b32 v{b}, 1, v{a}                     ; rho & 1
    v_lshlrev_b32 v{b}, 4, v{b}                 ; shift 0 / 16
    v_bfe_u32 v{c_}, v{a}, 1, 1                 ; rho >> 1
"""
    for (val, r0) in ((hi, KC), (lo, KC + 6)):
        t += f"""    v_mov_b32 v{d}, {val:#x}
    v_lshlrev_b32 v{d}, v{b}, v{d}
    v_cndmask_b32 v{d}, 0, v{d}, vcc
    v_cmp_eq_u32 s[84+2:84+3], 0, v{c_}
"""
        t = t.replace("s[84+2:84+3]", "s[88:89]")
        t += f"""    s_nop 1
    v_cndmask_b32 v{a}, 0, v{d}, s[88:89]
    v_sub_u32 v{d}, v{d}, v{a}
    v_accvgpr_write_b32 a{r0}, v{a}
    v_accvgpr_write_b32 a{r0+1}, v{d}
    v_accvgpr_write_b32 a{r0+4}, v{a}
    v_accvgpr_write_b32 a{r0+5}, v{d}
    v_mov_b32 v{a}, 0
    v_accvgpr_write_b32 a{r0+2}, v{a}
    v_accvgpr_write_b32 a{r0+3}, v{a}
"""
    return t

def emit_fix(ops):
    lines = []
    for i, o in enumerate(ops):
        if o.kind == "dma" and i > 0 and "m0" in ops[i - 1].writes: lines.append("    s_nop 0")
        lines.append("    " + o.text)
    return "\n".join(lines) + "\n" if lines else ""

def prologue_text():
    c = f32bits(CSCALE)
    s = f"""
    s_cmp_ge_u32 s2, 256
    s_cbranch_scc1 L_end
    s_load_dwordx4 s[4:7], s[0:1], 0
    s_load_dwordx4 s[8:11], s[0:1], 16
PREFETCH
    v_and_b32 v{T0}, 63, v0                     ; lane
    v_lshrrev_b32 v{T1}, 6, v0                  ; wave
    v_mov_b32 v{vTHR}, 0x78                     ; lookup for f = (0,2,3,1)
    v_readfirstlane_b32 s{sW}, v{T1}
    ; i = lane%16, g = lane/16
    v_and_b32 v{T1}, 15, v{T0}
    v_lshrrev_b32 v{T2}, 4, v{T0}
    v_lshlrev_b32 v{vQO}, 8, v{T1}
    v_lshl_add_u32 v{vQO}, v{T2}, 4, v{vQO}     ; vQO = i*256 + g*16
    ; vK0 = (4i + (g ^ f(i>>2)))*16
    v_lshrrev_b32 v{T3}, 2, v{T1}
""" + fswz(T3, T3, TMP) + f"""
    v_xor_b32 v{T3}, v{T3}, v{T2}
    v_lshl_add_u32 v{T3}, v{T1}, 2, v{T3}
    v_lshlrev_b32 v{vK0}, 4, v{T3}
    v_add_u32 v{vK1}, 0x10000, v{vK0}
    ; vDMA = g*256 + ((i) ^ (g<<2))*16
    v_lshlrev_b32 v{T3}, 2, v{T2}
    v_xor_b32 v{T3}, v{T3}, v{T1}
    v_lshlrev_b32 v{T3}, 4, v{T3}
    v_lshl_add_u32 v{vDMA}, v{T2}, 8, v{T3}
    ; vQL: i' = lane>>2, x = lane&3 : i'*256 + ((x ^ f(i'>>2))<<4)
    v_lshrrev_b32 v{T1}, 4, v{T0}               ; i'>>2 = lane>>4
""" + fswz(T1, T1, TMP) + f"""
    v_and_b32 v{T3}, 3, v{T0}
    v_xor_b32 v{T1}, v{T1}, v{T3}
    v_lshlrev_b32 v{T1}, 4, v{T1}
    v_lshrrev_b32 v{T3}, 2, v{T0}
    v_lshl_add_u32 v{vQL}, v{T3}, 8, v{T1}
    ; V tr-read addresses: g=lane>>4, r=(lane>>2)&3, c=lane&3 : LDS_V + (4g+r)*256 + ((u^r)<<6) + 16c
    v_bfe_u32 v{T1}, v{T0}, 2, 2                ; r
    v_and_b32 v{T3}, 3, v{T0}                   ; c
    v_lshl_add_u32 v{T2}, v{T2}, 2, v{T1}       ; 4g+r
    v_lshlrev_b32 v{T2}, 8, v{T2}
    v_lshl_add_u32 v{T2}, v{T3}, 4, v{T2}
    v_add_u32 v{T2}, {LDS_V}, v{T2}
"""
    for u in range(4):
        s += f"    v_xor_b32 v{T3}, {u}, v{T1}\n    v_lshl_add_u32 v{vV[u]}, v{T3}, 6, v{T2}\n"
    s += f"""
    v_lshlrev_b32 v{vTCH}, 7, v{T0}             ; lane*128
    v_lshlrev_b32 v{T0}, 4, v{T0}               ; lane*16
    ; workgroup -> (group, half)
    s_and_b32 s{sT0}, s2, 7
    s_lshr_b32 s{sT1}, s2, 3
    s_lshl_b32 s{sT0}, s{sT0}, 4
    s_lshr_b32 s52, s{sT1}, 1
    s_add_u32 s{sT0}, s{sT0}, s52              ; group
    s_and_b32 s{sT1}, s{sT1}, 1                ; half
    s_lshl_b32 s{sKB}, s{sT0}, 17              ; group * 131072
    s_mul_i32 s{sQB}, s{sT0}, {1984 * 256}
    s_mul_i32 s52, s{sT1}, {992 * 256}
    s_add_u32 s{sQB}, s{sQB}, s52
    s_mul_i32 s53, s{sT1}, {Cfg.rot * 8192}      ; rotation
    s_mul_i32 s83, s{sT1}, {131072 - Cfg.rot * 8192}
    s_mov_b32 s84, s{sT1}                       ; half
    s_lshl_b32 s{sT0}, s{sW}, 11               ; w*2048
    s_add_u32 s{sVB}, s{sKB}, s{sT0}
    s_sub_u32 s{sVBH}, s{sVB}, s83
    s_add_u32 s{sVB}, s{sVB}, s53
    s_add_u32 s{sM0B}, s{sT0}, {LDS_V}
    s_mov_b32 s{sC}, {c:#x}
    s_mov_b32 s{sOOB}, 0x80000000
    s_mov_b64 s[{sFLAG}:{sFLAG+1}], 0
    s_mov_b32 s{sPASS}, 0
    s_lshl_b32 s{sROW}, s{sW}, 6
"""
    for j in range(4):
        s += f"    s_add_u32 s{sT0}, s{sROW}, {16*j}\n    s_lshl_b32 s{sT0}, s{sT0}, 8\n    s_add_u32 s{sQ[j]}, s{sT0}, s{sQB}\n    s_mov_b32 s{sO[j]}, s{sOOB}\n"
    s += f"""    s_lshr_b32 s{sT0}, s{sW}, 1
    s_lshl_b32 s{sT0}, s{sT0}, 13
    s_and_b32 s{sT1}, s{sW}, 1
    s_lshl_b32 s{sT1}, s{sT1}, 6
    s_add_u32 s{sT0}, s{sT0}, s{sT1}
    s_add_u32 s{sTL}, s{sT0}, s{sKB}
    s_sub_u32 s{sTH}, s{sTL}, s83
    s_add_u32 s{sTL}, s{sTL}, s53
"""
    s += f"""
    s_lshr_b32 s{sT0}, s{sW}, 1
    s_lshl_b32 s{sT0}, s{sT0}, 12
    s_and_b32 s{sT1}, s{sW}, 1
    s_lshl_b32 s52, s{sT1}, 7
    s_add_u32 s{sKL}, s{sKB}, s{sT0}
    s_add_u32 s{sKL}, s{sKL}, s52
    s_sub_u32 s{sKH}, s{sKL}, s83
    s_add_u32 s{sKL}, s{sKL}, s53
    s_lshl_b32 s{sT1}, s{sT1}, 11
    s_add_u32 s{sKM}, s{sT0}, s{sT1}
    v_add_u32 v{vKW[0]}, s{sKM}, v{T0}
    v_add_u32 v{vKW[1]}, 0x10000, v{vKW[0]}
    s_lshl_b32 s{sQM}, s{sW}, 14
    s_add_u32 s{sQM}, s{sQM}, 0x10000
    v_add_u32 v{vPF2}, s{sQM}, v{vK0}
KCONST
    v_mov_b32 v{vTHR}, 0x3f803f80
    v_accvgpr_write_b32 a{ONES}, v{vTHR}
    v_accvgpr_write_b32 a{ONES+1}, v{vTHR}
    v_accvgpr_write_b32 a{ONES+2}, v{vTHR}
    v_accvgpr_write_b32 a{ONES+3}, v{vTHR}
    v_mov_b32 v{vTHR}, {f32bits(Cfg.thr):#x}
    s_waitcnt lgkmcnt(0)
"""
    for (srd, lo, size) in ((sSRD_Q, 4, Q_BYTES), (sSRD_K, 6, KV_BYTES), (sSRD_V, 8, KV_BYTES), (sSRD_O, 10, Q_BYTES)):
        s += f"    s_mov_b32 s{srd}, s{lo}\n    s_and_b32 s{srd+1}, s{lo+1}, 0xffff\n    s_mov_b32 s{srd+2}, {size}\n    s_mov_b32 s{srd+3}, 0x00020000\n"
    return s

LET = dict(valu="a", trans="E", perm="p", lds="L", vld="G", vst="Z", dma="D", salu="s", waitl="w", waitv="W", bar="B", nop="n", ldsw="l")
def show(ops):
    gaps = []; cur = None
    for o in ops:
        if o.kind == "mfma":
            cur = []; gaps.append(cur)
        elif o.kind != "phantom" and cur is not None:
            cur.append(LET[o.kind])
    tot = 0
    W = 64 + XS[0]
    bounds = [0] + [G(i, 0) for i in range(0 if GOFF[0] else 1, 16)] + [len(gaps)]
    for bi in range(len(bounds) - 1):
        i = bi * W
        row = gaps[bounds[bi]:bounds[bi + 1]]
        c = 0
        for g in row:
            v = sum(8 if x == "E" else 4 for x in g if x in "aEp")
            nm = [x for x in g if x not in "aEp"]
            mem = [x for x in nm if x in "LGZDl"]
            cost = 4 + max(4, 4 * len(nm) + (4 if mem else 0) - (4 if (mem and v == 0) else 0)) + v
            c += max(16.5, cost)
        tot += c
        print(f"it{i//W:2d} est {c:6.0f}: " + " ".join("".join(g) if g else "-" for g in row))
    print("est total", tot)

vST0, vST1 = 250, 251
def stamp_setup():
    return f"""    s_load_dwordx2 s[54:55], s[0:1], 40
    s_waitcnt lgkmcnt(0)
    s_mov_b32 s56, s54
    s_and_b32 s57, s55, 0xffff
    s_mov_b32 s58, 0x10000000
    s_mov_b32 s59, 0x00020000
    s_lshl_b32 s60, s2, 2
    s_add_u32 s60, s60, s{sW}
    s_lshl_b32 s60, s60, 8
"""
def stamp(i, dyn=False):
    t = f"""    s_memrealtime s[62:63]
    s_memtime s[64:65]
    s_waitcnt lgkmcnt(0)
    v_mov_b32 v250, s62
"""
    so = "s60"
    if dyn:
        t += f"    s_lshl_b32 s61, s{sPASS}, 2\n    s_add_u32 s61, s61, s60\n"; so = "s61"
    t += f"    buffer_store_dword v250, off, s[56:59], {so} offset:{4*i}\n    s_nop 3\n    v_mov_b32 v250, s64\n    buffer_store_dword v250, off, s[56:59], {so} offset:{4*i+128}\n"
    return t

def slow_path_text():
    t = []
    A_ = t.append
    vKa, vVa, vMx = TMP, TMP + 1, TMP + 2
    vL = TMP + 6
    vU = TMP + 10
    sT, sP, sSo, sVs = 78, 79, 85, 86
    A_("L_slow:")
    A_("    s_waitcnt vmcnt(0) lgkmcnt(0)")
    A_(f"    v_mbcnt_lo_u32_b32 v{vU}, -1, 0")
    A_(f"    v_mbcnt_hi_u32_b32 v{vU}, -1, v{vU}")
    A_(f"    v_lshrrev_b32 v{vVa}, 4, v{vU}")
    A_(f"    v_lshlrev_b32 v{vVa}, 10, v{vVa}")
    A_(f"    v_bfe_u32 v{vU+1}, v{vU}, 2, 2")
    A_(f"    v_lshl_add_u32 v{vVa}, v{vU+1}, 4, v{vVa}")
    A_(f"    v_and_b32 v{vU+1}, 3, v{vU}")
    A_(f"    v_lshl_add_u32 v{vVa}, v{vU+1}, 1, v{vVa}")
    A_(f"    s_lshl_b32 s{sROW}, s{sW}, 6")
    A_(f"    s_mov_b32 s{sP}, 0")
    A_("L_slow_pass:")
    for j in range(4):
        A_(f"    s_add_u32 s{sT0}, s{sROW}, {16*j}")
        A_(f"    s_lshl_b32 s{sT1}, s{sT0}, 8")
        A_(f"    s_add_u32 s{sT1}, s{sT1}, s{sQB}")
        A_(f"    s_cmp_lt_u32 s{sT0}, 992")
        A_(f"    s_cselect_b32 s{sQ[j]}, s{sT1}, s{sOOB}")
    for j in range(4):
        for ss in range(4):
            A_(f"    buffer_load_dwordx4 a[{Q_(j,ss)}:{Q_(j,ss)+3}], v{vQO}, s[{sSRD_Q}:{sSRD_Q+3}], s{sQ[j]} offen offset:{64*ss}")
    for j in range(4): A_(f"    v_mov_b32 v{vMx+j}, 0xff800000")
    A_("    s_waitcnt vmcnt(0)")
    def kload():
        for kvt in range(2):
            for ss in range(4):
                A_(f"    ds_read_b128 a[{KF_(kvt,ss)}:{KF_(kvt,ss)+3}], v{vKa} offset:{kvt*4096+ss*1024}")
        A_("    s_waitcnt lgkmcnt(0)")
    def qk(usenm):
        for kvt in range(2):
            for j in range(4):
                for ss in range(4):
                    d = S_(kvt, j)
                    c = (f"v[{NM_(j)}:{NM_(j)+3}]" if usenm else "0") if ss == 0 else f"v[{d}:{d+3}]"
                    A_(f"    v_mfma_f32_16x16x32_bf16 v[{d}:{d+3}], a[{KF_(kvt,ss)}:{KF_(kvt,ss)+3}], a[{Q_(j,ss)}:{Q_(j,ss)+3}], {c}")
        A_("    s_nop 15")
    A_(f"    v_mov_b32 v{vKa}, v{vK0}")
    A_(f"    s_mov_b32 s{sT}, 0")
    A_("L_slow_max:")
    kload(); qk(False)
    for j in range(4):
        for kvt in range(2):
            d = S_(kvt, j)
            A_(f"    v_max3_f32 v{vMx+j}, v{vMx+j}, v{d}, v{d+1}")
            A_(f"    v_max3_f32 v{vMx+j}, v{vMx+j}, v{d+2}, v{d+3}")
    A_(f"    v_add_u32 v{vKa}, 8192, v{vKa}")
    A_(f"    s_add_u32 s{sT}, s{sT}, 1")
    A_(f"    s_cmp_lt_u32 s{sT}, 16")
    A_("    s_nop 7")
    A_("    s_cbranch_scc1 L_slow_max")
    def xlane(reg, op):
        for sw in ("v_permlane16_swap_b32", "v_permlane32_swap_b32"):
            A_(f"    v_mov_b32 v{vU}, v{reg}")
            A_("    s_nop 1")
            A_(f"    {sw} v{reg}, v{vU}")
            A_("    s_nop 1")
            A_(f"    {op} v{reg}, v{reg}, v{vU}")
    for j in range(4):
        xlane(vMx + j, "v_max_f32")
        for i in range(4): A_(f"    v_sub_f32 v{NM_(j)+i}, 0, v{vMx+j}")
        A_(f"    v_mov_b32 v{vL+j}, 0")
    for r in range(128): A_(f"    v_mov_b32 v{r}, 0")
    A_(f"    v_mov_b32 v{vKa}, v{vK0}")
    A_(f"    s_mov_b32 s{sT}, 0")
    A_("L_slow_pv:")
    A_(f"    s_mul_i32 s{sVs}, s84, {Cfg.rot}")
    A_(f"    s_add_u32 s{sVs}, s{sVs}, s{sT}")
    A_(f"    s_and_b32 s{sVs}, s{sVs}, 15")
    A_(f"    s_lshl_b32 s{sVs}, s{sVs}, 13")
    A_(f"    s_add_u32 s{sVs}, s{sVs}, s{sKB}")
    A_(f"    s_add_u32 s{sSo}, s{sVs}, 4096")
    kload(); qk(True)
    for j in range(4):
        for kvt in range(2):
            d = S_(kvt, j)
            for i in range(4): A_(f"    v_exp_f32 v{d+i}, v{d+i}")
            A_("    s_nop 0")
            for h in range(2): A_(f"    v_cvt_pk_bf16_f32 v{P_(0,j)+2*kvt+h}, v{d+2*h}, v{d+2*h+1}")
            for i in range(4): A_(f"    v_add_f32 v{vL+j}, v{vL+j}, v{d+i}")
    raw = P_(1, 0); pk = P_(1, 2)
    for dt in range(8):
        u, b = dt // 2, dt % 2
        for kvt in range(2):
            so = sVs if kvt == 0 else sSo
            for r in range(4):
                A_(f"    buffer_load_ushort v{raw + 4*kvt + r}, v{vVa}, s[{sSRD_V}:{sSRD_V+3}], s{so} offen offset:{r*256 + (32*u + 4*b)*2}")
        A_("    s_waitcnt vmcnt(0)")
        for h in range(4):
            A_(f"    v_lshl_or_b32 v{pk + h}, v{raw + 2*h + 1}, 16, v{raw + 2*h}")
        A_("    s_nop 1")
        for j in range(4):
            o = O_(dt, j)
            A_(f"    v_mfma_f32_16x16x32_bf16 v[{o}:{o+3}], v[{pk}:{pk+3}], v[{P_(0,j)}:{P_(0,j)+3}], v[{o}:{o+3}]")
        A_("    s_nop 7")
    A_(f"    v_add_u32 v{vKa}, 8192, v{vKa}")
    A_(f"    s_add_u32 s{sT}, s{sT}, 1")
    A_(f"    s_cmp_lt_u32 s{sT}, 16")
    A_("    s_nop 15")
    A_("    s_cbranch_scc1 L_slow_pv")
    for j in range(4):
        xlane(vL + j, "v_add_f32")
        A_(f"    v_rcp_f32 v{vL+j}, v{vL+j}")
    A_("    s_nop 1")
    for u in range(4):
        for j in range(4):
            tb = S_(0, 0) + 4 * ((u * 4 + j) % 8)
            for b in range(2):
                o = O_(2 * u + b, j)
                for i in range(4): A_(f"    v_mul_f32 v{o+i}, v{o+i}, v{vL+j}")
                for h in range(2): A_(f"    v_cvt_pk_bf16_f32 v{tb+2*b+h}, v{o+2*h}, v{o+2*h+1}")
            A_(f"    buffer_store_dwordx4 v[{tb}:{tb+3}], v{vQO}, s[{sSRD_O}:{sSRD_O+3}], s{sQ[j]} offen offset:{64*u}")
            A_("    s_nop 1")
    A_("    s_waitcnt vmcnt(0)")
    A_(f"    s_add_u32 s{sROW}, s{sROW}, 256")
    A_(f"    s_add_u32 s{sP}, s{sP}, 1")
    A_(f"    s_cmp_lt_u32 s{sP}, 4")
    A_("    s_cbranch_scc1 L_slow_pass")
    A_("    s_endpgm")
    txt = "\n".join(t) + "\n"
    return txt

def SLOWV(dt): return VF_(dt)

def main():
    ap = argparse.ArgumentParser()
    ap.add_argument("-o", default="standalone__gqa_softmax__near_ridge.s")
    ap.add_argument("--backlog", type=int, default=3)
    ap.add_argument("--lead", type=int, default=7)
    ap.add_argument("--show", action="store_true")
    ap.add_argument("--stamp", action="store_true")
    ap.add_argument("--stflags", default="")
    ap.add_argument("--qflags", default="")
    ap.add_argument("--kflags", default="")
    ap.add_argument("--vflags", default="")
    ap.add_argument("--abl", default="")
    ap.add_argument("--rot", type=int, default=0)
    ap.add_argument("--tflags", default="")
    ap.add_argument("--notouch", action="store_true")
    ap.add_argument("--kbmfma", action="store_true")
    ap.add_argument("--plan", type=int, default=0)
    ap.add_argument("--initmin", type=int, default=0)
    ap.add_argument("--align", default="")
    ap.add_argument("--padbody", type=int, default=0)
    ap.add_argument("--padb0", type=int, default=0)
    ap.add_argument("--noq0dma", action="store_true")
    ap.add_argument("--kboff", type=int, default=12)
    ap.add_argument("--horizon", type=int, default=10 ** 9)
    ap.add_argument("--kblazy", type=int, default=-1)
    ap.add_argument("--pf2", type=int, default=10)
    ap.add_argument("--stj", action="store_true")
    ap.add_argument("--kall", action="store_true")
    ap.add_argument("--simple", action="store_true")
    ap.add_argument("--kahead", type=int, default=6)
    ap.add_argument("--kissue", type=int, default=2)
    ap.add_argument("--winspace", type=int, default=9)
    ap.add_argument("--nointer", action="store_true")
    ap.add_argument("--touchall", action="store_true")
    ap.add_argument("--qstart0", type=int, default=3)
    ap.add_argument("--qspace0", type=int, default=40)
    ap.add_argument("--initx", type=int, default=1)
    ap.add_argument("--x", type=int, default=0)
    ap.add_argument("--x0", type=int, default=0)
    ap.add_argument("--kfirst", type=int, default=4)
    ap.add_argument("--kbnovalu", action="store_true")
    ap.add_argument("--stampbar", action="store_true")
    ap.add_argument("--pf", type=int, default=6)
    ap.add_argument("--nopk", action="store_true")
    ap.add_argument("--stspace", type=int, default=14)
    ap.add_argument("--qstart", type=int, default=5)
    ap.add_argument("--qspace", type=int, default=24)
    ap.add_argument("--bargap", type=int, default=11)
    args = ap.parse_args()
    for x in args.abl.split(","):
        if x: ABL.add(x)
    Cfg.backlog = args.backlog; Cfg.lds_lead = args.lead
    Cfg.pf = args.pf
    Cfg.t_flags = (' ' + args.tflags) if args.tflags else ''
    Cfg.kb_novalu = args.kbnovalu
    Cfg.k_first = args.kfirst
    Cfg.q_start0 = args.qstart0; Cfg.q_space0 = args.qspace0
    if args.kall:
        Cfg.kall = True
        Cfg.init_extra = [("k", t) for t in range(4, 16)] + [("t", 2)]
        Cfg.early_list = [("t", 4), ("t", 6)]
    elif args.initx == 0:
        Cfg.early_list = Cfg.init_extra + Cfg.early_list; Cfg.init_extra = []
    elif args.initx == 2:
        Cfg.init_extra = Cfg.init_extra + Cfg.early_list; Cfg.early_list = []
    Cfg.touch_all = args.touchall
    if args.nointer: Cfg.interleave = 0
    if args.plan == 1:
        Cfg.interleave = 2
        Cfg.st_plan = [(n // 6, n % 6) for n in range(16)]
        Cfg.q_plan = [(3 + n // 6, n % 6) for n in range(16)]
    if args.plan == 2:
        Cfg.interleave = 2
        Cfg.st_plan = [(n // 6, n % 6) for n in range(16)]
        Cfg.q_plan = [(2, 4), (2, 5)] + [(3 + n // 5, n % 5) for n in range(14)]
    Cfg.win_space = args.winspace
    Cfg.simple = args.simple; Cfg.k_ahead = args.kahead; Cfg.k_issue = args.kissue
    Cfg.st_jmajor = args.stj
    Cfg.pf2 = args.pf2
    Cfg.horizon = args.horizon
    if args.kblazy >= 0: Cfg.kb_lazy = True; Cfg.kb_slack = args.kblazy
    Cfg.kb_off = args.kboff
    Cfg.q0dma = not (args.noq0dma or args.simple or args.kall or args.initx == 2)
    Cfg.pad_body = args.padbody; Cfg.pad_b0 = args.padb0
    Cfg.init_min = args.initmin
    Cfg.kb_mfma = args.kbmfma
    Cfg.notouch = args.notouch
    Cfg.rot = args.rot; Cfg.pkmul = not args.nopk
    Cfg.st_space = args.stspace; Cfg.q_start = args.qstart; Cfg.q_space = args.qspace; Cfg.bar_gap = args.bargap
    Cfg.st_flags = (" " + args.stflags) if args.stflags else ""
    Cfg.q_flags = (" " + args.qflags) if args.qflags else ""
    Cfg.k_flags = (" " + args.kflags) if args.kflags else ""
    Cfg.v_flags = (" " + args.vflags) if args.vflags else ""

    def pol(k, remaining, ready, emit_, state):
        state["backlog"] = Cfg.backlog
        state["horizon"] = Cfg.horizon
        default_policy(k, remaining, ready, emit_, state)
    noff0 = next_offsets_ops()
    tail = parked_stores(15)
    if Cfg.simple:
        XS[0] = args.x
        init_ops = []
        body0, vd0 = build_simple_prologue()
        body, late = build_body(False, None)
        for o in body:
            if o.kind == "waitv" and o.name == "vw0": o.covers = vd0 + late
        body0_sched = schedule(body0, pol, verbose=True)
        body_sched = schedule(body, pol, verbose=True)
        setx = Op("", "valu", [], regs("a", X_(0), 64), None, {r: ("OX", -1, None, u, j) for u in range(4) for j in range(4) for r in regs("a", X_(u * 4 + j), 4)})
        trace = [(body0_sched, 0), ([setx], 0), (noff0, 0)] + [(body_sched, p) for p in range(0, 4)] + [(tail, 3)]
    else:
        init_ops, info = init_issue_ops()
        XS[0] = args.x0
        body0, late0 = build_body(True, info)
        XS[0] = args.x
        body, late = build_body(False, None)
        for o in body:
            if o.kind == "waitv" and o.name == "vw0": o.covers = late0 + late
        body0_sched = schedule(body0, pol, verbose=True)
        body_sched = schedule(body, pol, verbose=True)
        trace = [(init_ops, 0), (noff0, 0), (body0_sched, 0)] + [(body_sched, p) for p in range(1, 4)] + [(tail, 3)]
    resolve_waits(trace)
    errs = check_trace(trace)
    for e in errs[:40]: print("ERR", e)
    print("errors:", len(errs))
    nm = sum(1 for o in body_sched if o.kind == "mfma")
    print("body instrs:", sum(1 for o in body_sched if o.kind != "phantom"), "mfma:", nm, " body0 instrs:", sum(1 for o in body0_sched if o.kind != "phantom"))
    if args.show:
        XS[0] = args.x0; GOFF[0] = 32; KBX[0] = 8 if Cfg.kb_mfma else 0; show(body0_sched); XS[0] = args.x; GOFF[0] = 0; KBX[0] = 0; show(body_sched)

    s = f"""; GQA attention forward, bf16, B=16 Hq=32 Hkv=8 Sq=496 Sk=512 D=128  (written by the author's own generator, gen/gen.py)
; @launch grid=(256,1,1) block=(256,1,1) lds=163840
.amdgcn_target "amdgcn-amd-amdhsa--gfx950"
.text
.globl {KNAME}
.p2align 8
.type {KNAME},@function
{KNAME}:
"""
    pt = prologue_text()
    pf = ""
    if Cfg.pf:
        first_end = "L_code_end" if (Cfg.simple or not Cfg.pf2) else "L_pass"
        pf = f"""    s_getpc_b64 s[80:81]
L_pc:
    v_lshlrev_b32 v{TMP+12}, {Cfg.pf}, v0
    s_mov_b32 s82, {first_end}-L_pc-4
"""
        step = 256 << Cfg.pf
        nbytes = Cfg.code_bytes if first_end == "L_code_end" else 36000
        for i in range((nbytes + step - 1) // step):
            pf += f"    v_min_u32 v{TMP+13}, s82, v{TMP+12}\n    global_load_dword v{TMP+14+i%4}, v{TMP+13}, s[80:81]\n    v_add_u32 v{TMP+12}, {step}, v{TMP+12}\n"
        if Cfg.pf2:
            pf += f"""    v_lshlrev_b32 v{vPF}, 7, v0
    v_add_u32 v{vPF}, L_pass-L_pc, v{vPF}
    s_mov_b32 s82, L_code_end-L_pc-68
    v_min_u32 v{vPF}, s82, v{vPF}
"""
    pt = pt.replace("PREFETCH\n", pf)
    pt = pt.replace("KCONST\n", kconst_text() if Cfg.kb_mfma else "")
    if args.stamp:
        a, b = pt.split("    ; workgroup -> (group, half)")
        pt = a + stamp_setup() + stamp(0) + "    ; workgroup -> (group, half)" + b
    s += pt
    s += emit_fix(init_ops)
    if not Cfg.simple: s += emit(noff0)
    if args.stamp: s += stamp(1)
    b0 = "    s_nop 0\n" * Cfg.pad_b0 + emit(body0_sched)
    if args.align:
        from align8 import align_block
        b0, n = align_block(b0, args.align); print("promoted (body0):", n)
        b0 = ".p2align 3\n" + b0
    if args.stamp and args.stampbar:
        parts = b0.split("    s_barrier\n")
        b0 = parts[0]
        for k, p_ in enumerate(parts[1:]):
            b0 += "    s_barrier\n" + stamp(8 + k) + p_
    s += b0
    if Cfg.simple: s += emit(noff0)
    if args.stamp: s += stamp(2)
    s += f"    s_mov_b32 s{sPASS}, {0 if Cfg.simple else 1}\n"
    s += ".p2align 6\nL_pass:\n" + "    s_nop 0\n" * Cfg.pad_body
    b1 = emit(body_sched)
    if args.align:
        b1, n = align_block(b1, args.align); print("promoted (body):", n)
    if args.stamp and args.stampbar:
        parts = b1.split("    s_barrier\n")
        b1 = stamp(18) + parts[0]
        for k, p_ in enumerate(parts[1:]):
            b1 += "    s_barrier\n" + stamp(19 + k) + p_
        idx = b1.rindex("    v_mfma")
        idx = b1.index("\n", idx) + 1
        b1 = b1[:idx] + stamp(27) + b1[idx:] + stamp(28)
    s += b1
    if args.stamp: s += stamp(3 if Cfg.simple else 2, dyn=True)
    s += f"""    s_add_u32 s{sPASS}, s{sPASS}, 1
    s_cmp_lt_u32 s{sPASS}, 4
    s_cbranch_scc1 L_pass
"""
    s += emit(tail)
    if args.stamp: s += "    s_waitcnt vmcnt(0)\n" + stamp(7 if Cfg.simple else 6)
    s += f"""    s_cmp_lg_u64 s[{sFLAG}:{sFLAG+1}], 0
    s_cbranch_scc1 L_slow
L_end:
    s_endpgm
L_code_end:
"""
    s += slow_path_text()
    s += f"""
.section .rodata,"a"
.p2align 6
.amdhsa_kernel {KNAME}
  .amdhsa_next_free_vgpr 512
  .amdhsa_next_free_sgpr 96
  .amdhsa_accum_offset 256
  .amdhsa_group_segment_fixed_size 0
  .amdhsa_kernarg_size 48
  .amdhsa_user_sgpr_count 2
  .amdhsa_user_sgpr_kernarg_segment_ptr 1
  .amdhsa_system_sgpr_workgroup_id_x 1
.end_amdhsa_kernel
"""
    open(args.o, "w").write(s)

if __name__ == "__main__":
    main()
```
